```python
import torch

def _softmax(x, axis=-1):
    return torch.softmax(x, dim=axis)
def _gelu(x):
    return torch.nn.functional.gelu(x, approximate="tanh")
def _silu(x):
    return torch.nn.functional.silu(x)
def _sigmoid(x):
    return torch.sigmoid(x)
def _layernorm(x, axis=-1, eps=1e-5):
    m = x.mean(dim=axis, keepdim=True)
    v = x.var(dim=axis, keepdim=True, unbiased=False)
    return (x - m) / torch.sqrt(v + eps)
def _scatter_add(tgt, idx, src, axis=0):
    return tgt.clone().index_add_(axis, idx, src)
def _segment_sum(src, seg, n):
    out = torch.zeros((n,) + src.shape[1:], dtype=src.dtype)
    return out.index_add_(0, seg, src)
def _pad(x, pw):
    flat = tuple(v for pair in reversed(pw) for v in pair)
    return torch.nn.functional.pad(x, flat)

kernel_name = 'recurrent_scan__ssm_conv_h3__geglu_ffn__prompt'

def setup_inputs():

    _w = (lambda a: (lambda t: t.to(torch.bfloat16) if t.is_floating_point() else t)(torch.as_tensor(a)))
    def _A_setup():
        B, S, D = 1, 2048, 1024
        ks = 4
        return {
            "q": _w((lambda *s: torch.randn(*s, dtype=torch.bfloat16) * 0.05)(B, S, D)),
            "k": _w((lambda *s: torch.randn(*s, dtype=torch.bfloat16) * 0.2)(B, S, D)),
            "v": _w((lambda *s: torch.randn(*s, dtype=torch.bfloat16) * 0.2)(B, S, D)),
            "shift_k": _w((lambda *s: torch.randn(*s, dtype=torch.bfloat16) * 0.2)(D, ks) * 0.5),
            "ssm_k": _w((lambda *s: torch.randn(*s, dtype=torch.bfloat16) * 0.2)(D, S) * (1.0 / S ** 0.5)),
            "ssm_D": _w((lambda *s: torch.randn(*s, dtype=torch.bfloat16) * 0.2)(D)),
        }
    _A_in = _A_setup()

    def _B_setup():
        B, S, D, F = 1, 2048, 1024, 3584
        return {
            "x": _w((lambda *s: torch.randn(*s, dtype=torch.bfloat16) * 0.05)(B, S, D)),
            "w_gate": _w((lambda *s: torch.randn(*s, dtype=torch.bfloat16) * 0.1)(D, F)),
            "w_up": _w((lambda *s: torch.randn(*s, dtype=torch.bfloat16) * 0.1)(D, F)),
            "w_down": _w((lambda *s: torch.randn(*s, dtype=torch.bfloat16) * 0.1)(F, D)),
        }
    _B_in = _B_setup()

    return {
        "A_q": _A_in["q"],
        "A_k": _A_in["k"],
        "A_v": _A_in["v"],
        "A_shift_k": _A_in["shift_k"],
        "A_ssm_k": _A_in["ssm_k"],
        "A_ssm_D": _A_in["ssm_D"],
        "B_x": _B_in["x"],
        "B_w_gate": _B_in["w_gate"],
        "B_w_up": _B_in["w_up"],
        "B_w_down": _B_in["w_down"],
    }

def reference(A_q, A_k, A_v, A_shift_k, A_ssm_k, A_ssm_D, B_x, B_w_gate, B_w_up, B_w_down):
    def _A_ref(q, k, v, shift_k, ssm_k, ssm_D):
        B, S, D = q.shape
        ks = shift_k.shape[-1]
        k_pad = _pad(k, ((0, 0), (ks - 1, 0), (0, 0)))
        k_shift = torch.zeros_like(k)
        for t in range(ks):
            k_shift = k_shift + k_pad[:, t:t + S, :] * shift_k[:, ks - 1 - t][None, None, :]
        kv = k_shift * v
        L = 2 * S
        kv_pad = _pad(kv, ((0, 0), (0, S), (0, 0)))
        kf_pad = _pad(ssm_k, ((0, 0), (0, S)))
        kv_f = (lambda x, axes=(-2,-1): torch.fft.rfft2(x.float(), dim=axes))(kv_pad[:, None, :, :], axes=(1, 2))
        kf_f = (lambda x, axes=(-2,-1): torch.fft.rfft2(x.float(), dim=axes))(kf_pad[:, None, :], axes=(1, 2))
        kf_f = (lambda x, *d: x.permute(*d))(kf_f, 1, 2, 0)
        y_f = kv_f * kf_f[None, :, :, :]
        y = (lambda x, s, axes=(-2,-1): torch.fft.irfft2(x, s=s, dim=axes).to(torch.bfloat16))(y_f, (1, L), axes=(1, 2))[:, 0, :S, :]
        y = y + kv * ssm_D[None, None, :]
        return q * y

    def _B_ref(x, w_gate, w_up, w_down):
        return (_gelu(x @ w_gate) * (x @ w_up)) @ w_down

    x = A_q
    xn = _layernorm(x, axis=-1)
    s = _A_ref(xn, A_k, A_v, A_shift_k, A_ssm_k, A_ssm_D)
    g = _silu(_B_ref(xn, B_w_gate, B_w_up, B_w_down))
    return x + s * g
```

```python
class A:
    def __init__(self): self.l = []
    def __call__(self, s):
        for x in s.split("\n"):
            x = x.strip()
            if x: self.l.append(x if x.endswith(":") else "    " + x)
    def text(self): return "\n".join(self.l) + "\n"

def header(launches):
    return "".join(f"; @launch kernel={k} grid=({g},1,1) block=({b},1,1) lds={lds}\n" for k, g, b, lds in launches) + \
        '.amdgcn_target "amdgcn-amd-amdhsa--gfx950"\n.text\n'
def kstart(name):
    return f".globl {name}\n.p2align 8\n.type {name},@function\n{name}:\n"
def kdesc(name, vgpr=256, acc=256, sgpr=102):
    return f""".amdhsa_kernel {name}
  .amdhsa_next_free_vgpr {vgpr}
  .amdhsa_next_free_sgpr {sgpr}
  .amdhsa_accum_offset {acc}
  .amdhsa_group_segment_fixed_size 0
  .amdhsa_kernarg_size 104
  .amdhsa_user_sgpr_count 2
  .amdhsa_user_sgpr_kernarg_segment_ptr 1
  .amdhsa_system_sgpr_workgroup_id_x 1
  .amdhsa_float_denorm_mode_32 3
.end_amdhsa_kernel
"""
def rodata(): return '.section .rodata,"a"\n.p2align 6\n'
def v(a, n=1): return f"v{a}" if n == 1 else f"v[{a}:{a+n-1}]"
def a_(a, n=1): return f"a{a}" if n == 1 else f"a[{a}:{a+n-1}]"
def s(a, n=1): return f"s{a}" if n == 1 else f"s[{a}:{a+n-1}]"
```

```python
from asmlib import *
import math, struct
WS_STATS = 0
WS_UT    = 0x100000
WS_Y4    = 0x600000
WS_XF    = 0xB00000
WS_HF    = 0x1000000
WS_TS    = 0x3000000
def f2u(x): return "0x%08x" % struct.unpack("<I", struct.pack("<f", x))[0]

class Cnt:
    def __init__(self, name, mx): self.name = name; self.mx = mx; self.ops = []; self.done = 0
    def issue(self, tag): self.ops.append(tag)
    def need(self, tags):
        c = [i for i, t in enumerate(self.ops) if t in tags]
        if not c: return None
        idx = max(c)
        if idx < self.done: return None
        n = max(0, min(len(self.ops) - 1 - idx, self.mx))
        self.done = len(self.ops) - n
        return f"{self.name}({n})"
    def drain(self): self.done = len(self.ops)
    def save(self): return (list(self.ops), self.done)
    def restore(self, st): self.ops, self.done = list(st[0]), st[1]

def stamp(a, idx, en=True):
    if en: a(f"s_memtime s[{60+4*idx}:{61+4*idx}]\ns_memrealtime s[{62+4*idx}:{63+4*idx}]")

def gen(name="g1_kernel", STAMP=True, NS=6, XD=4, DMA=True, WAITEVERY=2, WNT='', MAP=0):
    a = A()
    VXO = 224; VWO = 225; VWR = 229; VT = 230
    def acc(f, u): b = 4*(4*f+u); return f"v[{b}:{b+3}]"
    AW = 0; AX = 56
    def wf(f, h=None):
        b = AW + 4*f
        return f"a[{b}:{b+3}]" if h is None else f"a[{b+2*h}:{b+2*h+1}]"
    def xf(slot, u): b = AX + 16*slot + 4*u; return f"a[{b}:{b+3}]"
    a(f"""
    s_cmp_ge_u32 s2, 256
    s_cbranch_scc1 L_{name}_end
    s_load_dwordx4 s[32:35], s[0:1], 56
    s_load_dwordx2 s[36:37], s[0:1], 96
    """)
    stamp(a, 0, STAMP)
    a(f"""
    v_lshrrev_b32 v1, 6, v0
    v_and_b32 v{VT}, 63, v0
    s_and_b32 s3, s2, 7
    v_readfirstlane_b32 s20, v1
    s_lshr_b32 s38, s2, 3                ; slot 0..31
    """)
    if MAP == 0:
        a("""
    s_and_b32 s21, s3, 1
    s_lshl_b32 s21, s21, 2
    s_and_b32 s39, s38, 3
    s_add_u32 s21, s21, s39              ; band
    s_lshr_b32 s22, s3, 1
    s_lshl_b32 s22, s22, 3
    s_lshr_b32 s39, s38, 2
    s_add_u32 s22, s22, s39              ; n tile j
    """)
    else:
        a("""
    s_and_b32 s21, s38, 7                ; band
    s_lshl_b32 s22, s3, 2
    s_lshr_b32 s39, s38, 3
    s_add_u32 s22, s22, s39              ; n tile j
    """)
    a(f"""
    v_lshlrev_b32 v{VXO}, 4, v{VT}
    s_lshr_b32 s39, s20, 1
    """)
    for cls in range(2):
        a(f"""
        v_subrev_u32 v0, {8*cls}, v{VT}
        v_mul_u32_u24 v1, 4682, v0
        v_lshrrev_b32 v1, 16, v1           ; r = dl/14
        v_mul_u32_u24 v2, 14, v1
        v_sub_u32 v2, v0, v2               ; chunk
        v_mul_u32_u24 v1, 7168, v1
        v_lshl_add_u32 v1, v2, 4, v1
        v_cmp_gt_u32 vcc, 56, v0
        v_mov_b32 v2, 0x80000000
        s_nop 0
        v_cndmask_b32 v1, v2, v1, vcc
        v_add_u32 v{VWO+2*cls}, {(2*cls)*(28672-1024)}, v1
        v_add_u32 v{VWO+2*cls+1}, {(2*cls+1)*(28672-1024)}, v1
        """)
    a(f"""
    s_waitcnt lgkmcnt(0)
    s_lshl_b32 s40, s21, 2
    s_add_u32 s40, s40, s20              ; G = band*4+w
    s_lshl_b32 s41, s40, 17              ; G*32*4096
    s_add_u32 s4, s36, s41
    s_addc_u32 s5, s37, 0
    s_add_u32 s4, s4, {WS_XF}
    s_addc_u32 s5, s5, 0
    s_mov_b32 s6, 131072
    s_mov_b32 s7, 0x20000
    s_cmp_eq_u32 s39, 0
    s_cselect_b32 s8, s32, s34
    s_cselect_b32 s9, s33, s35
    s_mul_i32 s41, s22, 224
    s_and_b32 s42, s20, 1
    s_mul_i32 s42, s42, {16*7168}
    s_add_u32 s41, s41, s42
    s_add_u32 s8, s8, s41
    s_addc_u32 s9, s9, 0
    s_sub_u32 s10, {1024*7168}, s41
    s_mov_b32 s11, 0x20000
    s_lshl_b32 s43, s20, 12
    s_add_u32 s44, s43, {NS*16384}
    """)
    VM = Cnt("vmcnt", 63); LG = Cnt("lgkmcnt", 15)
    def dma_w(i, ks):
        VM.issue(("W", ks)); return f"buffer_load_dwordx4 v{VWO+i}, s[8:11], s25 offen offset:{1024*i} {WNT} lds"
    def ld_x(u, ks):
        VM.issue(("X", ks)); return f"buffer_load_dwordx4 {xf(ks % XD, u)}, v{VXO}, s[4:7], s23 offen offset:{1024*u}"
    adv_w = f"s_add_u32 s25, s25, {32*7168}\ns_add_u32 s27, s27, 16384\ns_cmp_eq_u32 s27, s44\ns_cselect_b32 s27, s43, s27"
    a("s_mov_b32 s25, 0\ns_mov_b32 s27, s43\ns_mov_b32 s23, 0")
    for n in range(-max(NS, XD-1), 0):
        if n + NS >= 0: a("s_mov_b32 m0, s27\ns_nop 0")
        for i in range(4):
            if n + NS >= 0: a(dma_w(i, n + NS))
            if n - 1 + XD >= 0: a(ld_x(i, n - 1 + XD))
        if n + NS >= 0: a(adv_w)
        if n - 1 + XD >= 0: a("s_add_u32 s23, s23, 4096")
    a(f"""
    v_lshrrev_b32 v0, 4, v{VT}
    v_lshlrev_b32 v1, 11, v0
    v_and_b32 v0, 1, v0
    v_lshl_add_u32 v1, v0, 7, v1
    v_bfe_u32 v0, v{VT}, 2, 2
    v_mul_u32_u24 v0, 224, v0
    v_add_u32 v1, v1, v0
    v_and_b32 v0, 3, v{VT}
    v_lshl_add_u32 v{VWR}, v0, 3, v1
    s_mov_b32 s45, 0
    s_mov_b32 s29, 0
    """)
    def rd_w(f, h):
        LG.issue(("w", f))
        t, gu = f >> 1, f & 1
        return f"ds_read_b64_tr_b16 {wf(f,h)}, v{VWR} offset:{gu*8192 + h*1024 + 32*t}"
    adv_r = f"s_add_u32 s46, s45, 16384\ns_cmp_eq_u32 s46, {NS*16384}\ns_cselect_b32 s46, 0, s46\ns_sub_u32 s47, s46, s45\ns_mov_b32 s45, s46"
    a("s_waitcnt " + VM.need([("W", 0)]) + "\ns_barrier")
    stamp(a, 1, STAMP)
    for f in range(14): a(rd_w(f, 0)); a(rd_w(f, 1))
    a("s_waitcnt lgkmcnt(0)"); LG.drain()

    def step(n, first=False, last=False, dmaw=True, ldx=True):
        gaps = [[] for _ in range(56)]
        BG = 7
        if not last:
            for i, s_ in enumerate(adv_r.split("\n")): gaps[i].append(lambda s_=s_: s_)
            gaps[5].append(lambda: f"v_add_u32 v{VWR}, s47, v{VWR}")
            def dobar():
                LG.drain()
                w = VM.need([("W", n+1)])
                return f"s_waitcnt {w+' ' if w else ''}lgkmcnt(0)\ns_barrier"
            gaps[BG].append(dobar)
            g = BG + 1
            for f in range(14):
                for h in range(2):
                    g = max(g, 4*f+3 + h)
                    gg = min(g, 55)
                    gaps[gg].append(lambda f=f, h=h: rd_w(f, h))
                    g += 1
            if dmaw and DMA:
                gaps[6].append(lambda: "s_mov_b32 m0, s27")
                for i, g in enumerate((13, 21, 29, 37)): gaps[g].append(lambda i=i: dma_w(i, n+NS))
                for i, s_ in enumerate(adv_w.split("\n")): gaps[41+(i>0)*4].append(lambda s_=s_: s_)
        if ldx:
            pass
        seq = []
        for f in range(14):
            us = range(4) if f % 2 == 0 else range(3, -1, -1)
            seq += [(f, u) for u in us]
        for m, (f, u) in enumerate(seq):
            if m % 4 == 0 and f % WAITEVERY == 0:
                w = LG.need([("w", ff) for ff in range(f, min(14, f+WAITEVERY))])
                w2 = VM.need([("X", n)]) if m == 0 else None
                if w or w2: a("s_waitcnt " + " ".join(x for x in (w2, w) if x))
            c = "0" if first else acc(f, u)
            a(f"v_mfma_f32_16x16x32_bf16 {acc(f,u)}, {wf(f)}, {xf(n % XD, u)}, {c}")
            for fn in gaps[m]: a(fn())
            if ldx and DMA and m in (17, 25, 33, 49):
                a(ld_x((17, 25, 33, 49).index(m), n - 1 + XD))
                if m == 49: a("s_add_u32 s23, s23, 4096")
    NK = 32
    step(0, first=True)
    n = 1
    nfull = min(NK - NS, NK - XD + 1)
    iters = (nfull - 1) // XD
    a(f"L_{name}_loop:")
    n0 = len(a.l)
    for i in range(XD): step(n + i)
    body = a.l[n0:]
    a(f"s_add_u32 s29, s29, 1\ns_cmp_lt_u32 s29, {iters}\ns_cbranch_scc1 L_{name}_loop")
    sv = a.l
    for it in range(1, iters):
        a.l = []
        for i in range(XD): step(n + it*XD + i)
        assert (not DMA) or a.l == body, f"loop not steady at {it}: " + str([(x, y) for x, y in zip(a.l, body) if x != y][:5])
    a.l = sv
    n += iters*XD
    while n < NK:
        step(n, last=(n == NK-1), dmaw=(n + NS < NK), ldx=(n - 1 + XD < NK))
        n += 1
    stamp(a, 2, STAMP)
    c0 = -2*0.7978845608028654*math.log2(math.e); c1 = c0*0.044715
    a(f"""
    s_add_u32 s12, s36, {WS_HF}
    s_addc_u32 s13, s37, 0
    s_mov_b32 s14, {64*224*1024}
    s_mov_b32 s15, 0x20000
    s_mov_b32 s48, {f2u(c0)}
    s_mov_b32 s49, {f2u(c1)}
    v_mov_b32 v226, s48
    v_mov_b32 v227, s49
    s_lshr_b32 s41, s22, 1
    s_mul_i32 s41, s41, 7                ; 7*(j>>1)
    s_and_b32 s42, s22, 1
    s_mul_i32 s50, s42, 3
    s_add_u32 s50, s50, s41
    s_add_u32 s51, s41, 6
    s_mul_i32 s41, s40, {2*112}
    s_add_u32 s50, s50, s41
    s_add_u32 s51, s51, s41
    s_lshl_b32 s50, s50, 11
    s_lshl_b32 s51, s51, 11
    s_lshl_b32 s42, s42, 3
    s_add_u32 s51, s51, s42
    """)
    P = 232
    def gelu(t, u, O):
        G = 4*(4*(2*t)+u); U = 4*(4*(2*t+1)+u)
        pr = lambda b, p: f"v[{b+2*p}:{b+2*p+1}]"
        L = []
        return G, U
    pr = lambda b: f"v[{b}:{b+1}]"
    def epi(items, O):
        gs = [G+2*p for G, U in items for p in range(2)]; us = [U+2*p for G, U in items for p in range(2)]
        n = len(gs)
        for p in range(n): a(f"v_pk_mul_f32 {pr(P+2*p)}, {pr(gs[p])}, {pr(gs[p])}")
        for p in range(n): a(f"v_pk_fma_f32 {pr(P+2*p)}, {pr(P+2*p)}, v[226:227], v[226:227] op_sel:[0,1,0] op_sel_hi:[1,1,0]")
        for p in range(n): a(f"v_pk_mul_f32 {pr(P+2*p)}, {pr(P+2*p)}, {pr(gs[p])}")
        for r in range(2*n): a(f"v_exp_f32 v{P+r}, v{P+r}")
        for p in range(n): a(f"v_pk_mul_f32 {pr(gs[p])}, {pr(gs[p])}, {pr(us[p])}")
        for p in range(n): a(f"v_pk_add_f32 {pr(P+2*p)}, {pr(P+2*p)}, 1.0 op_sel_hi:[1,0]")
        for r in range(2*n): a(f"v_rcp_f32 v{P+r}, v{P+r}")
        a("s_nop 0")
        for p in range(n): a(f"v_pk_mul_f32 {pr(gs[p])}, {pr(gs[p])}, {pr(P+2*p)}")
        for p in range(n): a(f"v_cvt_pk_bf16_f32 v{O+p}, v{gs[p]}, v{gs[p]+1}")
    GU = lambda t, u: (4*(4*(2*t)+u), 4*(4*(2*t+1)+u))
    k = 0
    a("s_nop 4")
    for q in range(3):
        for u in range(4):
            O = 240 + 4*(k & 1); k += 1
            epi([GU(2*q, u), GU(2*q+1, u)], O)
            a(f"s_add_u32 s42, s50, {(u>>1)*112*2048 + q*2048}")
            a(f"buffer_store_dwordx4 v[{O}:{O+3}], v{VXO}, s[12:15], s42 offen offset:{(u&1)*1024}")
    for uu in range(2):
        O = 240 + 4*(k & 1); k += 1
        epi([GU(6, 2*uu), GU(6, 2*uu+1)], O)
        a(f"s_add_u32 s42, s51, {uu*112*2048}")
        a(f"buffer_store_dwordx2 v[{O}:{O+1}], v{VXO}, s[12:15], s42 offen")
        a(f"buffer_store_dwordx2 v[{O+2}:{O+3}], v{VXO}, s[12:15], s42 offen offset:1024")
    stamp(a, 3, STAMP)
    if STAMP:
        a("s_waitcnt vmcnt(0)")
        stamp(a, 4)
        a(f"""
        s_waitcnt lgkmcnt(0)
        s_cmp_eq_u32 s20, 0
        s_cbranch_scc0 L_{name}_end
        s_add_u32 s12, s36, {WS_TS}
        s_addc_u32 s13, s37, 0
        s_mov_b32 s14, 65536
        s_lshl_b32 s41, s2, 6
        v_mov_b32 v1, 0
        """)
        for i in range(5):
            a(f"v_mov_b32 v2, s{60+4*i}\nv_mov_b32 v3, s{62+4*i}\nbuffer_store_dwordx2 v[2:3], v1, s[12:15], s41 offen offset:{8*i}\ns_nop 1")
    a(f"L_{name}_end:\ns_endpgm")
    return a.text()

if __name__ == "__main__":
    for nm, kw in {"a": dict(), "b": dict(NS=8, XD=6), "c": dict(NS=4, XD=3), "d": dict(DMA=False), "e": dict(WAITEVERY=7)}.items():
        ns = kw.get("NS", 6)
        open(f"g1b_{nm}.s", "w").write(header([("g1_kernel", 256, 256, ns*16384)]) + kstart("g1_kernel") + gen(**kw) + rodata() + kdesc("g1_kernel", 512, 256))
```

```python
from asmlib import *
from g1b import WS_STATS, WS_UT, WS_Y4, WS_XF, WS_HF, WS_TS, f2u

def srd(a, d, lo, hi, size, add=0):
    if add:
        a(f"s_add_u32 s{d}, s{lo}, {add}\ns_addc_u32 s{d+1}, s{hi}, 0")
    else:
        a(f"s_mov_b32 s{d}, s{lo}\ns_mov_b32 s{d+1}, s{hi}")
    a(f"s_mov_b32 s{d+2}, {size}\ns_mov_b32 s{d+3}, 0x20000")

def rne_bf16(a, d, s_, tmp):
    a(f"v_cvt_pk_bf16_f32 v{d}, v{s_}, v{s_}\nv_and_b32 v{d}, 0xffff0000, v{d}")

def red32(a, r, t):
    for ctl in ("quad_perm:[1,0,3,2]", "quad_perm:[2,3,0,1]", "row_half_mirror", "row_mirror"):
        a(f"s_nop 1\nv_add_f32_dpp v{r}, v{r}, v{r} {ctl} row_mask:0xf bank_mask:0xf")
    a(f"v_mov_b32 v{t}, v{r}\ns_nop 1\nv_permlane16_swap_b32 v{r}, v{t}\ns_nop 1\nv_add_f32 v{r}, v{r}, v{t}")

def gen_p0(name="p0_kernel", SC="", STAMP=False, NT="", ZERO=0):
    a = A()
    if STAMP: a("s_memrealtime s[90:91]")
    a(f"""
    s_cmp_ge_u32 s2, 256
    s_cbranch_scc1 L_{name}_end
    s_load_dwordx4 s[32:35], s[0:1], 0      ; q, k
    s_load_dwordx4 s[36:39], s[0:1], 16     ; v, shift_k
    s_load_dwordx2 s[40:41], s[0:1], 96     ; ws
    v_lshrrev_b32 v1, 6, v0
    v_and_b32 v0, 63, v0
    s_nop 0
    v_readfirstlane_b32 s20, v1
    s_waitcnt lgkmcnt(0)
    """)
    srd(a, 4, 32, 33, 4194304); srd(a, 8, 34, 35, 4194304); srd(a, 12, 36, 37, 4194304); srd(a, 16, 38, 39, 8192)
    srd(a, 24, 40, 41, 4194304, WS_XF); srd(a, 28, 40, 41, 4194304, WS_UT); srd(a, 44, 40, 41, 16384, WS_STATS)
    a(f"""
    s_lshl_b32 s3, s2, 3
    s_lshl_b32 s21, s20, 1
    s_add_u32 s3, s3, s21                 ; row0
    v_lshrrev_b32 v1, 5, v0
    v_add_u32 v1, s3, v1                  ; row
    v_and_b32 v2, 31, v0                  ; j
    v_lshlrev_b32 v3, 4, v2
    v_lshl_add_u32 v3, v1, 11, v3
    """)
    for i in range(4): a(f"buffer_load_dwordx4 v[{16+4*i}:{19+4*i}], v3, s[4:7], 0 offen offset:{512*i}")
    a(f"""
    s_lshr_b32 s21, s2, 4
    s_lshl_b32 s21, s21, 7
    s_lshl_b32 s22, s20, 5
    s_add_u32 s21, s21, s22
    s_and_b32 s22, s2, 15                 ; cb
    v_lshrrev_b32 v4, 3, v0
    v_lshl_add_u32 v4, v4, 2, s21         ; s0
    v_and_b32 v5, 7, v0                   ; p
    s_lshl_b32 s23, s22, 7
    v_lshl_add_u32 v6, v5, 4, s23
    v_lshl_add_u32 v6, v4, 11, v6
    v_subrev_u32 v7, {3*2048}, v6
    """)
    K0 = 32; V0 = 60; W0 = 76
    a("v_add_u32 v248, 4096, v7\nv_add_u32 v249, 4096, v6")
    for r, (reg, off) in enumerate([(7,0),(7,2048),(248,0),(6,0),(6,2048),(249,0),(249,2048)]):
        a(f"buffer_load_dwordx4 v[{K0+4*r}:{K0+4*r+3}], v{reg}, s[8:11], 0 offen offset:{off} {NT}")
    for r, (reg, off) in enumerate([(6,0),(6,2048),(249,0),(249,2048)]):
        a(f"buffer_load_dwordx4 v[{V0+4*r}:{V0+4*r+3}], v{reg}, s[12:15], 0 offen offset:{off} {NT}")
    a(f"s_lshl_b32 s23, s22, 9\nv_lshl_add_u32 v8, v5, 6, s23")
    for i in range(4): a(f"buffer_load_dwordx4 v[{W0+4*i}:{W0+4*i+3}], v8, s[16:19], 0 offen offset:{16*i}")
    if ZERO:
        srd(a, 48, 40, 41, ZERO[1], ZERO[0])
        a("s_lshl_b32 s3, s2, 8\ns_lshl_b32 s23, s20, 30\ns_add_u32 s3, s3, s23\nv_lshlrev_b32 v9, 2, v0\nv_mov_b32 v10, 0\nbuffer_store_dword v10, v9, s[48:51], s3 offen")
    X = 96
    a(f"s_waitcnt vmcnt({16 if ZERO else 15})")
    for d in range(16):
        a(f"v_lshlrev_b32 v{X+2*d}, 16, v{16+d}\nv_and_b32 v{X+2*d+1}, 0xffff0000, v{16+d}")
    pr = lambda b: f"v[{b}:{b+1}]"
    a(f"v_pk_add_f32 v[10:11], {pr(X)}, {pr(X+2)}")
    for d in range(2, 16): a(f"v_pk_add_f32 v[10:11], v[10:11], {pr(X+2*d)}")
    a("v_add_f32 v10, v10, v11")
    red32(a, 10, 11)
    a(f"v_mul_f32 v10, {f2u(1/1024.)}, v10")
    T = 128
    for d in range(16): a(f"v_pk_add_f32 {pr(T+2*d)}, {pr(X+2*d)}, v[10:11] op_sel_hi:[1,0] neg_lo:[0,1] neg_hi:[0,1]")
    a(f"v_pk_mul_f32 v[12:13], {pr(T)}, {pr(T)}")
    for d in range(1, 16): a(f"v_pk_fma_f32 v[12:13], {pr(T+2*d)}, {pr(T+2*d)}, v[12:13]")
    a("v_add_f32 v12, v12, v13")
    red32(a, 12, 13)
    a(f"v_mul_f32 v12, {f2u(1/1024.)}, v12")
    rne_bf16(a, 10, 10, 0); rne_bf16(a, 12, 12, 0)
    a(f"v_add_f32 v12, {f2u(1e-5)}, v12"); rne_bf16(a, 12, 12, 0)
    a("v_sqrt_f32 v12, v12\ns_nop 0"); rne_bf16(a, 11, 12, 0)
    a("v_rcp_f32 v12, v11")
    a(f"""
    v_lshlrev_b32 v14, 3, v1
    v_cmp_eq_u32 vcc, 0, v2
    v_mov_b32 v15, 0x80000000
    s_nop 0
    v_cndmask_b32 v14, v15, v14, vcc
    buffer_store_dwordx2 v[10:11], v14, s[44:47], 0 offen {SC}
    """)
    for d in range(16):
        a(f"v_pk_add_f32 {pr(X+2*d)}, {pr(X+2*d)}, v[10:11] op_sel_hi:[1,0] neg_lo:[0,1] neg_hi:[0,1]")
    for d in range(16):
        a(f"v_cvt_pk_bf16_f32 v{16+d}, v{X+2*d}, v{X+2*d+1}")
    for d in range(16):
        a(f"v_lshlrev_b32 v{X+2*d}, 16, v{16+d}\nv_and_b32 v{X+2*d+1}, 0xffff0000, v{16+d}")
    for d in range(16):
        a(f"v_pk_mul_f32 {pr(X+2*d)}, {pr(X+2*d)}, v[12:13] op_sel_hi:[1,0]")
    for d in range(16):
        a(f"v_cvt_pk_bf16_f32 v{16+d}, v{X+2*d}, v{X+2*d+1}")
    a(f"""
    v_lshrrev_b32 v9, 6, v1
    v_lshlrev_b32 v9, 17, v9
    v_bfe_u32 v14, v1, 4, 2
    v_lshl_add_u32 v9, v14, 10, v9
    v_and_b32 v14, 15, v1
    v_lshl_add_u32 v9, v14, 4, v9
    v_lshrrev_b32 v14, 2, v2
    v_lshl_add_u32 v9, v14, 12, v9
    v_and_b32 v14, 3, v2
    v_lshl_add_u32 v9, v14, 8, v9
    """)
    for i in range(4):
        a(f"s_mov_b32 s23, {32768*i}\nbuffer_store_dwordx4 v[{16+4*i}:{19+4*i}], v9, s[24:27], s23 offen {SC}")
    a("s_waitcnt vmcnt(5)")
    KX = 96; WX = 152; VX = 184
    for d in range(28): a(f"v_lshlrev_b32 v{KX+2*d}, 16, v{K0+d}\nv_and_b32 v{KX+2*d+1}, 0xffff0000, v{K0+d}")
    for ch in range(8):
        for h in range(2):
            a(f"v_lshlrev_b32 v{WX+8*(2*h)+ch}, 16, v{W0+2*ch+h}\nv_and_b32 v{WX+8*(2*h+1)+ch}, 0xffff0000, v{W0+2*ch+h}")
    for d in range(16): a(f"v_lshlrev_b32 v{VX+2*d}, 16, v{V0+d}\nv_and_b32 v{VX+2*d+1}, 0xffff0000, v{V0+d}")
    R = 216
    for t in range(4):
        for c in range(4):
            d = pr(R+8*t+2*c)
            a(f"v_pk_mul_f32 {d}, {pr(KX+8*t+2*c)}, {pr(WX+24+2*c)}")
        for j in (2, 1, 0):
            for c in range(4):
                d = pr(R+8*t+2*c)
                a(f"v_pk_fma_f32 {d}, {pr(KX+8*(t+3-j)+2*c)}, {pr(WX+8*j+2*c)}, {d}")
        for c in range(4):
            d = pr(R+8*t+2*c)
            a(f"v_pk_mul_f32 {d}, {d}, {pr(VX+8*t+2*c)}")
    for ch in range(8):
        a(f"v_cvt_pk_bf16_f32 v{32+2*ch}, v{R+ch}, v{R+8+ch}\nv_cvt_pk_bf16_f32 v{33+2*ch}, v{R+16+ch}, v{R+24+ch}")
    a(f"""
    s_lshl_b32 s23, s22, 18               ; cb*64*4096
    v_lshlrev_b32 v9, 15, v5              ; p*8*4096
    v_lshl_add_u32 v9, v4, 1, v9
    """)
    for ch in range(8):
        a(f"buffer_store_dwordx2 v[{32+2*ch}:{33+2*ch}], v9, s[28:31], s23 offen {SC}\ns_add_u32 s23, s23, 4096")
    if STAMP:
        a(f"""
        s_waitcnt vmcnt(0)
        s_memrealtime s[92:93]
        s_add_u32 s12, s40, {WS_TS + 0x20000}
        s_addc_u32 s13, s41, 0
        s_mov_b32 s14, 65536
        s_mov_b32 s15, 0x20000
        s_lshl_b32 s3, s2, 3
        v_mov_b32 v1, 0
        s_waitcnt lgkmcnt(0)
        v_mov_b32 v2, s90
        v_mov_b32 v3, s92
        buffer_store_dwordx2 v[2:3], v1, s[12:15], s3 offen
        """)
    a(f"L_{name}_end:\ns_endpgm")
    return a.text()

def gen_conv(name="cv_kernel", SC="", STAMP=False):
    a = A()
    if STAMP: a("s_memrealtime s[90:91]")
    HB = 448; UB = HB + 4096 + 64
    WSZ = 8704
    YB = 4*WSZ
    a(f"""
    s_cmp_ge_u32 s2, 256
    s_cbranch_scc1 L_{name}_end
    s_load_dwordx4 s[32:35], s[0:1], 32
    s_load_dwordx2 s[40:41], s[0:1], 96     ; ws
    v_lshrrev_b32 v1, 6, v0
    v_and_b32 v0, 63, v0
    s_nop 0
    v_readfirstlane_b32 s20, v1
    s_waitcnt lgkmcnt(0)
    s_lshl_b32 s21, s2, 2
    s_add_u32 s21, s21, s20                 ; channel d
    """)
    srd(a, 4, 32, 33, 4194304); srd(a, 8, 40, 41, 4194304, WS_UT); srd(a, 12, 34, 35, 2048); srd(a, 16, 40, 41, 4194304, WS_Y4)
    a(f"""
    s_mul_i32 s22, s20, {WSZ}
    s_lshl_b32 s23, s21, 12
    v_lshlrev_b32 v1, 4, v0
    s_add_u32 m0, s22, {HB}
    s_lshl_b32 s24, s21, 1
    """)
    for i in range(4): a(f"buffer_load_dwordx4 v1, s[4:7], s23 offen offset:{1024*i} lds")
    a(f"s_add_u32 m0, s22, {UB}\nv_mov_b32 v2, 0")
    for i in range(4): a(f"buffer_load_dwordx4 v1, s[8:11], s23 offen offset:{1024*i} lds")
    a(f"""
    buffer_load_ushort v3, v2, s[12:15], s24 offen
    v_lshlrev_b32 v4, 2, v0
    v_add_u32 v4, s22, v4
    ds_write_b32 v4, v2
    v_min_u32 v5, 47, v0
    v_lshl_add_u32 v5, v5, 2, s22
    ds_write_b32 v5, v2 offset:256
    v_and_b32 v5, 15, v0
    v_lshl_add_u32 v5, v5, 2, s22
    ds_write_b32 v5, v2 offset:{UB-64}
    v_bfe_u32 v5, v0, 4, 1
    v_lshlrev_b32 v5, 2, v5
    v_and_b32 v6, 3, v0
    v_add_u32 v5, v5, v6                    ; c
    v_lshrrev_b32 v7, 5, v0                 ; hf
    v_sub_u32 v5, v5, v7
    v_lshlrev_b32 v5, 6, v5
    v_bfe_u32 v8, v0, 2, 2                  ; e
    v_lshlrev_b32 v9, 3, v8
    v_sub_u32 v5, v5, v9
    s_add_u32 s25, s22, {HB-328-32}
    v_add_u32 v10, s25, v5
    v_bfe_u32 v5, v0, 4, 1
    v_lshlrev_b32 v5, 5, v5
    v_add_u32 v6, v6, v8
    v_lshl_add_u32 v5, v6, 3, v5
    v_lshl_add_u32 v5, v7, 6, v5
    s_add_u32 s25, s22, {UB-56}
    v_add_u32 v11, s25, v5
    v_lshl_add_u32 v12, v0, 1, s22
    s_waitcnt vmcnt(0) lgkmcnt(0)
    v_lshlrev_b32 v13, 16, v3               ; D
    """)
    ACC = 128; DU = 16
    def af(s_, q, h=None): b = 32*s_ + 4*q; return f"a[{b}:{b+3}]" if h is None else f"a[{b+2*h}:{b+2*h+1}]"
    def bf(s_, p, h=None): b = 64 + 32*s_ + 4*p; return f"a[{b}:{b+3}]" if h is None else f"a[{b+2*h}:{b+2*h+1}]"
    def reads(r):
        L = []
        for i in range(8):
            m = 4*i - r; e = 4*i + r
            L.append(f"ds_read_b64_tr_b16 {af(r&1,i,0)}, v10 offset:{128*(m+3)+32}")
            L.append(f"ds_read_b64_tr_b16 {af(r&1,i,1)}, v10 offset:{128*(m+3)}")
            L.append(f"ds_read_b64_tr_b16 {bf(r&1,i,0)}, v11 offset:{128*e}")
            L.append(f"ds_read_b64_tr_b16 {bf(r&1,i,1)}, v11 offset:{128*e+32}")
        return L
    for x in reads(0): a(x)
    du = []
    for g in range(32): du.append(f"ds_read_u16 v{DU+g}, v12 offset:{UB+128*g}")
    du2 = []
    for g in range(32): du2 += [f"v_lshlrev_b32 v{DU+g}, 16, v{DU+g}", f"v_mul_f32 v{DU+g}, v13, v{DU+g}"]
    started = set()
    for r in range(4):
        a("s_waitcnt lgkmcnt(0)")
        fill = []
        if r < 3: fill += reads(r+1)
        if r == 0: fill += du
        if r == 1: fill += du2
        pairs = [(q, n-q) for n in range(8) for q in range(n+1)]
        per = -(-len(fill) // 34)
        for i, (q, p) in enumerate(pairs):
            n = p + q
            d = f"v[{ACC+16*n}:{ACC+16*n+15}]"
            c = d if n in started else "0"
            started.add(n)
            a(f"v_mfma_f32_32x32x16_bf16 {d}, {af(r&1,q)}, {bf(r&1,p)}, {c}")
            for x in fill[per*i:per*(i+1)]: a(x)
    a("s_nop 7\ns_nop 7\ns_mov_b32 s26, 0\ns_brev_b32 s27, 1\nv_mov_b32 v14, 0")
    R = lambda g, rho: ACC + 4*g + rho
    TMP = 48
    for rho in (2, 1, 0):
        for g in range(32):
            prev = f"v{R(g-1, rho+1)}" if g else "v14"
            a(f"v_cndmask_b32 v{TMP+g}, v{R(g,rho+1)}, {prev}, s[26:27]")
        for g in range(32):
            a(f"v_add_f32_dpp v{R(g,rho)}, v{TMP+g}, v{R(g,rho)} wave_ror:1 row_mask:0xf bank_mask:0xf")
    a(f"s_lshl_b32 s25, s20, 1\ns_add_u32 s25, s25, {YB}\nv_lshl_add_u32 v4, v0, 3, s25")
    for g in range(32): a(f"v_add_f32 v{R(g,0)}, v{R(g,0)}, v{DU+g}")
    for g in range(0, 32, 2): a(f"v_cvt_pk_bf16_f32 v{TMP+g}, v{R(g,0)}, v{R(g+1,0)}")
    for g in range(0, 32, 2):
        a(f"ds_write_b16 v4, v{TMP+g} offset:{512*g}\nds_write_b16_d16_hi v4, v{TMP+g} offset:{512*(g+1)}")
    a(f"""
    s_lshl_b32 s25, s20, 12
    v_add_u32 v5, s25, v1
    s_lshl_b32 s24, s2, 14
    s_waitcnt lgkmcnt(0)
    s_barrier
    """)
    for i in range(4): a(f"ds_read_b128 v[{16+4*i}:{19+4*i}], v5 offset:{YB+1024*i}")
    for i in range(4): a(f"s_waitcnt lgkmcnt({3-i})\nbuffer_store_dwordx4 v[{16+4*i}:{19+4*i}], v5, s[16:19], s24 offen offset:{1024*i} {SC}")
    if STAMP:
        a(f"""
        s_waitcnt vmcnt(0)
        s_memrealtime s[92:93]
        s_add_u32 s12, s40, {WS_TS + 0x30000}
        s_addc_u32 s13, s41, 0
        s_mov_b32 s14, 65536
        s_mov_b32 s15, 0x20000
        s_lshl_b32 s3, s2, 3
        v_mov_b32 v1, 0
        s_waitcnt lgkmcnt(0)
        v_mov_b32 v2, s90
        v_mov_b32 v3, s92
        buffer_store_dwordx2 v[2:3], v1, s[12:15], s3 offen
        """)
    a(f"L_{name}_end:\ns_endpgm")
    return a.text()

if __name__ == "__main__":
    open("pc.s", "w").write(header([("p0_kernel", 256, 256, 0), ("cv_kernel", 256, 256, 4*8704+16384)]) + kstart("p0_kernel") + gen_p0() + kstart("cv_kernel") + gen_conv()
        + rodata() + kdesc("p0_kernel", 256, 256) + ".p2align 6\n" + kdesc("cv_kernel", 512, 256))
```

```python
from asmlib import *
from g1b import f2u, Cnt
from p0 import srd, rne_bf16, red32
import math, re
WS_STATS = 0; WS_FL = 0x80000; WS_UT = 0x100000; WS_Y4 = 0x600000; WS_HF = 0x1000000; WS_PX = 0x2800000; WS_TS = 0x3000000
FL_H = 0; FL_Y = 8192; FL_X = 12288; FL_P = 12288 + 256*128; FL_Q = FL_P + 1024; FL_N = FL_Q + 4096; FL_SIZE = FL_N + 256
OOB = 0x80000000
KN = "recurrent_scan__ssm_conv_h3__geglu_ffn__prompt_kernel"
pr = lambda b: f"v[{b}:{b+1}]"

class Gaps:
    def __init__(self, n, cap=2): self.n = n; self.cap = cap; self.g = [[] for _ in range(n)]; self.c = [0]*n; self.l = [0]*n; self.maxl = 1 if cap == 2 else 3
    def add(self, g, fn, w=1, lds=False): self.g[g].append(fn); self.c[g] += w; self.l[g] += lds
    def fits(self, g, w, lds): return self.c[g] + w <= self.cap and not (lds and (self.l[g] >= self.maxl or self.c[g] > self.l[g]))
    def place(self, fn, g0, g1, w=1, lds=False):
        for g in range(g0, g1):
            if self.fits(g, w, lds): self.add(g, fn, w, lds); return g
        return None
    def force(self, fn, g0, g1, w=1, lds=False):
        g = self.place(fn, g0, g1, w, lds)
        if g is None:
            g = min(range(g0, g1), key=lambda x: (self.c[x], x)); self.add(g, fn, w, lds)
        return g
class It:
    def __init__(self, fn, w=1, lds=False): self.fn = fn; self.w = w; self.lds = lds
    def __call__(self): return self.fn()

def gen(name, STAMP=False, SPIN=400000, SIGAT=14, FINE=False, PFEVERY=5, WNT="", KNT="nt", OSC="", FINE1=False, LW=3, XS=1, ROT=2, CAP=2, MIG=True, P0AT=(3,5,7), PROST=False, G1X="", KPS=4, TRK=8, MIGN=7, ROT0=0, FINE2=False, HD=9, PHAT=24, HCHK=50, PFEND=30, PYB=8, YK=3, XSL=1, CQ=6, XST='sc1', XLD='sc1', R=20, WEV=8, HB0=9, NMX=1, L2PF=0, HNT='', W2NT='', L2AT=2, G2X='', VW=2, XAT=44, WARM=True, PAIR1=False, PAIR2=False, HSK=False, KORD=None, RSP=True, TN=8, SSP=0, XBF=True):
    a = A()
    nst = [0]
    def pstamp():
        if PROST: stamp(True)
    def stamp(p=False):
        if STAMP and nst[0] < 9 and (p or not PROST or nst[0] == 0 or nst[0] >= 6):
            i = nst[0]; nst[0] += 1
            a(f"s_memtime s[{66+4*i}:{67+4*i}]\ns_memrealtime s[{68+4*i}:{69+4*i}]")
    VM = Cnt("vmcnt", 63); LG = Cnt("lgkmcnt", 15)
    def wait(vm=None, lg=None):
        w = [x for x in (VM.need(vm) if vm else None, LG.need(lg) if lg else None) if x]
        return ("s_waitcnt " + " ".join(w)) if w else ""
    def vm(tag, txt):
        def f(): VM.issue(tag); return txt
        return It(f, VW + txt.strip().count("\n"))
    def T(txt): return It(lambda: txt, 1 + txt.strip().count("\n") + ("0x" in txt and txt.strip().startswith("v_")))
    def split(txt, tag=None):
        return [vm(tag, x.replace("|", "\n")) if "buffer_" in x else T(x.replace("|", "\n")) for x in txt.strip().split("\n") if x.strip()]
    L = lambda s_: f"L_{name}_{s_}"
    f2 = [0]
    def fs(w=False):
        if not FINE2: return
        if w: a("s_waitcnt lgkmcnt(0)")
        if f2[0]: a(f"v_writelane_b32 v255, s32, {f2[0]-1}")
        a("s_memtime s[32:33]"); f2[0] += 1
    VXO = 208; VWO = 212; VXR = 216; VWR = 218; VIDX = 220; VL = 221; VL16 = 222; VT = 223
    VPS = 224; VPP = 225; VPF = 226; VQA = 228; VKA = 229; VSA = 233; VUA = 234; VWA = 235
    VWO2 = 246; VFL = 250
    Q0 = 92; K0 = 108; V0 = 130; W0 = 146; TT = 168
    a(f"""
    s_cmp_ge_u32 s2, 256
    s_cbranch_scc1 {L('end')}
    s_load_dwordx4 s[28:31], s[0:1], 0      ; q k
    s_load_dwordx4 s[32:35], s[0:1], 56
    s_load_dwordx4 s[60:63], s[0:1], 16     ; v shift_k
    s_load_dwordx4 s[44:47], s[0:1], 88
    s_load_dwordx4 s[52:55], s[0:1], 72
    s_load_dwordx4 s[56:59], s[0:1], 32
    s_branch {L('main')}
    .p2align 12
    {L('main')}:
    """)
    stamp()
    a(f"""
    v_lshrrev_b32 v1, 6, v0
    v_and_b32 v{VL}, 63, v0
    s_and_b32 s3, s2, 7
    v_readfirstlane_b32 s20, v1
    s_lshr_b32 s38, s2, 3                ; slot 0..31
    s_lshr_b32 s39, s3, 1
    s_mul_i32 s39, s39, 63
    s_and_b32 s40, s3, 1
    s_lshl_b32 s41, s40, 5
    s_add_u32 s39, s39, s41
    s_add_u32 s39, s39, s38              ; i
    s_add_u32 s41, s41, s38
    s_cmp_eq_u32 s41, 63
    s_cselect_b32 s64, 1, 0
    s_cselect_b32 s39, 0, s39
    s_mul_i32 s22, s39, 7282
    s_lshr_b32 s22, s22, 16              ; j
    s_mul_i32 s40, s22, 9
    s_sub_u32 s21, s39, s40              ; band
    s_mul_i32 s65, s21, 14
    s_cmp_eq_u32 s21, 8
    s_cselect_b32 s65, 113, s65          ; s65 = first token tile
    v_lshlrev_b32 v{VL16}, 4, v{VL}
    s_getpc_b64 s[16:17]
    {L('here')}:
    s_sub_u32 s16, s16, {L('here')}-{L('main')}
    s_subb_u32 s17, s17, 0
    s_mov_b32 s18, {L('end')}-{L('main')}
    s_mov_b32 s19, 0x20000
    s_lshl_b32 s41, s38, 2
    s_add_u32 s41, s41, s20
    s_mul_i32 s41, s41, {5*128}
    v_min_u32 v10, 4, v{VL}
    v_lshlrev_b32 v10, 7, v10
    buffer_load_dword v{VFL+5}, v10, s[16:19], s41 offen
    v_lshrrev_b32 v10, 1, v{VL}
    v_mul_u32_u24 v10, 7168, v10
    v_and_b32 v11, 1, v{VL}
    v_lshl_add_u32 v10, v11, {9 if PAIR1 else 7}, v10
    v_cmp_gt_u32 vcc, 32, v{VL}
    v_mov_b32 v11, {OOB}
    s_mul_i32 s39, s21, {32*7168}
    v_cndmask_b32 v10, v11, v10, vcc
    s_lshl_b32 s40, s2, 3
    s_lshl_b32 s41, s20, 1
    s_add_u32 s40, s40, s41
    v_lshrrev_b32 v4, 5, v{VL}
    v_add_u32 v4, s40, v4
    v_and_b32 v5, 31, v{VL}
    v_lshlrev_b32 v6, 4, v5
    v_lshl_add_u32 v{VQA}, v4, 11, v6
    v_lshrrev_b32 v0, 3, v{VL}
    v_lshlrev_b32 v0, 11, v0
    v_and_b32 v1, 7, v{VL}
    v_lshrrev_b32 v2, 4, v{VL}
    v_xor_b32 v3, v1, v2
    v_lshl_add_u32 v{VXO}, v3, 4, v0
    v_xor_b32 v3, 4, v3
    v_lshl_add_u32 v{VXO+1}, v3, 4, v0
    v_add_u32 v{VXO+1}, {16384-1024}, v{VXO+1}
    v_add_u32 v{VXO+2}, {2*(16384-1024)}, v{VXO}
    v_add_u32 v{VXO+3}, {2*(16384-1024)}, v{VXO+1}
    s_waitcnt lgkmcnt(0)
    ; SRD W
    s_cmp_lt_u32 s20, 2
    s_cselect_b32 s8, s32, s34
    s_cselect_b32 s9, s33, s35
    {"s_and_b32 s42, s22, 3|s_lshl_b32 s41, s22, 8|s_lshl_b32 s42, s42, 7|s_sub_u32 s41, s41, s42".replace("|", chr(10)) if PAIR1 else "s_lshl_b32 s41, s22, 8"}
    s_and_b32 s42, s20, 1
    s_mul_i32 s42, s42, {16*7168}
    s_add_u32 s41, s41, s42
    s_add_u32 s8, s8, s41
    s_addc_u32 s9, s9, 0
    s_sub_u32 s10, {1024*7168}, s41
    s_mov_b32 s11, 0x20000
    s_cmp_eq_u32 s64, 1
    s_cselect_b32 s10, 0, s10
    s_cmp_lt_u32 s21, {LW+ROT if ROT else ROT0}
    s_cselect_b32 s40, s39, {OOB//2}
    """)
    VM.issue(("C",)); VM.issue(("R",)); a(f"buffer_load_dword v{VPF+1}, v10, s[8:11], s40 offen {WNT}")
    srd(a, 12, 28, 29, 4194304)
    for i in range(4): VM.issue(("Q",)); a(f"buffer_load_dwordx4 v[{Q0+4*i}:{Q0+3+4*i}], v{VQA}, s[12:15], 0 offen offset:{512*i}")
    a(f"""
    s_mov_b32 s39, {OOB//2}
    v_add_u32 v{VPF}, {ROT*32*7168}, v10
    s_mov_b32 s36, s46
    s_mov_b32 s37, s47
    s_lshl_b32 s40, s65, 15
    s_lshl_b32 s41, s20, 17
    s_add_u32 s40, s40, s41
    s_add_u32 s4, s28, s40
    s_addc_u32 s5, s29, 0
    s_cmp_lt_u32 s21, 7
    s_cselect_b32 s6, 0, 32768
    s_add_u32 s6, s6, {224*2048}
    s_sub_u32 s6, s6, s41
    s_mov_b32 s7, 0x20000
    s_cmp_eq_u32 s64, 1
    s_cselect_b32 s6, 0, s6
    s_lshl_b32 s43, s20, 12              ; W lds wave part
    s_lshl_b32 s26, s20, 13
    s_add_u32 s26, s26, 65536            ; x lds write address (slot 0)
    s_mov_b32 s25, 0
    s_mov_b32 s23, 0
    v_mul_u32_u24 v0, 7168, v2
    v_and_b32 v1, 15, v{VL}
    v_lshlrev_b32 v3, 1, v2
    v_xor_b32 v3, v1, v3
    v_and_b32 v1, 7, v3
    v_lshl_add_u32 v0, v1, 4, v0
    v_and_b32 v3, 8, v3
    v_lshl_add_u32 v{VWO}, v3, {6 if PAIR1 else 4}, v0
    v_add_u32 v{VWO+1}, {28672-1024}, v{VWO}
    v_xor_b32 v3, 8, v3
    v_lshl_add_u32 v{VWO+2}, v3, {6 if PAIR1 else 4}, v0
    v_add_u32 v{VWO+2}, {2*(28672-1024)}, v{VWO+2}
    v_add_u32 v{VWO+3}, {28672-1024}, v{VWO+2}
    """)
    XB = 65536
    def dma_w(i, ks):
        VM.issue(("W", ks)); return f"buffer_load_dwordx4 v{VWO+i}, s[8:11], s25 offen offset:{1024*i} {WNT} lds"
    def dma_x(i, sl, half):
        VM.issue(("X", sl)); return f"buffer_load_dwordx4 v{VXO+i}, s[4:7], s23 offen offset:{1024*i} lds"
    KO = list(KORD or range(16)); assert sorted(KO) == list(range(16))
    kphys = lambda k: 2*KO[k >> 1] + (k & 1)
    def xjob(n):
        m = n - XS
        return ((m+5)//2, 0) if m & 1 else (m//2 + 2, 1)
    def w_items(n):
        k = n + LW
        return [T(f"s_add_u32 m0, s43, {(k % 4)*16384}"), T(f"s_mov_b32 s25, {kphys(k)*32*7168}")] + [It(lambda i=i: dma_w(i, k), VW) for i in range(4)]
    def x_items(n):
        sl, half = xjob(n)
        return [T(f"s_add_u32 m0, s26, {(sl % 3)*32768 + half*4096}"), T(f"s_mov_b32 s23, {KO[sl]*128 + half*65536}")] + [It(lambda i=i: dma_x(i, sl, half), VW) for i in range(4)]
    pend = []
    for n in range(-5, 0):
        if n + LW >= 0: pend += w_items(n)
        if xjob(n)[0] >= 0 and n - XS >= -5: pend += x_items(n)
    for _ in range(18): a(pend.pop(0)())
    for _ in range(6): a(pend.pop(0)())
    srd(a, 48, 36, 37, FL_SIZE, WS_FL)
    srd(a, 16, 30, 31, 4194304)
    a(f"""
    s_mov_b32 s30, s28
    s_mov_b32 s31, s29
    s_mov_b32 s32, s44
    s_mov_b32 s33, s45
    s_add_u32 s34, s36, {WS_UT}
    s_addc_u32 s35, s37, 0
    s_lshl_b32 s41, s20, 6
    v_add_u32 v12, s41, v{VL}
    v_lshlrev_b32 v13, 2, v12
    v_cmp_eq_u32 vcc, 0, v12
    s_lshl_b32 s41, s20, 8
    s_add_u32 s41, s41, s2
    v_cndmask_b32 v{VFL+1}, v11, v13, vcc
    s_cmp_eq_u32 s41, 249
    s_cbranch_scc0 {L('nononce')}
    s_mov_b32 s41, {FL_N}
    buffer_load_dword v10, v{VFL+1}, s[48:51], s41 offen sc1
    s_mov_b32 s42, 0x9e3779b1
    s_mov_b32 s12, s32
    s_mov_b32 s13, s33
    s_mov_b32 s14, 256
    s_waitcnt vmcnt(0)
    v_mul_lo_u32 v13, v10, s42
    v_add_u32 v13, 0x7f4a7c15, v13
    v_or_b32 v13, 1, v13
    v_xor_b32 v12, 2, v13
    v_cmp_eq_u32 vcc, v13, v10
    s_nop 1
    v_cndmask_b32 v13, v13, v12, vcc
    buffer_store_dword v13, v{VFL+1}, s[12:15], 0 offen sc1
    buffer_store_dword v13, v{VFL+1}, s[48:51], s41 offen sc1
    s_mov_b32 s14, 4194304
    {L('nononce')}:
    s_mov_b32 s12, s60
    s_mov_b32 s13, s61                    ; s[12:15] = v
    v_lshlrev_b32 v14, 4, v4
    v_cmp_eq_u32 vcc, 0, v5
    s_lshr_b32 s40, s2, 4
    s_lshl_b32 s40, s40, 7
    v_cndmask_b32 v{VSA}, v11, v14, vcc
    s_lshl_b32 s41, s20, 5
    s_add_u32 s40, s40, s41
    s_and_b32 s42, s2, 15                 ; cb
    v_lshrrev_b32 v4, 4, v{VL}
    v_lshl_add_u32 v4, v4, 3, s40         ; s0 = base + 8*(l>>4)
    v_and_b32 v5, 15, v{VL}               ; p: 4 channels
    s_lshl_b32 s41, s42, 7
    v_lshl_add_u32 v6, v5, 3, s41
    v_lshl_add_u32 v{VKA}, v4, 11, v6
    v_subrev_u32 v{VKA+2}, {3*2048}, v{VKA}
    v_subrev_u32 v{VKA+3}, 2048, v{VKA}
    s_lshl_b32 s41, s42, 9
    v_lshl_add_u32 v{VWA}, v5, 5, s41
    s_lshl_b32 s41, s40, 11
    s_lshl_b32 s27, s42, 12
    s_add_u32 s41, s41, s27
    v_lshl_add_u32 v9, v5, 6, s41
    v_and_b32 v6, 48, v{VL}
    v_add_u32 v{VUA}, v6, v9
    ; lds read addresses
    v_and_b32 v10, 15, v{VL}              ; tok
    v_lshrrev_b32 v15, 4, v{VL}           ; g
    v_lshrrev_b32 v12, 1, v10
    v_xor_b32 v12, v12, v15
    v_lshlrev_b32 v12, 4, v12
    v_lshl_add_u32 v12, v10, 7, v12
    v_add_u32 v{VXR}, {XB}, v12
    v_xor_b32 v{VXR+1}, 64, v{VXR}
    v_add_u32 v236, 65536, v{VXR}
    v_add_u32 v237, 65536, v{VXR+1}
    s_mov_b32 s47, 0xffff0000
    v_bfe_u32 v12, v{VL}, 2, 2            ; e
    v_lshl_add_u32 v13, v15, 3, v12       ; row = 8g+e
    v_lshlrev_b32 v13, 8, v13
    v_and_b32 v14, 1, v15
    v_lshl_add_u32 v12, v14, 2, v12       ; sigma
    s_lshl_b32 s41, s20, 1
    v_xor_b32 v12, s41, v12
    v_lshl_add_u32 v13, v12, 5, v13
    v_and_b32 v12, 3, v{VL}
    v_lshl_add_u32 v{VWR}, v12, 3, v13
    v_xor_b32 v{VWR+1}, 32, v{VWR}
    ; smfmac A: ones where ((row>>1)&1) == (g>>1) ; index 0x4444 / 0xeeee by row parity
    v_bfe_u32 v12, v{VL}, 1, 1
    v_lshrrev_b32 v13, 5, v{VL}
    v_cmp_eq_u32 vcc, v12, v13
    v_mov_b32 v12, 0x3f803f80
    v_and_b32 v13, 1, v{VL}
    v_cndmask_b32 v12, 0, v12, vcc
    v_mul_u32_u24 v13, 0xaaaa, v13
    v_add_u32 v{VIDX}, 0x4444, v13
    v_accvgpr_write_b32 a248, v12
    v_accvgpr_write_b32 a249, v12
    v_accvgpr_write_b32 a250, v12
    v_accvgpr_write_b32 a251, v12
    v_mov_b32 v{VT}, 0
    s_lshl_b32 s40, s2, 2
    s_add_u32 s40, s40, {FL_P}
    s_lshl_b32 s41, s42, 8
    s_lshr_b32 s42, s2, 4
    s_lshl_b32 s27, s42, 2
    s_add_u32 s41, s41, s27
    s_add_u32 s41, s41, {FL_Q}
    v_mov_b32 v{VPS}, {OOB}
    v_writelane_b32 v{VPS}, s40, 0
    v_writelane_b32 v{VPS}, s41, 1
    s_lshl_b32 s40, s65, 3
    s_add_u32 s40, s40, {FL_P}
    v_lshl_add_u32 v{VPP}, v{VL}, 2, s40
    s_lshl_b32 s41, s42, 8
    s_add_u32 s41, s41, {FL_Q-128}
    v_lshl_add_u32 v12, v{VL}, 2, s41
    v_cmp_gt_u32 vcc, 32, v{VL}
    s_lshl_b32 s41, s20, 30
    v_or_b32 v{VPS}, s41, v{VPS}
    v_cndmask_b32 v{VPP}, v12, v{VPP}, vcc
    v_or_b32 v{VPP}, s41, v{VPP}
    """)
    for r in range(8): a(f"v_accvgpr_write_b32 a{240+r}, 0")
    p_ld = []
    for r, (reg, off) in enumerate([(2,0),(2,2048),(3,0)]):
        p_ld.append(split(f"buffer_load_dwordx2 v[{K0+2*r}:{K0+2*r+1}], v{VKA+reg}, s[16:19], 0 offen offset:{off} {KNT}", ("KV",)))
    for r in range(8):
        pre_ = f"s_mov_b32 s28, {4096*(r>>1)}\n"
        p_ld.append(split((pre_ if r % 2 == 0 else "") + f"buffer_load_dwordx2 v[{K0+6+2*r}:{K0+7+2*r}], v{VKA}, s[16:19], s28 offen offset:{2048*(r&1)} {KNT}", ("KV",)))
        p_ld.append(split(f"buffer_load_dwordx2 v[{V0+2*r}:{V0+2*r+1}], v{VKA}, s[12:15], s28 offen offset:{2048*(r&1)} {KNT}", ("KV",)))
    for i in range(2):
        pre_ = "s_mov_b32 s12, s62\ns_mov_b32 s13, s63\ns_mov_b32 s14, 8192\n" if i == 0 else ""
        p_ld.append(split(pre_ + f"buffer_load_dwordx4 v[{W0+4*i}:{W0+4*i+3}], v{VWA}, s[12:15], 0 offen offset:{16*i}", ("KV",)))
    def red(r, t):
        o = []
        for ctl in ("quad_perm:[1,0,3,2]", "quad_perm:[2,3,0,1]", "row_half_mirror", "row_mirror"):
            o.append(f"s_nop 1\nv_add_f32_dpp v{r}, v{r}, v{r} {ctl} row_mask:0xf bank_mask:0xf")
        o += [f"v_mov_b32 v{t}, v{r}", f"s_nop 1\nv_permlane16_swap_b32 v{r}, v{t}", f"s_nop 1\nv_add_f32 v{r}, v{r}, v{t}"]
        return o
    rne = lambda d, s_: [f"v_cvt_pk_bf16_f32 v{d}, v{s_}, v{s_}", f"v_and_b32 v{d}, s47, v{d}"]
    M_ = TT + 32; S_ = TT + 36
    st = []
    for d in range(16): st += [f"v_lshlrev_b32 v{TT+2*d}, 16, v{Q0+d}", f"v_and_b32 v{TT+2*d+1}, s47, v{Q0+d}"]
    st += [f"v_add_f32 v{M_}, v{TT}, v{TT+1}", f"v_add_f32 v{M_+1}, v{TT+2}, v{TT+3}"]
    for d in range(4, 32): st.append(f"v_add_f32 v{M_+(d&1)}, v{M_+(d&1)}, v{TT+d}")
    st += [f"v_add_f32 v{M_}, v{M_}, v{M_+1}"] + red(M_, M_+1) + [f"v_mul_f32 v{M_}, {f2u(1/1024.)}, v{M_}"]
    for d in range(32): st.append(f"v_sub_f32 v{TT+d}, v{TT+d}, v{M_}")
    st += [f"v_mul_f32 v{S_}, v{TT}, v{TT}", f"v_mul_f32 v{S_+1}, v{TT+1}, v{TT+1}"]
    for d in range(2, 32): st.append(f"v_fmac_f32 v{S_+(d&1)}, v{TT+d}, v{TT+d}")
    st += [f"v_add_f32 v{S_}, v{S_}, v{S_+1}"] + red(S_, S_+1) + [f"v_mul_f32 v{S_}, {f2u(1/1024.)}, v{S_}"]
    st += rne(M_, M_) + rne(S_, S_) + [f"v_add_f32 v{S_}, {f2u(1e-5)}, v{S_}"] + rne(S_, S_) + [f"v_sqrt_f32 v{S_}, v{S_}\ns_nop 0"] + rne(S_, S_)
    C0 = -2*0.7978845608028654*math.log2(math.e); C1 = C0*0.044715
    st += [f"v_rcp_f32 v{TT}, v{S_}", f"v_mul_f32 v{M_+3}, v{S_}, v{S_}", f"v_mul_f32 v{M_+1}, {f2u(C0)}, v{TT}", f"v_mul_f32 v{TT+1}, v{TT}, v{TT}",
           f"v_mul_f32 v{TT}, {f2u(C1)}, v{TT}", f"v_mul_f32 v{M_+2}, v{TT}, v{TT+1}"]
    p_st = [It(lambda: wait(vm=[("Q",)]))] + [T(x) for x in st]
    p_kv = [It(lambda: wait(vm=[("KV",)])),
            ] + split(f"s_mov_b32 s12, s36\ns_mov_b32 s13, s37\ns_mov_b32 s14, 32768\nbuffer_store_dwordx4 v[{M_}:{M_+3}], v{VSA}, s[12:15], 0 offen sc1\ns_mov_b32 s16, s34\ns_mov_b32 s17, s35", ("PS",))
    KX = 154; WX = 176; VX = 184; RX = 192
    for c in range(2):
        o = []
        for e in range(2):
            for h in range(2): o += [f"v_lshlrev_b32 v{WX+4*e+2*h}, 16, v{W0+4*c+2*e+h}", f"v_and_b32 v{WX+4*e+2*h+1}, s47, v{W0+4*c+2*e+h}"]
        for r in range(11): o += [f"v_lshlrev_b32 v{KX+2*r}, 16, v{K0+2*r+c}", f"v_and_b32 v{KX+2*r+1}, s47, v{K0+2*r+c}"]
        for hf_ in range(2):
            for t in range(4): o += [f"v_lshlrev_b32 v{VX+2*t}, 16, v{V0+2*(4*hf_+t)+c}", f"v_and_b32 v{VX+2*t+1}, s47, v{V0+2*(4*hf_+t)+c}"]
            for t in range(4):
                for e in range(2): o.append(f"v_mul_f32 v{RX+2*t+e}, v{KX+2*(4*hf_+t)+e}, v{WX+4*e+3}")
            for j in (2, 1, 0):
                for t in range(4):
                    for e in range(2): o.append(f"v_fmac_f32 v{RX+2*t+e}, v{KX+2*(4*hf_+t+3-j)+e}, v{WX+4*e+j}")
            for t in range(4):
                for e in range(2): o.append(f"v_mul_f32 v{RX+2*t+e}, v{RX+2*t+e}, v{VX+2*t+e}")
            for e in range(2):
                ch = 2*c + e
                o += [f"v_cvt_pk_bf16_f32 v{Q0+4*ch+2*hf_}, v{RX+e}, v{RX+2+e}", f"v_cvt_pk_bf16_f32 v{Q0+4*ch+2*hf_+1}, v{RX+4+e}, v{RX+6+e}"]
        p_kv += [T(x) for x in o]
        for e in range(2):
            ch = 2*c + e
            p_kv += [vm(("PS",), f"buffer_store_dwordx4 v[{Q0+4*ch}:{Q0+4*ch+3}], v{VUA}, s[16:19], 0 offen offset:{1024*ch} sc1")]
    p_kv += split(f"s_mov_b32 s12, s32\ns_mov_b32 s13, s33\ns_mov_b32 s14, 256\nbuffer_load_dword v{VFL+2}, v{VT}, s[12:15], 0 offen", ("N",))
    def nonce_chk(lb):
        return f"""
        s_mov_b32 s41, 0
        {L(lb)}:
        v_readfirstlane_b32 s44, v{VFL+2}
        s_add_u32 s41, s41, 1
        s_nop 3
        s_cmp_lg_u32 s44, 0
        s_cbranch_scc1 {L(lb)}_ok
        s_cmp_gt_u32 s41, {SPIN}
        s_cbranch_scc1 {L(lb)}_ok
        s_sleep 2
        buffer_load_dword v{VFL+2}, v{VT}, s[12:15], 0 offen sc1
        s_waitcnt vmcnt(0)
        s_branch {L(lb)}
        {L(lb)}_ok:
        """
    where = {u: ("a", 16*u) for u in range(15)}
    fr = {"x": ("v", 0), "w": ("v", 60)}
    cur = {}
    def acc(u, f): k, b = where[u]; return f"{k}[{b+4*f}:{b+4*f+3}]"
    def xf(n, u): k, b = cur[("x", n)]; return f"{k}[{b+4*u}:{b+4*u+3}]"
    def wf(n, f, h=None, w=4):
        k, b = cur[("w", n)]; b += 16*(n&1) + 4*f
        return f"{k}[{b}:{b+w-1}]" if h is None else f"{k}[{b+2*h}:{b+2*h+1}]"
    def rd_w(n, f, h):
        cur.setdefault(("w", n), fr["w"])
        LG.issue(("w", n)); return f"ds_read_b64_tr_b16 {wf(n,f,h)}, v{VWR+(f&1)} offset:{(n % 4)*16384 + (f>>1)*8192 + h*1024}"
    def rd_x(n, u):
        cur.setdefault(("x", n), fr["x"])
        LG.issue(("x", n, u)); sl = (n//2) % 3; return f"ds_read_b128 {xf(n,u)}, v{(236 if sl == 2 else VXR)+(n&1)} offset:{2048*u + (32768 if sl == 1 else 0)}"
    if WARM:
        a(wait(vm=[("Q",)]))
        a(f"""
        s_mov_b64 exec, 0
        s_cmp_eq_u32 s20, 0
        s_cbranch_scc1 {L('w')}0
        s_cmp_eq_u32 s20, 1
        s_cbranch_scc1 {L('w')}1
        s_cmp_eq_u32 s20, 2
        s_cbranch_scc1 {L('w')}2
        s_branch {L('w')}3
        {L('wback')}:
        s_mov_b64 exec, -1
        """)
    a(wait(vm=[("W", 0), ("X", 0)]) + "\ns_barrier")
    stamp()
    if FINE1: a("s_memtime s[28:29]".replace("28:29", "42:43") if False else "")
    for f in range(4): a(rd_w(0, f, 0)); a(rd_w(0, f, 1))
    for u in range(15): a(rd_x(0, u))
    a("s_waitcnt lgkmcnt(0)"); LG.drain()
    lbl = [0]
    def step(n, extra=(), stream=None, mig=()):
        first = n == 0; last = n == 31
        seq = [("m", m >> 2, (m & 3) if (m >> 2) % 2 == 0 else 3 - (m & 3)) for m in range(60)]
        for pos, f in (((46, 2), (34, 0)) if not last else ((4, 2), (2, 0))): seq.insert(pos, ("s", f))
        G = lambda m: [i for i, e in enumerate(seq) if e[0] == "m"][m]
        gp = Gaps(62)
        BG = G(7); END = G(54)
        for g, fn in extra:
            if g < 0: gp.add(BG, fn)
        def dobar():
            LG.drain()
            assert last or (VM.ops.count(("W", n+1)) == 4 and VM.ops.count(("X", (n+1)//2)) == 8), n
            w = VM.need([("W", n+1)] + ([("X", (n+1)//2)] if n & 1 else []))
            fine = ((f"\nv_writelane_b32 v239, s40, {n-1}" if n else "") + "\ns_memtime s[40:41]") if FINE1 and n < 15 else ""
            if FINE1 and n >= 15: fine = (f"\nv_writelane_b32 v239, s{40 if n == 15 else 62}, {n-1}") + "\ns_memtime s[62:63]"
            if FINE1 and last: fine += "\ns_nop 0\nv_accvgpr_write_b32 a252, v239"
            return f"s_waitcnt {w+' ' if w else ''}lgkmcnt(0)\ns_barrier" + fine
        gp.add(BG, dobar, 2)
        if not last:
            gp.add(G(8), lambda: rd_x(n+1, 0), lds=True); gp.add(G(9), lambda: rd_x(n+1, 1), lds=True)
            for f in range(4):
                for h in range(2): gp.add(G(10 + 4*f + 2*h), lambda f=f, h=h: rd_w(n+1, f, h), lds=True)
            for u in range(2, 14): gp.add(G(4*u+3), lambda u=u: rd_x(n+1, u), lds=True)
        gp.add(END, lambda: "s_cmp_lt_u32 s21, 7", 2)
        def ordered(its, starts, g1=END):
            g = 0
            for it, st_ in zip(its, starts): g = gp.force(it, min(max(g, st_), g1-1), g1, it.w, it.lds)
        if pend:
            if n + LW < 32: pend.extend(w_items(n))
            pend.extend(x_items(n))
            its = [pend.pop(0) for _ in range(min(len(pend), 18))]
            ordered(its, [BG + 1 + (i*44)//len(its) for i in range(len(its))])
        else:
            its = []; sts = []
            if n + LW < 32: its += w_items(n); sts += [BG+1, BG+2, G(13), G(17), G(21), G(25)]
            if xjob(n)[0] < 16: its += x_items(n); sts += [G(26), G(27), G(29), G(36), G(42), G(48)]
            ordered(its, sts)
        if ROT and n + LW + ROT < 32:
            k = n + LW + ROT
            ordered(split(f"s_cmp_eq_u32 s21, {k % 9}|s_cselect_b32 s42, {(k-ROT)*32*7168}, s39\nbuffer_load_dword v{VPF+1}, v{VPF}, s[8:11], s42 offen {WNT}", ("R",)), [0, 2])
        ex = sorted([(g, i, fn) for i, (g, fn) in enumerate(extra) if g >= 0], key=lambda x: x[:2])
        ordered([fn for g, i, fn in ex], [G(g) for g, i, fn in ex])
        for u, dst, g0 in mig:
            src = where[u][1]; post = g0 >= 4*u + 12
            assert post or g0 + 60 >= 4*u + 12
            ordered([T(f"v_accvgpr_read_b32 v{dst+r}, a{src+r}") for r in range(16)], [G(g0)]*16, END if post else G(4*u - 3))
            if not post: where[u] = ("v", dst)
        g = 0
        while stream:
            it = stream[0]
            g = gp.place(it, g, END, min(it.w, 2), it.lds)
            if g is None: break
            stream.pop(0)
        over[0] += sum(max(0, c - 2) for c in gp.c)
        for i, e in enumerate(seq):
            if e[0] == "s":
                a(f"v_smfmac_f32_16x16x64_bf16 a[{240+2*e[1]}:{243+2*e[1]}], a[248:251], {wf(n,e[1],w=8)}, v{VIDX}")
            else:
                _, u, f = e; m = 4*u + (f if u % 2 == 0 else 3 - f)
                if m % 8 == 0:
                    a(wait(lg=[("x", n, u), ("x", n, min(u+1, 14))] + ([("w", n)] if m == 0 else [])))
                if m == 56:
                    lbl[0] += 1
                    a(f"s_cbranch_scc1 {L('sk')}{lbl[0]}")
                c = "0" if first else acc(u, f)
                a(f"v_mfma_f32_16x16x32_bf16 {acc(u,f)}, {wf(n,f)}, {xf(n,u)}, {c}")
                if m == 59:
                    a(f"{L('sk')}{lbl[0]}:")
                    if not last: a(rd_x(n+1, 14))
            for fn in gp.g[i]: a(fn())
        for u, dst, g0 in mig: where[u] = ("v", dst)
    over = [0]
    def spin(lb, reg, lanes, soff, mask, tmp="s24", sleep=4):
        lo, hi = mask & 0xffffffff, mask >> 32
        return f"""
        s_cmp_eq_u32 s20, 0
        s_cbranch_scc0 {L(lb)}_ok
        s_mov_b32 {tmp}, 0
        {L(lb)}:
        v_cmp_eq_u32 vcc, s44, v{reg}
        s_add_u32 {tmp}, {tmp}, 1
        s_nop 3
        s_andn2_b32 vcc_lo, {lo}, vcc_lo
        s_andn2_b32 vcc_hi, {hi}, vcc_hi
        s_cmp_eq_u64 vcc, 0
        s_cbranch_scc1 {L(lb)}_ok
        s_cmp_gt_u32 {tmp}, {SPIN}
        s_cbranch_scc1 {L(lb)}_ok
        s_sleep {sleep}
        buffer_load_dword v{reg}, v{lanes}, s[48:51], {soff} offen sc1
        s_waitcnt vmcnt(0)
        s_branch {L(lb)}
        {L(lb)}_ok:
        """
    PMASK = 0x0000ffff3fffffff
    CVB = 114688; HB = 448; UB = HB + 4096 + 64; WSZ = 8704; STB = 98304
    st_setup = f"""
        s_mov_b32 s12, s36
        s_mov_b32 s13, s37
        s_mov_b32 s14, 32768
        s_lshl_b32 s40, s65, 8
        s_lshl_b32 s29, s20, 12
        s_add_u32 m0, s29, {STB}"""
    pf_setup = f"""
        s_mov_b32 s16, s52
        s_mov_b32 s17, s53
        s_mov_b32 s18, 7340032
        s_lshl_b32 s61, s2, 2
        s_add_u32 s61, s61, s20                 ; channel d
        s_mul_i32 s28, s61, 7168
        v_min_u32 v{VFL+4}, 55, v{VL}
        v_lshlrev_b32 v{VFL+4}, 7, v{VFL+4}"""
    pf = f"buffer_load_dword v{VFL+5}, v{VFL+4}, s[16:19], s28 offen"
    pf2 = f"""
        s_mov_b32 s16, s56
        s_mov_b32 s17, s57
        s_mov_b32 s18, 4194304
        s_lshl_b32 s28, s61, 12
        v_min_u32 v{VFL+4}, 31, v{VL}
        v_lshlrev_b32 v{VFL+4}, 7, v{VFL+4}
        buffer_load_dword v{VFL+5}, v{VFL+4}, s[16:19], s28 offen"""
    cv_setup = f"""
        s_mul_i32 s60, s20, {WSZ}
        s_add_u32 s60, s60, {CVB}
        s_lshl_b32 s28, s61, 12
        s_add_u32 m0, s60, {HB}"""
    cv_h = lambda i: f"buffer_load_dwordx4 v{VL16}, s[16:19], s28 offen offset:{1024*i} lds"
    cv_setup2 = f"""
        s_mov_b32 s16, s34
        s_mov_b32 s17, s35
        s_add_u32 m0, s60, {UB}
        s_lshr_b32 s28, s2, 4
        s_lshl_b32 s28, s28, 12
        s_and_b32 s41, s2, 15
        s_lshl_b32 s41, s41, 6
        s_add_u32 s28, s28, s41
        s_lshl_b32 s41, s20, 10
        s_add_u32 s28, s28, s41
        v_lshrrev_b32 v{VFL+4}, 2, v{VL}
        v_lshlrev_b32 v{VFL+4}, 16, v{VFL+4}
        v_and_b32 v243, 48, v{VL16}
        v_add_u32 v{VFL+4}, v{VFL+4}, v243"""
    cv_u = lambda i: f"buffer_load_dwordx4 v{VFL+4}, s[16:19], s28 offen offset:{1024*i} lds\ns_add_u32 s28, s28, {16*65536-1024}"
    cv_setup3 = f"""
        s_mov_b32 s16, s58
        s_mov_b32 s17, s59
        s_mov_b32 s18, 2048
        s_lshl_b32 s28, s61, 1
        v_mov_b32 v{VFL+3}, 0"""
    cv_d = f"buffer_load_ushort v{VFL+3}, v{VFL+3}, s[16:19], s28 offen"
    zp = [f"v_mov_b32 v240, 0\nv_lshl_add_u32 v241, v{VL}, 2, s60", f"v_min_u32 v242, 47, v{VL}\nv_lshl_add_u32 v242, v242, 2, s60",
          f"v_and_b32 v243, 15, v{VL}\nv_lshl_add_u32 v243, v243, 2, s60",
          "ds_write_b32 v241, v240", "ds_write_b32 v242, v240 offset:256", f"ds_write_b32 v243, v240 offset:{UB-64}"]
    def lg(txt):
        def f(): LG.issue(("z",)); return txt
        return It(f, 1, True)
    CS = 224; P = 208; O0 = 240; TA = 92; SR = 80
    NT = 8; RB = 256; UNIT = 8192; RP = 14; NSTEP = 56
    HS_ = 3072 if HSK else 2048; VHO = 236
    ACC = 64; DU = 0; TMP = 32; VCA = 204; VCB = 205; VCU = 206; VCD = 207
    cva = f"""
    v_bfe_u32 v244, v{VL}, 4, 1
    v_lshlrev_b32 v244, 2, v244
    v_and_b32 v245, 3, v{VL}
    v_add_u32 v244, v244, v245
    v_lshrrev_b32 v246, 5, v{VL}
    v_sub_u32 v244, v244, v246
    v_lshlrev_b32 v244, 6, v244
    v_bfe_u32 v247, v{VL}, 2, 2
    v_lshlrev_b32 v{VCD}, 3, v247
    v_sub_u32 v244, v244, v{VCD}
    s_add_u32 s25, s60, {HB-328-32}
    v_add_u32 v{VCA}, s25, v244
    v_bfe_u32 v244, v{VL}, 4, 1
    v_lshlrev_b32 v244, 5, v244
    v_add_u32 v245, v245, v247
    v_lshl_add_u32 v244, v245, 3, v244
    v_lshl_add_u32 v244, v246, 6, v244
    s_add_u32 s25, s60, {UB-56}
    v_add_u32 v{VCB}, s25, v244
    v_lshl_add_u32 v{VCU}, v{VL}, 1, s60""".strip().split("\n")
    def af(s_, q, h=None): b = 32*s_ + 4*q; return f"a[{b}:{b+3}]" if h is None else f"a[{b+2*h}:{b+2*h+1}]"
    def bf(s_, p, h=None): b = 64 + 32*s_ + 4*p; return f"a[{b}:{b+3}]" if h is None else f"a[{b+2*h}:{b+2*h+1}]"
    def reads(r):
        T_ = []
        for i in range(8):
            m = 4*i - r; e = 4*i + r
            T_.append(f"ds_read_b64_tr_b16 {af(r&1,i,0)}, v{VCA} offset:{128*(m+3)+32}")
            T_.append(f"ds_read_b64_tr_b16 {af(r&1,i,1)}, v{VCA} offset:{128*(m+3)}")
            T_.append(f"ds_read_b64_tr_b16 {bf(r&1,i,0)}, v{VCB} offset:{128*e}")
            T_.append(f"ds_read_b64_tr_b16 {bf(r&1,i,1)}, v{VCB} offset:{128*e+32}")
        return T_
    eh_s = f"""
        s_add_u32 s12, s36, {WS_HF}|s_addc_u32 s13, s37, 0
        s_cmp_eq_u32 s64, 1|s_cselect_b32 s14, 0, {64*112*HS_}
        s_lshl_b32 s41, s22, 2
        s_add_u32 s41, s41, s20
        {"s_and_b32 s40, s22, 3@s_lshl_b32 s40, s40, 1@s_sub_u32 s41, s41, s40@s_lshr_b32 s40, s20, 1@s_mul_i32 s40, s40, 6@s_add_u32 s41, s41, s40".replace("@", chr(10)) if PAIR1 else ""}
        s_lshr_b32 s40, s65, 1
        s_mul_i32 s40, s40, 112
        s_add_u32 s41, s41, s40
        s_mul_i32 s41, s41, {HS_}
        s_and_b32 s40, s65, 1|s_cselect_b32 s46, {112*HS_}, 0
        s_sub_u32 s47, {112*HS_}, s46
        s_sub_u32 s41, s41, s47
        s_add_u32 s29, s29, {STB}""".strip().split("\n")
    hoff = [f"v_cmp_lt_u32 vcc, 23, v{VL}", f"v_mov_b32 v{VHO}, v{VL16}", f"v_add_u32 v{VHO+1}, {128 if HSK else 0}, v{VL16}", f"v_cndmask_b32 v{VHO}, v{VHO}, v{VHO+1}, vcc",
            f"v_cmp_lt_u32 vcc, 15, v{VL}", f"v_add_u32 v{VHO+1}, {1152 if HSK else 1024}, v{VL16}", f"v_add_u32 v241, {1280 if HSK else 1024}, v{VL16}", f"v_cndmask_b32 v{VHO+1}, v{VHO+1}, v241, vcc"]
    eh_v = [f"v_and_b32 v240, 48, v{VL}", "v_lshrrev_b32 v241, 2, v240", "v_add_lshl_u32 v240, v240, v241, 2",
            f"v_and_b32 v{VT}, 15, v{VL}", f"v_lshl_add_u32 v{VT}, v{VT}, 4, s29",
            f"v_cmp_eq_u32 vcc, s40, v{VFL+3}x", f"s_nop 1", f"v_cndmask_b32 v216, v{VHO+1}, v{VHO}, vcc", f"v_cndmask_b32 v217, v{VHO}, v{VHO+1}, vcc"]
    eh_v = [x.replace(f"v{VFL+3}x", "v218") for x in ["v_mov_b32 v218, 0"] + eh_v]
    eh_c = [f"v_accvgpr_read_b32 v{208+r}, a{240+r}" for r in range(8)] + [f"v_add_f32 v{208+2*f}, v{208+2*f}, v{209+2*f}" for f in range(4)]
    eh_p = [f"ds_bpermute_b32 v{CS+4*f+r}, v240, v{208+2*f} offset:{4*r}" for f in range(4) for r in range(4)]
    NL, NS_, NK_ = P0AT
    stream = []; sig_at = None
    migs = {}
    if MIG:
        migs = {19: [(0, 92, 12), (4, 108, 28)], 20: [(1, 124, 16), (5, 140, 32)], 21: [(2, 156, 20), (6, 172, 36)], 22: [(3, 188, 24)],
                24: [(11, 0, 12), (7, 16, 40)], 25: [(10, 32, 12), (8, 48, 44)], 26: [(9, 64, 12)]}
        if MIGN == 7:
            migs = {22: [(0, 92, 12)], 23: [(1, 108, 16)], 24: [(2, 124, 20)], 25: [(3, 140, 24)], 26: [(4, 156, 28)], 27: [(5, 172, 32)], 28: [(6, 188, 36)]}
    at = lambda g, its: [(g, it) for it in its]
    for n in range(32):
        ex = []
        NLS = -(-21 // KPS)
        if NL <= n < NL + NLS:
            its = p_ld[KPS*(n-NL):KPS*(n-NL)+KPS]
            for g, it in zip({7: (15, 23, 27, 33, 39, 45, 50), 6: (15, 23, 33, 39, 45, 50), 4: (15, 33, 39, 50), 3: (15, 33, 50), 2: (33, 50), 1: (50,)}[KPS], its): ex += at(g, it)
        if n == NS_: stream += p_st
        if n == max(NK_, NL + NLS + 1): stream += p_kv
        if sig_at is None and n > NK_ and not stream and ("N",) in VM.ops: sig_at = n + 2
        if n == sig_at:
            ex += [(-1, lambda: wait(vm=[("PS",), ("N",)])), (8, It(lambda: nonce_chk("nc"), 2)), (12, vm(("F",), f"buffer_store_dword v{VFL+2}, v{VPS}, s[48:51], 0 offen sc1"))]
            assert n <= (18 if MIG and MIGN == 12 else 21), n
        nw = 56 // TRK; ns = 32 // TRK; t0 = 29 - nw - ns
        assert sig_at is None or sig_at - 1 <= t0 or n < sig_at, (sig_at, t0)
        if n == t0: ex += at(30, split(pf_setup.replace("55", str(TRK-1))))
        if n == t0 + nw: ex += at(40, split("s_mov_b32 s16, s56\ns_mov_b32 s17, s57\ns_mov_b32 s18, 4194304\ns_lshl_b32 s28, s61, 12"))
        if t0 <= n < t0 + nw + ns: ex += at(50, split(pf + f"\ns_add_u32 s28, s28, {128*TRK}", ("PF",)))
        if n == 23: ex += [(43, vm(("PC",), f"buffer_load_dword v{VT}, v{VPP}, s[48:51], 0 offen sc1"))]
        if n == 26: ex += [(-1, lambda: wait(vm=[("PC",)]) + "\n" + spin("pc", VT, VPP, "0", PMASK, tmp="s41"))]
        if n == 28: ex += at(27, split(st_setup)) + [(33+4*i, vm(("ST",), f"buffer_load_dwordx4 v{VL16}, s[12:15], s40 offen offset:{1024*i} lds")) for i in range(4)]
        if n == 29: ex += at(9, split(cv_setup)) + [(13+8*i, vm(("CV",), cv_h(i))) for i in range(4)] + at(40, split("\n".join(zp[:3]))) + at(46, [lg(x) for x in zp[3:]])
        if n == 30:
            ex += at(0, split(cv_setup2))
            for i in range(4): ex += at(17+8*i, split(cv_u(i), ("CV",)))
            ex += at(44, split(cv_setup3 + "\n" + cv_d, ("CV",)))
            stream += split("\n".join(cva))
        if n == 31:
            ex += at(0, split("\n".join(hoff))) + at(8, split("\n".join(eh_s))) + at(16, split("\n".join(eh_v + eh_c))) + at(30, [lg(x) for x in eh_p])
        if MIG and MIGN == 12 and n == 23: fr["x"] = ("a", 0); fr["w"] = ("a", 64)
        step(n, extra=ex, stream=stream, mig=migs.get(n, ()))
    print("gemm1: sig_at", sig_at, "over", over[0])
    assert not stream and sig_at
    stamp()
    a(wait(vm=[("ST",)]))
    a(f"ds_read_b128 v[{SR}:{SR+3}], v{VT}")
    LG.drain()
    fs(True)
    def epi(u):
        O = O0 + 4*(u & 1); MS = SR + 4*(u & 1)
        if where[u][0] == "v": B = where[u][1]
        else:
            B = TA
            for r in range(16): a(f"v_accvgpr_read_b32 v{B+r}, a{where[u][1]+r}")
        a("s_waitcnt lgkmcnt(0)")
        if u < 14: fs()
        if u < 14: a(f"ds_read_b128 v[{SR+4*((u+1)&1)}:{SR+3+4*((u+1)&1)}], v{VT} offset:{256*(u+1)}")
        if RSP and 9 <= u < 13:
            a(wait(vm=[("CV",)]))
            for x in reads(0)[8*(u-9):8*(u-8)]: a(x)
        G = [B+2*p for p in range(4)]; U = [B+8+2*p for p in range(4)]
        for p in range(8): a(f"v_pk_fma_f32 {pr(B+2*p)}, {pr(CS+2*p)}, {pr(MS)}, {pr(B+2*p)} op_sel_hi:[1,0,1] neg_lo:[0,1,0] neg_hi:[0,1,0]")
        for p in range(4): a(f"v_pk_mul_f32 {pr(P+2*p)}, {pr(G[p])}, {pr(G[p])}")
        for p in range(4): a(f"v_pk_fma_f32 {pr(P+2*p)}, {pr(P+2*p)}, {pr(MS+2)}, {pr(MS)} op_sel:[0,0,1] op_sel_hi:[1,0,1]")
        for p in range(4): a(f"v_pk_mul_f32 {pr(P+2*p)}, {pr(P+2*p)}, {pr(G[p])}")
        for r in range(8): a(f"v_exp_f32 v{P+r}, v{P+r}")
        for p in range(4): a(f"v_pk_mul_f32 {pr(G[p])}, {pr(G[p])}, {pr(U[p])}")
        for p in range(4): a(f"v_pk_fma_f32 {pr(P+2*p)}, {pr(P+2*p)}, {pr(MS+2)}, {pr(MS+2)} op_sel:[0,1,1] op_sel_hi:[1,1,1]")
        for r in range(8): a(f"v_rcp_f32 v{P+r}, v{P+r}")
        a(f"s_add_u32 s41, s41, {'s46' if u & 1 else 's47'}")
        for p in range(4): a(f"v_pk_mul_f32 {pr(G[p])}, {pr(G[p])}, {pr(P+2*p)}")
        for p in range(4): a(f"v_cvt_pk_bf16_f32 v{O+p}, v{G[p]}, v{G[p]+1}")
        a(f"buffer_store_dwordx4 v[{O}:{O+3}], v{216+(u&1)}, s[12:15], s41 offen sc1")
    assert where[0] == ("v", TA) or not MIG
    for u in range(14):
        if u == 13:
            assert MIG
            if not RSP:
                a(wait(vm=[("CV",)]))
                for x in reads(0): a(x)
        if L2PF and u == L2AT - 1:
            a(f"""
            s_mov_b32 s16, s52
            s_mov_b32 s17, s53
            s_mov_b32 s18, 7340032
            s_lshl_b32 s24, s38, 2
            s_add_u32 s24, s24, s20
            s_lshr_b32 s25, s24, 6
            s_and_b32 s24, s24, 63
            s_mul_i32 s25, s25, 1792
            s_mul_i32 s24, s24, 7
            s_add_u32 s24, s24, s25
            s_add_u32 s24, s24, 448
            s_lshl_b32 s24, s24, 11
            s_and_b32 s25, s3, 1
            s_lshl_b32 s25, s25, 10
            s_add_u32 s24, s24, s25
            v_min_u32 v{VFL+4}, 55, v{VL}
            v_lshrrev_b32 v{VFL+5}, 3, v{VFL+4}
            v_and_b32 v{VFL+4}, 7, v{VFL+4}
            v_lshlrev_b32 v{VFL+4}, 7, v{VFL+4}
            v_lshl_add_u32 v{VFL+4}, v{VFL+5}, 11, v{VFL+4}
            """)
        if L2PF and u >= L2AT and (u - L2AT) % 3 == 0 and (u - L2AT)//3 < L2PF:
            VM.issue(("PF",)); a(f"buffer_load_dword v{VFL+5}, v{VFL+4}, s[16:19], s24 offen\ns_add_u32 s24, s24, {448*2048}")
        epi(u); VM.issue(("HS",))
    a(f"s_cmp_lt_u32 s21, 7\ns_cbranch_scc1 {L('conv')}")
    epi(14)
    a(f"{L('conv')}:")
    fs(True)
    stamp()
    VWR2 = 196; T0_ = 36
    g2s = f"""
    s_lshr_b32 s61, s3, 1
    s_lshl_b32 s61, s61, 2
    s_and_b32 s39, s38, 3
    s_add_u32 s61, s61, s39              ; mt
    s_and_b32 s62, s3, 1
    s_lshl_b32 s62, s62, 2
    s_bfe_u32 s39, s38, 0x20002
    s_add_u32 s62, s62, s39              ; nt
    s_lshr_b32 s63, s38, 4               ; kh
    s_lshl_b32 s41, s20, 14
    {'s_and_b32 s39, s62, 3@s_lshl_b32 s42, s62, 8@s_lshl_b32 s39, s39, 7@s_sub_u32 s42, s42, s39'.replace('@', chr(10)) if PAIR2 else 's_lshl_b32 s42, s62, 8'}
    s_lshr_b32 s35, s42, 1
    s_add_u32 s41, s41, s42
    s_mul_i32 s43, s63, {NSTEP*32*2048}
    s_add_u32 s43, s43, s41
    s_add_u32 s8, s52, s43|s_addc_u32 s9, s53, 0
    s_sub_u32 s10, {NSTEP*32*2048}, s41
    s_lshl_b32 s45, s20, 12""".strip().replace("|", "@").split("\n")
    g2s = [x.replace("@", "\n") for x in g2s]
    g2h = f"""
    s_lshl_b32 s40, s61, 2
    s_add_u32 s40, s40, s20              ; tokgroup
    s_mul_i32 s41, s40, 112
    s_mul_i32 s42, s63, {NSTEP}
    s_add_u32 s41, s41, s42
    s_mul_i32 s41, s41, {HS_}
    s_add_u32 s41, s41, {WS_HF}
    s_add_u32 s4, s36, s41|s_addc_u32 s5, s37, 0
    s_mov_b32 s6, {NSTEP*HS_}""".strip().split("\n")
    g2h = [x.replace("|", "\n") for x in g2h] + [x.replace(f"v{VHO+1}", "v233").replace(f"v{VHO}", "v232").replace("v241", f"v{T0_}") for x in hoff]
    def dma2(n):
        p = n >> 1
        head = [T(f"s_add_u32 m0, s45, {(p % (R//2))*2*UNIT}"), T(f"s_mov_b32 s26, {p*131072}")] if n % 2 == 0 else []
        return head + [vm(("W2", n), f"buffer_load_dwordx4 v{VWO2+i}, s[8:11], s26 offen offset:{1024*i} {W2NT} lds") for i in (2*(n&1), 2*(n&1)+1)]
    du = [f"ds_read_u16 v{DU+g}, v{VCU} offset:{UB+128*g}" for g in range(32)]
    du2 = [f"v_lshlrev_b32 v{VCD}, 16, v{VFL+3}"]
    for g in range(32): du2 += [f"v_lshlrev_b32 v{DU+g}, 16, v{DU+g}", f"v_mul_f32 v{DU+g}, v{VCD}, v{DU+g}"]
    g2addr = [f"v_bfe_u32 v{T0_}, v{VL}, 2, 3", f"v_lshlrev_b32 v{T0_+1}, 8, v{T0_}", f"v_lshrrev_b32 v{T0_+2}, 5, v{VL}", f"v_lshl_add_u32 v{T0_+1}, v{T0_+2}, 12, v{T0_+1}",
              f"v_and_b32 v{T0_+2}, 3, v{VL}", f"v_lshl_add_u32 v{T0_+1}, v{T0_+2}, 3, v{T0_+1}",
              "s_lshl_b32 s24, s63, 2", f"v_xor_b32 v{T0_}, s24, v{T0_}", f"v_lshl_add_u32 v{VWR2}, v{T0_}, 5, v{T0_+1}"] \
             + [f"v_xor_b32 v{VWR2+ft}, {ft<<5}, v{VWR2}" for ft in range(1, 8)] + ["s_mov_b32 s24, 65536"] \
             + [f"v_add_u32 v{208+ft}, s24, v{VWR2+ft}" for ft in range(8)] + [f"v_add_u32 v{224+ft}, s24, v{208+ft}" for ft in range(8)]
    g2dma = []
    for i in range(2):
        g2dma += [f"v_lshrrev_b32 v{T0_}, 4, v{VL}", f"v_add_u32 v{T0_}, {4*i}, v{T0_}", f"v_lshlrev_b32 v{T0_+1}, 1, v{T0_}", f"v_and_b32 v{T0_+2}, 15, v{VL}", f"v_xor_b32 v{T0_+2}, v{T0_+2}, v{T0_+1}",
                  f"v_and_b32 v{T0_+1}, 7, v{T0_+2}", f"v_lshlrev_b32 v{T0_+1}, 4, v{T0_+1}", f"v_and_b32 v{T0_+2}, 8, v{T0_+2}", f"v_lshl_add_u32 v{T0_+2}, v{T0_+2}, {6 if PAIR2 else 4}, v{T0_+1}",
                  f"v_lshl_add_u32 v{VWO2+i}, v{T0_}, 11, v{T0_+2}"]
    g2dma += [f"v_subrev_u32 v{VWO2+1}, 1024, v{VWO2+1}", f"v_add_u32 v{VWO2+2}, {65536-2048}, v{VWO2}", f"v_add_u32 v{VWO2+3}, {65536-2048}, v{VWO2+1}"]
    VHP = 192; VPR = 193; VYW = 194
    hp = f"""
    s_lshl_b32 s24, s61, 3
    s_mul_i32 s25, s24, 4682
    s_lshr_b32 s25, s25, 16
    s_min_u32 s25, s25, 7
    s_cmp_ge_u32 s24, 113|s_cselect_b32 s25, 8, s25
    s_add_u32 s24, s24, 7
    s_mul_i32 s27, s24, 4682
    s_lshr_b32 s27, s27, 16
    s_min_u32 s27, s27, 7
    s_cmp_ge_u32 s24, 113|s_cselect_b32 s27, 8, s27
    s_sub_u32 s27, s27, s25
    s_lshl_b32 s27, s27, 8
    s_lshl_b32 s25, s25, 8
    s_mul_i32 s24, s63, 48
    s_add_u32 s25, s25, s24
    v_and_b32 v{T0_}, 15, v{VL}
    v_lshrrev_b32 v{T0_+1}, 4, v{VL}
    v_mul_lo_u32 v{T0_+2}, v{T0_+1}, s27
    v_lshl_add_u32 v{T0_+2}, v{T0_}, 2, v{T0_+2}
    s_lshl_b32 s24, s20, 2
    v_add_u32 v{T0_+1}, s24, v{T0_+1}
    v_cmp_gt_u32 vcc, 2, v{T0_+1}
    v_mov_b32 v{T0_}, {OOB}
    s_lshl_b32 s24, s20, 6
    v_add_u32 v{T0_+1}, s24, v{VL}
    v_cndmask_b32 v{VHP}, v{T0_}, v{T0_+2}, vcc
    v_lshlrev_b32 v{T0_+2}, 2, v{T0_+1}
    v_cmp_gt_u32 vcc, 16, v{T0_+1}
    s_lshl_b32 s24, s20, 1
    s_add_u32 s24, s24, {CVB}
    v_cndmask_b32 v{VFL}, v{T0_}, v{T0_+2}, vcc
    v_lshl_add_u32 v{VYW}, v{VL}, 3, s24
    s_mov_b32 s28, 0
    s_brev_b32 s29, 1
    v_mov_b32 v{VYW+1}, 0""".strip().split("\n")
    hp = [x.replace("|", "\n") for x in hp]
    sg = ["s_lshl_b32 s34, s21, 8", "s_lshl_b32 s24, s22, 2", "s_add_u32 s34, s34, s24", "s_lshl_b32 s24, s64, 30", "s_add_u32 s34, s34, s24"]
    ACC2 = 128
    def acc2(ft, u): b = ACC2 + 4*(2*ft+u); return f"v[{b}:{b+3}]"
    def wf2(buf, ft, h=None):
        b = 32*buf + 4*ft
        return f"a[{b}:{b+3}]" if h is None else f"a[{b+2*h}:{b+2*h+1}]"
    AH = 128
    def hf(slot, u): b = AH + 8*slot + 4*u; return f"a[{b}:{b+3}]"
    def ld_h(n):
        return [T(f"s_mov_b32 s23, {HS_*n}")] + [vm(("H", n), f"buffer_load_dwordx4 {hf(n % HD, u)}, v{232+u}, s[4:7], s23 offen {HNT}") for u in range(2)]
    def rd_w2(n, ft, h, buf=None):
        LG.issue(("w", n, ft))
        return f"ds_read_b64_tr_b16 {wf2(n&1 if buf is None else buf, ft, h)}, v{(VWR2, 208, 224)[(n % R)//8]+ft} offset:{((n % R) % 8 >> 1)*2*UNIT + (n & 1)*2048 + h*8192}"
    Rg = lambda g, rho: ACC + 4*g + rho
    def combine(n):
        o = []
        for rho in (2, 1, 0):
            for k in range(4):
                g = 4*n + k
                prev = f"v{Rg(g-1, rho+1)}" if g else f"v{VYW+1}"
                o.append(f"v_cndmask_b32 v{TMP+k}, v{Rg(g,rho+1)}, {prev}, s[28:29]")
            for k in range(4):
                g = 4*n + k
                o.append(f"v_add_f32_dpp v{Rg(g,rho)}, v{TMP+k}, v{Rg(g,rho)} wave_ror:1 row_mask:0xf bank_mask:0xf")
        for k in range(4): o.append(f"v_add_f32 v{Rg(4*n+k,0)}, v{Rg(4*n+k,0)}, v{DU+4*n+k}")
        for k in (0, 2): o.append(f"v_cvt_pk_bf16_f32 v{DU+4*n+k}, v{Rg(4*n+k,0)}, v{Rg(4*n+k+1,0)}")
        for k in (0, 2): o += [f"ds_write_b16 v{VYW}, v{DU+4*n+k} offset:{512*(4*n+k)}", f"ds_write_b16_d16_hi v{VYW}, v{DU+4*n+k} offset:{512*(4*n+k+1)}"]
        return o
    XR = 48; YR = 24; ST = 40; T6 = 44; VXA = 216; XLB = 131072
    xa = f"""
    s_lshl_b32 s41, s40, 5
    s_lshl_b32 s43, s63, {8 if PAIR2 else 6}
    s_add_u32 s42, s35, s43              ; f0
    v_and_b32 v{VXA+2}, 15, v{VL}
    v_add_u32 v{VXA+2}, s41, v{VXA+2}    ; token
    v_lshrrev_b32 v{T0_}, 4, v{VL}
    v_lshl_add_u32 v{VXA+3}, v{T0_}, 2, s42    ; feature
    v_lshrrev_b32 v{VXA}, 3, v{VL}
    v_add_u32 v{VXA}, s41, v{VXA}
    v_lshlrev_b32 v{VXA}, 11, v{VXA}
    v_and_b32 v{VXA+1}, 7, v{VL}
    v_lshl_add_u32 v{VXA}, v{VXA+1}, 4, v{VXA}
    v_and_b32 v{VXA+1}, 15, v{VL}
    v_lshlrev_b32 v{VXA+1}, 7, v{VXA+1}
    v_lshl_add_u32 v{VXA+1}, v{T0_}, 3, v{VXA+1}
    s_add_u32 s24, s45, {XLB}
    v_add_u32 v{VXA+1}, s24, v{VXA+1}"""
    xd = f"s_mov_b32 s12, s30\ns_mov_b32 s13, s31\ns_mov_b32 s14, 4194304\ns_lshl_b32 s24, s42, 1\ns_add_u32 m0, s45, {XLB}\n"
    for i in range(4): xd += f"buffer_load_dwordx4 v{VXA}, s[12:15], s24 offen offset:{1024*i} lds\n" + (f"s_add_u32 s24, s24, {16384-1024}\n" if i < 3 else "")
    xr = [f"ds_read_b64 v[{XR+4*ft+2*u}:{XR+4*ft+2*u+1}], v{VXA+1} offset:{2048*u + 32*ft}" for ft in range(4) for u in range(2)]
    xs = f"v_lshlrev_b32 v{T0_}, 4, v{VXA+2}\ns_mov_b32 s12, s36\ns_mov_b32 s13, s37\ns_mov_b32 s14, 32768"
    for u in range(2): xs += f"\nbuffer_load_dwordx2 v[{ST+2*u}:{ST+2*u+1}], v{T0_}, s[12:15], 0 offen offset:{256*u}"
    def rdi(r):
        def mk(x, i):
            def f(): LG.issue(("c", r, i)); return x
            return It(f, 1, True)
        return [mk(x, j//4) for j, x in enumerate(reads(r))]
    pairs = [(q, n-q) for n in range(8) for q in range(n+1)]
    phases = [[(0, q, p) for q, p in pairs], [(1, q, p) for q, p in pairs], []]
    for grp in ((0, 1, 2), (3,), (4,), (5,), (6,), (7,)):
        for r in (2, 3): phases[2] += [(r, q, p) for q, p in pairs if q + p in grp]
    started = set(); cnt = 0
    pfq = [it for u_ in range(RP) for it in dma2(u_)]
    for ph, ms in enumerate(phases):
        a("s_waitcnt lgkmcnt(0)"); LG.drain()
        fs()
        NG = len(ms); gp = Gaps(NG, 6)
        def seqp(its, g0, g1=NG, step_=0):
            g = g0
            for i, it in enumerate(its): g = gp.force(it, min(max(g, g0 + int(i*step_)), g1-1), g1, 1, getattr(it, "lds", False))
            return g
        seqp(rdi(ph+1), 0)
        if ph == 0:
            seqp([lg(x) for x in du], 11)
            g = seqp([T(x) for x in g2dma + g2s], 0)
            k = (len(pfq)*(NG-g-1)) // (NG-g-1 + PFEND)
            k = max(i for i in range(k+1) if i % 3 == 0)
            seqp(pfq[:k], g+1, NG, (NG-g-1)/k); pfq = pfq[k:]
            seqp([T(x) for x in sg], g+1)
        if ph == 1:
            gp.add(SIGAT, lambda: wait(vm=[("HS",)]) + "\ns_barrier", 2)
            gp.add(SIGAT, vm(("F",), f"buffer_store_dword v{VFL+2}, v{VFL+1}, s[48:51], s34 offen sc1"))
            seqp(pfq, 0, NG, PFEND/len(pfq)); pfq = []
            seqp([T(x) for x in du2 + g2h + g2addr + hp], 0)
        left = []
        if ph == 2:
            YB_ = 12
            gp.add(YB_, lambda: (LG.drain(), "s_waitcnt lgkmcnt(0)\ns_barrier")[1], 2)
            gp.add(PHAT, vm(("PH",), f"buffer_load_dword v{VPR}, v{VHP}, s[48:51], s25 offen sc1"))
            def hchk():
                sv = a.l; a.l = []
                VM.drain(); a("s_waitcnt vmcnt(0)"); stamp(); a(spin("ph", VPR, VHP, "s25", 0xffffffff)); a("s_barrier"); stamp()
                t = "\n".join(a.l); a.l = sv; return t
            gp.add(HCHK, hchk, 6)
            seqp(split(xa + "\n" + xs, ("E",)), 0, PHAT, 0.5)
            seqp([It(lambda ft=ft, h=h: rd_w2(0, ft, h), 1, True) for ft in range(NT) for h in range(2)], max(HCHK+1, 64), NG, 0.5)
            seqp([it for n_ in range(HB0-1) for it in ld_h(n_)], HCHK+1, NG, 0.5)
            g = 0
            for n_ in range(7):
                at_ = max(i for i, (r, q, p) in enumerate(ms) if q + p == n_) + 3
                for x in combine(n_):
                    w_ = x.startswith("ds_")
                    g2_ = gp.place(T(x), max(g, at_, YB_+1 if w_ else 0), NG, 1, w_) if not left else None
                    if g2_ is None: left.append(x)
                    elif not w_: g = g2_
        for i, (r, q, p) in enumerate(ms):
            n = p + q
            d = f"v[{ACC+16*n}:{ACC+16*n+15}]"
            c = d if n in started else "0"
            started.add(n)
            if r == 3: a(wait(lg=[("c", 3, q), ("c", 3, p)]))
            a(f"v_mfma_f32_32x32x16_bf16 {d}, {af(r&1,q)}, {bf(r&1,p)}, {c}")
            for fn in gp.g[i]: a(fn())
    print("conv leftover", len(left))
    for x in left: a(x)
    if len(left) < 12: a("s_nop 7\ns_nop 3")
    fs(True)
    for x in combine(7): a(x)
    a(f"""
    s_lshl_b32 s25, s20, 12
    v_add_u32 v5, s25, v{VL16}
    v_add_u32 v6, {CVB}, v5
    s_lshl_b32 s24, s2, 14
    s_add_u32 s16, s36, {WS_Y4}
    s_addc_u32 s17, s37, 0
    s_mov_b32 s18, 4194304
    s_waitcnt lgkmcnt(0)
    s_barrier
    """)
    LG.drain()
    fs()
    XF_ = 64; SF = 96; QO = 224
    setup_e = f"""
    v_lshrrev_b32 v13, 4, v{VL}
    v_lshlrev_b32 v16, 12, v{VXA+3}
    v_lshl_add_u32 v16, v{VXA+2}, 3, v16
    v_and_b32 v19, 1, v13
    v_lshlrev_b32 v19, 4, v19
    v_lshrrev_b32 v20, 1, v13
    v_lshl_add_u32 v19, v20, 3, v19
    v_add_u32 v19, s42, v19
    v_lshlrev_b32 v19, 1, v19
    v_lshl_add_u32 v19, v{VXA+2}, 11, v19
    v_add_u32 v20, 32768, v19
    s_lshr_b32 s27, s42, 6
    s_lshl_b32 s27, s27, 8
    s_add_u32 s27, s27, {FL_Y}
    s_add_u32 s56, s36, {WS_PX}|s_addc_u32 s57, s37, 0
    s_mov_b32 s58, {256*32768}
    s_mov_b32 s59, 0x20000
    s_lshl_b32 s32, s2, 15
    s_lshl_b32 s33, s20, 13
    s_add_u32 s32, s32, s33
    s_add_u32 s33, s32, 4096
    s_xor_b32 s34, s32, {128<<15}
    s_xor_b32 s35, s33, {128<<15}
    s_lshr_b32 s29, s44, 8
    s_lshr_b32 s46, s44, 16
    s_lshr_b32 s47, s44, 24
    v_mov_b32 v21, 0xff""".strip().split("\n")
    setup_e = [x.replace("|", "\n") for x in setup_e]
    if FINE or FINE2: setup_e = [x.replace("s32", "s60").replace("s33", "s65") for x in setup_e]
    PXA, PXB = ("s60", "s65") if FINE or FINE2 else ("s32", "s33")
    TAG = ["s44", "s29", "s46", "s47"]
    fi = [0]
    def barrier2(need):
        LG.drain()
        w = VM.need(need)
        fine = ""
        if FINE:
            fi[0] += 1
            fine = (f"\nv_writelane_b32 v255, s32, {fi[0]-1}" if fi[0] > 1 else "") + "\ns_memtime s[32:33]"
        return f"s_waitcnt {w+' ' if w else ''}lgkmcnt(0)\ns_barrier" + fine
    TAIL = NSTEP - TN
    seg = lambda n: (n % R) // 8
    issued = [RP]; hn = [HB0 - 1]
    freed = [-1]
    def loads(n, nm):
        its = []
        k = 0
        while issued[0] < NSTEP and k < nm and (issued[0] - R <= freed[0]) and (issued[0] < RP or n >= 3):
            its += dma2(issued[0]); issued[0] += 1; k += 1
        k = 0
        while hn[0] < NSTEP and k < (2 if n < 4 else nm) and hn[0] - HD < n:
            its += ld_h(hn[0]); hn[0] += 1; k += 1
        return its
    over2 = [0]
    def spread(gp, its, g0, g1):
        g = g0
        for i, it in enumerate(its): g = gp.force(it, min(max(g, g0 + (i*(g1-g0))//len(its)), g1-1), g1, 1)
    def step2(n, extra, stream):
        NM = 16
        gp = Gaps(NM)
        bar = (n+1) % 4 == 0
        if bar:
            assert VM.ops.count(("W2", n+4)) == 2, n
            gp.add(0, lambda: barrier2([("W2", n+4)] + ([("YS",)] if n == 7 else [])), 2)
            freed[0] = n
        for ft in range(NT if 'r' not in G2X else 0):
            if n + 1 == TAIL and ft < 4: continue
            for h in range(2): gp.add(2*ft+h, lambda ft=ft, h=h: rd_w2(n+1, ft, h), lds=True)
        for g in range(WEV-1, NM, WEV): gp.c[g] += 1
        its = loads(n, NMX)
        if G2X:
            def drop(fn):
                def g():
                    t = fn()
                    return "" if "buffer_load" in t and ((" lds" in t and "w" in G2X) or (" lds" not in t and "h" in G2X)) else t
                return g
            its = [drop(fn) for fn in its]
        if its: spread(gp, its, 1, NM)
        if extra: spread(gp, extra, 1, NM)
        g = 1
        while stream:
            g = gp.place(stream[0], g, NM, stream[0].w if stream[0].w < 2 else 1)
            if g is None: break
            stream.pop(0)
        over2[0] += sum(max(0, c - 2) for c in gp.c)
        for m in range(NM):
            ft = m >> 1; u = (m & 1) ^ (ft & 1)
            if m % WEV == 0: a(wait(vm=[("H", n)] if m == 0 else None, lg=[("w", n, ft + j) for j in range(WEV//2)]))
            c = "0" if n == 0 else acc2(ft, u)
            a(f"v_mfma_f32_16x16x32_bf16 {acc2(ft,u)}, {wf2(n&1,ft)}, {hf(n % HD, u)}, {c}")
            for fn in gp.g[m]: a(fn())
    extras = {n: [] for n in range(NSTEP)}
    extras[0] = [lg(f"ds_read_b128 v[{24+4*i}:{27+4*i}], v6 offset:{1024*i}") for i in range(4)]
    extras[1] += [It(lambda: wait(lg=[("z",)]))] + [vm(("YS",), f"buffer_store_dwordx4 v[{24+4*i}:{27+4*i}], v5, s[16:19], s24 offen offset:{1024*i} sc1") for i in range(4)]
    extras[2] += split(f"s_lshr_b32 s64, s2, 4\ns_lshl_b32 s64, s64, 8\ns_and_b32 s65, s2, 15\ns_lshl_b32 s65, s65, 2\ns_add_u32 s64, s64, s65\ns_add_u32 s64, s64, {FL_Y}")
    xit = split(xd, ("XD",))
    extras[7] += [vm(("F",), f"buffer_store_dword v{VFL+2}, v{VFL+1}, s[48:51], s64 offen sc1")]
    assert HD >= TN + 1
    extras[TAIL-PYB] = [vm(("PY",), f"buffer_load_dword v{VPR}, v{VFL}, s[48:51], s27 offen sc1")]
    xl = []; yl = []
    for ft in range(4):
        for u in range(2):
            i = 2*ft+u
            yl += split((f"s_mov_b32 s43, {ft*65536}\n" if u == 0 else "") + f"buffer_load_dwordx2 v[{YR+2*i}:{YR+2*i+1}], v16, s[16:19], s43 offen offset:{128*u}", ("E",))
    st2 = []
    for n in range(TAIL):
        if FINE2 and n in (1, 2, 3, 4, 8, 44): fs(True)
        if n == 8: st2 += [T(x) for x in setup_e]
        step2(n, extras[n], st2)
    assert not st2
    print("gemm2 over", over2[0])
    assert hn[0] == NSTEP
    rest = [it for u_ in range(issued[0], NSTEP) for it in dma2(u_)] + xit
    seq = [(n, 4) for n in range(TAIL, NSTEP)] + [(n, 0) for n in range(TAIL, NSTEP)]
    send = []
    if not XBF:
        NPX = 8
        for i in range(8):
            for r in range(4): send.append(T(f"v_bfi_b32 v{ACC2+32+4*i+r}, v21, {TAG[r]}, v{ACC2+32+4*i+r}"))
            send.append(vm(("PXS",), f"buffer_store_dwordx4 v[{ACC2+32+4*i}:{ACC2+35+4*i}], v{VL16}, s[56:59], {PXA if i < 4 else PXB} offen offset:{1024*(i&3)} {XST}"))
    else:
        NPX = 6; SB = 64
        for i in range(6):
            for r in range(3):
                d = 3*i + r
                if d < 16: send.append(T(f"v_cvt_pk_bf16_f32 v{SB+4*i+r}, v{ACC2+32+2*d}, v{ACC2+33+2*d}"))
            send.append(T(f"v_mov_b32 v{SB+4*i+3}, s44"))
            send.append(vm(("PXS",), f"buffer_store_dwordx4 v[{SB+4*i}:{SB+4*i+3}], v{VL16}, s[56:59], {PXA if i < 4 else PXB} offen offset:{1024*(i&3)} {XST}"))
    lastst = [-99]
    ychk = lambda: wait(vm=[("PY",)]) + "\n" + spin("py", VPR, VFL, "s27", 0xffff)
    for k, (n, f0) in enumerate(seq):
        if FINE2 and k in (0, 3, TN, TN+3): fs(True)
        buf = (TAIL + k) & 1
        gp = Gaps(8)
        if k < TN - 1 and k % 4 == 3:
            gp.add(0, lambda: (ychk() if YK == k else "") + barrier2([("W2", n+4)]), 2)
        elif k == YK: gp.add(0, lambda: ychk() + "s_barrier", 2)
        if k + 1 < len(seq):
            n1, f1 = seq[k+1]
            for j in range(4):
                for h in range(2): gp.add(2*j+h, lambda j=j, h=h, n1=n1, f1=f1: rd_w2(n1, f1+j, h, buf^1), lds=True)
        gp.c[7] += 1
        if YK <= k < YK + 3: spread(gp, yl[4*(k-YK):4*(k-YK)+4], 1, 7)
        if k < 3 and rest:
            cnt_ = min(len(rest), 6); spread(gp, rest[:cnt_], 0, 7); rest = rest[cnt_:]
        if k >= TN:
            g = 5 if k == TN else 0
            while send:
                isst = send[0].w >= VW and len(send) % (5) == 1 if not XBF else False
                g = gp.place(send[0], g, 8, 1)
                if g is None: break
                send.pop(0)
        for m in range(8):
            ft = f0 + (m >> 1); u = (m & 1) ^ (ft & 1)
            if m == 0: a(wait(vm=[("H", n)], lg=[("w", n, f0 + j) for j in range(4)]))
            a(f"v_mfma_f32_16x16x32_bf16 {acc2(ft,u)}, {wf2(buf,ft)}, {hf(n % HD, u)}, {acc2(ft,u)}")
            for fn in gp.g[m]: a(fn())
    assert not send and not rest
    fs(True)
    stamp()
    PXR = 192
    pxl = "\n".join(f"buffer_load_dwordx4 v[{PXR+4*i}:{PXR+3+4*i}], v{VL16}, s[56:59], {'s34' if i < 4 else 's35'} offen offset:{1024*(i&3)} {XLD}" for i in range(NPX))
    a(f"v_mov_b32 v2, v{VL16}\nv_cmp_eq_u32 vcc, 0, v{VL}\nv_mov_b32 v3, {OOB}\nv_mov_b32 v1, 1008\nv_cndmask_b32 v3, v3, v1, vcc")
    pxl = pxl.replace(f"v{VL16},", "v2,")
    a(wait(vm=[("E",), ("XD",)]))
    for x in xr: a(x)
    lp = f"buffer_load_dword v1, v3, s[56:59], s35 offen offset:{1024*((NPX-1)&3) + (12 if XBF else 0)} sc1"
    for u in range(2): a(f"v_mul_f32 v{ST+2*u+1}, {f2u(1/C0)}, v{ST+2*u+1}")
    a("s_waitcnt lgkmcnt(0)")
    for i in range(8):
        u = i & 1
        for h in range(2):
            b = 4*i + 2*h
            a(f"""v_lshlrev_b32 v{XF_+b}, 16, v{XR+2*i+h}
            v_and_b32 v{XF_+b+1}, 0xffff0000, v{XR+2*i+h}
            v_lshlrev_b32 v{T6}, 16, v{YR+2*i+h}
            v_and_b32 v{T6+1}, 0xffff0000, v{YR+2*i+h}
            v_pk_add_f32 {pr(SF+b)}, {pr(XF_+b)}, {pr(ST+2*u)} op_sel_hi:[1,0] neg_lo:[0,1] neg_hi:[0,1]
            v_pk_mul_f32 {pr(T6)}, {pr(T6)}, {pr(ST+2*u)} op_sel:[0,1] op_sel_hi:[1,1]
            v_pk_mul_f32 {pr(SF+b)}, {pr(SF+b)}, {pr(T6)}""")
    fs(True); fs(True)
    a(f"""
    s_mov_b32 s16, s54
    s_mov_b32 s17, s55
    s_mov_b32 s24, 0
    s_mov_b32 s42, {f2u(-math.log2(math.e))}
    s_mov_b32 s43, s42
    {L('px2')}:
    {lp}
    s_add_u32 s24, s24, 1
    s_cmp_gt_u32 s24, {SPIN}
    s_cbranch_scc1 {L('px_ok')}
    s_waitcnt vmcnt(0)
    v_xor_b32 v1, {TAG[0]}, v1
    {'' if XBF else 'v_and_b32 v1, v1, v21'}
    v_cmp_eq_u32 vcc, 0, v1
    s_nop 4
    s_bitcmp1_b32 vcc_lo, 0
    s_cbranch_scc1 {L('px')}
    s_sleep {XSL}
    s_branch {L('px2')}
    {L('px')}:
    """)
    a(pxl)
    for i in range(NPX):
        a(f"s_waitcnt vmcnt({NPX-1-i})")
        if XBF:
            a(f"v_xor_b32 v1, s44, v{PXR+3}" if i == 0 else f"v_bitop3_b32 v1, v1, v{PXR+4*i+3}, s44 bitop3:0xf6")
            for r in range(3):
                d = 3*i + r
                if d < 16: a(f"v_lshlrev_b32 v{ACC2+32+2*d}, 16, v{PXR+4*i+r}\nv_and_b32 v{ACC2+33+2*d}, 0xffff0000, v{PXR+4*i+r}")
        else:
            for r in range(4*i, 4*i+4):
                a(f"v_xor_b32 v1, {TAG[0]}, v{PXR}" if r == 0 else f"v_bitop3_b32 v1, v1, v{PXR+r}, {TAG[r&3]} bitop3:0xf6")
    if XBF: PXR = ACC2 + 32
    a(f"""
    {'' if XBF else 'v_and_b32 v1, 0xff, v1'}
    v_cmp_ne_u32 vcc, 0, v1
    s_nop 4
    s_cbranch_vccnz {L('px2')}
    {L('px_ok')}:
    """)
    stamp()
    E = T6
    for ft in range(4):
        for u in range(2):
            i = 2*ft+u; O = ACC2 + 4*i; S_ = SF + 4*i; X_ = XF_ + 4*i
            for h in range(2): a(f"v_pk_add_f32 {pr(O+2*h)}, {pr(O+2*h)}, {pr(PXR+4*i+2*h)}")
            for h in range(2): a(f"v_pk_mul_f32 {pr(E+2*h)}, {pr(O+2*h)}, s[42:43]")
            for r in range(4): a(f"v_exp_f32 v{E+r}, v{E+r}")
            for h in range(2): a(f"v_pk_mul_f32 {pr(S_+2*h)}, {pr(S_+2*h)}, {pr(O+2*h)}")
            for h in range(2): a(f"v_pk_add_f32 {pr(E+2*h)}, {pr(E+2*h)}, 1.0 op_sel_hi:[1,0]")
            for r in range(4): a(f"v_rcp_f32 v{E+r}, v{E+r}")
            a("s_nop 0")
            for h in range(2): a(f"v_pk_fma_f32 {pr(S_+2*h)}, {pr(S_+2*h)}, {pr(E+2*h)}, {pr(X_+2*h)}")
            Q = QO + 8*(ft>>1) + 4*u + 2*(ft&1)
            for h in range(2): a(f"v_cvt_pk_bf16_f32 v{Q+h}, v{S_+2*h}, v{S_+2*h+1}")
        if ft & 1:
            a("s_nop 1")
            for u in range(2):
                Q = QO + 8*(ft>>1) + 4*u
                a(f"v_permlane16_swap_b32 v{Q}, v{Q+2}\nv_permlane16_swap_b32 v{Q+1}, v{Q+3}")
            for u in range(2):
                Q = QO + 8*(ft>>1) + 4*u
                a(f"buffer_store_dwordx4 v[{Q}:{Q+3}], v{19+u}, s[16:19], 0 offen offset:{64*(ft>>1)} {OSC}")
    if STAMP:
        a("s_waitcnt vmcnt(0)")
        stamp()
        a(f"""
        s_waitcnt lgkmcnt(0)
        s_cmp_eq_u32 s20, 0
        s_cbranch_scc0 {L('end')}
        s_add_u32 s12, s36, {WS_TS}
        s_addc_u32 s13, s37, 0
        s_mov_b32 s14, 65536
        s_lshl_b32 s41, s2, 7
        v_mov_b32 v1, 0
        """)
        a("v_mov_b32 v4, v2")
        for i in range(nst[0]):
            a(f"v_mov_b32 v2, s{66+4*i}\nv_mov_b32 v3, s{68+4*i}\nbuffer_store_dwordx2 v[2:3], v1, s[12:15], s41 offen offset:{8*i}\ns_nop 1")
        assert 69 + 4*(nst[0]-1) <= 101
        if FINE1: a("v_accvgpr_read_b32 v255, a252")
        if FINE or FINE1 or FINE2:
            a(f"s_lshl_b32 s41, s2, 8\ns_add_u32 s41, s41, 0x40000\ns_mov_b32 s14, 0x80000\nv_lshrrev_b32 v1, 2, v4\nbuffer_store_dword v255, v1, s[12:15], s41 offen")
    a(f"{L('end')}:\ns_endpgm")
    return a.text()

def check_m0(t):
    own = {"s43": "s[8:11]", "s26": "s[4:7]", "s29": "s[12:15]", "s60": "s[16:19]", "s45": "s["}
    cur = None; k = 0; prev = ""
    for ln in t.split("\n"):
        x = ln.strip()
        m = re.match(r"s_add_u32 m0, (s\d+),", x)
        if m: assert cur is None or k == 4, ("m0 rewritten early", x); cur = m.group(1); k = 0
        elif x.endswith(" lds"):
            assert own[cur] in x and f"offset:{1024*k} " in x and "m0" not in prev, (cur, k, x); k += 1
        prev = x
def add_stubs(body):
    import subprocess
    lines = body.split("\n")
    tmp = "\n".join(lines) + "\n" + "".join(f"L_k_w{i}:\n" for i in range(4))
    open("stub.s", "w").write('.amdgcn_target "amdgcn-amd-amdhsa--gfx950"\n.text\n' + KN + ":\n" + tmp)
    subprocess.run(["clang", "-x", "assembler", "-target", "amdgcn-amd-amdhsa", "-mcpu=gfx950", "-c", "stub.s", "-o", "stub.o"], check=True)
    dis = subprocess.run(["llvm-objdump", "-d", "--mcpu=gfx950", "stub.o"], capture_output=True, text=True).stdout
    ad = [(int(m.group(1), 16), len(m.group(2).split())*4) for m in re.finditer(r"// ([0-9A-F]{12}): ((?:[0-9A-F]{8} ?)+)", dis)]
    sizes = [sz for adr, sz in ad if adr >= 4096]
    i0 = lines.index("L_k_main:")
    out = lines[:i0+1]; pos = 0; k = 0; n = 0; nxt = 4096
    for ln in lines[i0+1:]:
        x = ln.split(";")[0].strip()
        if x and not x.endswith(":"):
            if pos >= nxt:
                out += [f"L_k_w{n}:", f"    s_cbranch_execz @{n}"]; n += 1; pos += 4; nxt += 4096
            pos += sizes[k]; k += 1
        out.append(ln)
    assert k == len(sizes) and n >= 4, (k, len(sizes))
    return "\n".join(re.sub(r"@(\d+)", lambda m: f"L_k_w{int(m.group(1))+4}" if int(m.group(1))+4 < n else "L_k_wback", x) if "execz @" in x else x for x in out)
def make(fn, **kw):
    body = gen("k", **kw)
    if not kw.get('G2X'): check_m0(body)
    if kw.get("WARM", True): body = add_stubs(body)
    t = header([(KN, 256, 256, 163840)]) + kstart(KN) + body + rodata() + kdesc(KN, 512, 256)
    open(fn, "w").write(t)
if __name__ == "__main__":
    import sys
    B = dict(ROT=0, KPS=3, P0AT=(2,2,9), ROT0=5, KNT="")
    make("t4.s", STAMP=True, FINE=True, **B); make("t4_ns.s", **B)
    B.update(PYB=8, YK=3)
    make("t4a_ns.s", WARM=False, **B)
    make("t4b_ns.s", MIGN=12, **{**B, "P0AT": (1,1,8)})
```

```python
from asmlib import *
from g1b import f2u, Cnt
from p0 import srd, rne_bf16, red32
import math, re
WS_STATS = 0; WS_FL = 0x80000; WS_UT = 0x100000; WS_Y4 = 0x600000; WS_HF = 0x1000000; WS_PX = 0x2800000; WS_TS = 0x3000000
FL_H = 0; FL_Y = 8192; FL_X = 12288; FL_P = 12288 + 256*128; FL_Q = FL_P + 1024; FL_N = FL_Q + 4096; FL_SIZE = FL_N + 256
OOB = 0x80000000
KN = "recurrent_scan__ssm_conv_h3__geglu_ffn__prompt_kernel"
pr = lambda b: f"v[{b}:{b+1}]"

class Gaps:
    def __init__(self, n, cap=2): self.n = n; self.cap = cap; self.g = [[] for _ in range(n)]; self.c = [0]*n; self.l = [0]*n; self.maxl = 1 if cap == 2 else 3
    def add(self, g, fn, w=1, lds=False): self.g[g].append(fn); self.c[g] += w; self.l[g] += lds
    def fits(self, g, w, lds): return self.c[g] + w <= self.cap and not (lds and (self.l[g] >= self.maxl or self.c[g] > self.l[g]))
    def place(self, fn, g0, g1, w=1, lds=False):
        for g in range(g0, g1):
            if self.fits(g, w, lds): self.add(g, fn, w, lds); return g
        return None
    def force(self, fn, g0, g1, w=1, lds=False):
        g = self.place(fn, g0, g1, w, lds)
        if g is None:
            g = min(range(g0, g1), key=lambda x: (self.c[x], x)); self.add(g, fn, w, lds)
        return g
class It:
    def __init__(self, fn, w=1, lds=False): self.fn = fn; self.w = w; self.lds = lds
    def __call__(self): return self.fn()

def gen(name, STAMP=False, SPIN=400000, SIGAT=(1,2), FINE=False, PFEVERY=5, WNT="", KNT="nt", OSC="", FINE1=False, LW=3, XS=1, ROT=2, CAP=2, MIG=True, P0AT=(3,5,7), PROST=False, G1X="", KPS=4, TRK=8, MIGN=7, ROT0=0, FINE2=False, HD=9, PHAT=24, HCHK=50, PFEND=30, PYB=8, YK=3, XSL=1, CQ=6, XST='sc1', XLD='sc1', R=20, WEV=8, HB0=9, NMX=1, L2PF=0, HNT='', W2NT='', L2AT=2, G2X='', VW=2, XAT=44, WARM=True, PAIR1=False, PAIR2=False, HSK=False, KORD=None, RSP=True, TN=8, SSP=0, XBF=True, C3=0, REMAP=True, TWO=True, PSL=4, SLOWX=True, SLOWS=False, CCAP=6, CVW=1, DPW=1, PF2=40, EPOLL=False, CX=''):
    a = A()
    nst = [0]
    def pstamp():
        if PROST: stamp(True)
    def stamp(p=False):
        if STAMP and nst[0] < 9 and (p or not PROST or nst[0] == 0 or nst[0] >= 6):
            i = nst[0]; nst[0] += 1
            a(f"s_memtime s[{66+4*i}:{67+4*i}]\ns_memrealtime s[{68+4*i}:{69+4*i}]")
    VM = Cnt("vmcnt", 63); LG = Cnt("lgkmcnt", 15)
    def wait(vm=None, lg=None):
        w = [x for x in (VM.need(vm) if vm else None, LG.need(lg) if lg else None) if x]
        return ("s_waitcnt " + " ".join(w)) if w else ""
    def vm(tag, txt):
        def f(): VM.issue(tag); return txt
        it = It(f, VW + txt.strip().count("\n")); it.vm = True
        return it
    def T(txt): return It(lambda: txt, 1 + txt.strip().count("\n") + ("0x" in txt and txt.strip().startswith("v_")))
    def split(txt, tag=None):
        return [vm(tag, x.replace("|", "\n")) if "buffer_" in x else T(x.replace("|", "\n")) for x in txt.strip().split("\n") if x.strip()]
    L = lambda s_: f"L_{name}_{s_}"
    f2 = [0]
    def fs(w=False):
        if not FINE2: return
        if w: a("s_waitcnt lgkmcnt(0)")
        if f2[0]: a(f"v_writelane_b32 v255, s32, {f2[0]-1}")
        a("s_memtime s[32:33]"); f2[0] += 1
    VXO = 208; VWO = 212; VXR = 216; VWR = 218; VIDX = 220; VL = 221; VL16 = 222; VT = 223
    VPS = 224; VPP = 225; VPF = 226; VQA = 228; VKA = 229; VSA = 233; VUA = 234; VWA = 235
    VWO2 = 246; VFL = 250
    Q0 = 92; K0 = 108; V0 = 130; W0 = 146; TT = 168
    a(f"""
    s_cmp_ge_u32 s2, 256
    s_cbranch_scc1 {L('end')}
    s_load_dwordx4 s[28:31], s[0:1], 0      ; q k
    s_load_dwordx4 s[32:35], s[0:1], 56
    s_load_dwordx4 s[60:63], s[0:1], 16     ; v shift_k
    s_load_dwordx4 s[44:47], s[0:1], 88
    s_load_dwordx4 s[52:55], s[0:1], 72
    s_load_dwordx4 s[56:59], s[0:1], 32
    s_branch {L('main')}
    .p2align 12
    {L('main')}:
    """)
    stamp()
    a(f"""
    v_lshrrev_b32 v1, 6, v0
    v_and_b32 v{VL}, 63, v0
    s_and_b32 s3, s2, 7
    v_readfirstlane_b32 s20, v1
    s_lshr_b32 s38, s2, 3                ; slot 0..31
    s_lshr_b32 s39, s3, 1
    s_mul_i32 s39, s39, 63
    s_and_b32 s40, s3, 1
    s_lshl_b32 s41, s40, 5
    s_add_u32 s39, s39, s41
    s_add_u32 s39, s39, s38              ; i
    s_add_u32 s41, s41, s38
    s_cmp_eq_u32 s41, 63
    s_cselect_b32 s64, 1, 0
    s_cselect_b32 s39, 0, s39
    s_mul_i32 s22, s39, 7282
    s_lshr_b32 s22, s22, 16              ; j
    s_mul_i32 s40, s22, 9
    s_sub_u32 s21, s39, s40              ; band
    s_mul_i32 s65, s21, 14
    s_cmp_eq_u32 s21, 8
    s_cselect_b32 s65, 113, s65          ; s65 = first token tile
    v_lshlrev_b32 v{VL16}, 4, v{VL}
    s_getpc_b64 s[16:17]
    {L('here')}:
    s_sub_u32 s16, s16, {L('here')}-{L('main')}
    s_subb_u32 s17, s17, 0
    s_mov_b32 s18, {L('end')}-{L('main')}
    s_mov_b32 s19, 0x20000
    s_lshl_b32 s41, s38, 2
    s_add_u32 s41, s41, s20
    s_mul_i32 s41, s41, {5*128}
    v_min_u32 v10, 4, v{VL}
    v_lshlrev_b32 v10, 7, v10
    buffer_load_dword v{VFL+5}, v10, s[16:19], s41 offen
    v_lshrrev_b32 v10, 1, v{VL}
    v_mul_u32_u24 v10, 7168, v10
    v_and_b32 v11, 1, v{VL}
    v_lshl_add_u32 v10, v11, {9 if PAIR1 else 7}, v10
    v_cmp_gt_u32 vcc, 32, v{VL}
    v_mov_b32 v11, {OOB}
    s_mul_i32 s39, s21, {32*7168}
    v_cndmask_b32 v10, v11, v10, vcc
    s_lshl_b32 s40, s2, 3
    s_lshl_b32 s41, s20, 1
    s_add_u32 s40, s40, s41
    v_lshrrev_b32 v4, 5, v{VL}
    v_add_u32 v4, s40, v4
    v_and_b32 v5, 31, v{VL}
    v_lshlrev_b32 v6, 4, v5
    v_lshl_add_u32 v{VQA}, v4, 11, v6
    v_lshrrev_b32 v0, 3, v{VL}
    v_lshlrev_b32 v0, 11, v0
    v_and_b32 v1, 7, v{VL}
    v_lshrrev_b32 v2, 4, v{VL}
    v_xor_b32 v3, v1, v2
    v_lshl_add_u32 v{VXO}, v3, 4, v0
    v_xor_b32 v3, 4, v3
    v_lshl_add_u32 v{VXO+1}, v3, 4, v0
    v_add_u32 v{VXO+1}, {16384-1024}, v{VXO+1}
    v_add_u32 v{VXO+2}, {2*(16384-1024)}, v{VXO}
    v_add_u32 v{VXO+3}, {2*(16384-1024)}, v{VXO+1}
    s_waitcnt lgkmcnt(0)
    ; SRD W
    s_cmp_lt_u32 s20, 2
    s_cselect_b32 s8, s32, s34
    s_cselect_b32 s9, s33, s35
    {"s_and_b32 s42, s22, 3|s_lshl_b32 s41, s22, 8|s_lshl_b32 s42, s42, 7|s_sub_u32 s41, s41, s42".replace("|", chr(10)) if PAIR1 else "s_lshl_b32 s41, s22, 8"}
    s_and_b32 s42, s20, 1
    s_mul_i32 s42, s42, {16*7168}
    s_add_u32 s41, s41, s42
    s_add_u32 s8, s8, s41
    s_addc_u32 s9, s9, 0
    s_sub_u32 s10, {1024*7168}, s41
    s_mov_b32 s11, 0x20000
    s_cmp_eq_u32 s64, 1
    s_cselect_b32 s10, 0, s10
    s_cmp_lt_u32 s21, {LW+ROT if ROT else ROT0}
    s_cselect_b32 s40, s39, {OOB//2}
    """)
    VM.issue(("C",)); VM.issue(("R",)); a(f"buffer_load_dword v{VPF+1}, v10, s[8:11], s40 offen {WNT}")
    srd(a, 12, 28, 29, 4194304)
    for i in range(4): VM.issue(("Q",)); a(f"buffer_load_dwordx4 v[{Q0+4*i}:{Q0+3+4*i}], v{VQA}, s[12:15], 0 offen offset:{512*i}")
    a(f"""
    s_mov_b32 s39, {OOB//2}
    v_add_u32 v{VPF}, {ROT*32*7168}, v10
    s_mov_b32 s36, s46
    s_mov_b32 s37, s47
    s_lshl_b32 s40, s65, 15
    s_lshl_b32 s41, s20, 17
    s_add_u32 s40, s40, s41
    s_add_u32 s4, s28, s40
    s_addc_u32 s5, s29, 0
    s_cmp_lt_u32 s21, 7
    s_cselect_b32 s6, 0, 32768
    s_add_u32 s6, s6, {224*2048}
    s_sub_u32 s6, s6, s41
    s_mov_b32 s7, 0x20000
    s_cmp_eq_u32 s64, 1
    s_cselect_b32 s6, 0, s6
    s_lshl_b32 s43, s20, 12              ; W lds wave part
    s_lshl_b32 s26, s20, 13
    s_add_u32 s26, s26, 65536            ; x lds write address (slot 0)
    s_mov_b32 s25, 0
    s_mov_b32 s23, 0
    v_mul_u32_u24 v0, 7168, v2
    v_and_b32 v1, 15, v{VL}
    v_lshlrev_b32 v3, 1, v2
    v_xor_b32 v3, v1, v3
    v_and_b32 v1, 7, v3
    v_lshl_add_u32 v0, v1, 4, v0
    v_and_b32 v3, 8, v3
    v_lshl_add_u32 v{VWO}, v3, {6 if PAIR1 else 4}, v0
    v_add_u32 v{VWO+1}, {28672-1024}, v{VWO}
    v_xor_b32 v3, 8, v3
    v_lshl_add_u32 v{VWO+2}, v3, {6 if PAIR1 else 4}, v0
    v_add_u32 v{VWO+2}, {2*(28672-1024)}, v{VWO+2}
    v_add_u32 v{VWO+3}, {28672-1024}, v{VWO+2}
    """)
    XB = 65536
    def dma_w(i, ks):
        VM.issue(("W", ks)); return f"buffer_load_dwordx4 v{VWO+i}, s[8:11], s25 offen offset:{1024*i} {WNT} lds"
    def dma_x(i, sl, half):
        VM.issue(("X", sl)); return f"buffer_load_dwordx4 v{VXO+i}, s[4:7], s23 offen offset:{1024*i} lds"
    KO = list(KORD or range(16)); assert sorted(KO) == list(range(16))
    kphys = lambda k: 2*KO[k >> 1] + (k & 1)
    def xjob(n):
        m = n - XS
        return ((m+5)//2, 0) if m & 1 else (m//2 + 2, 1)
    def w_items(n):
        k = n + LW
        return [T(f"s_add_u32 m0, s43, {(k % 4)*16384}"), T(f"s_mov_b32 s25, {kphys(k)*32*7168}")] + [It(lambda i=i: dma_w(i, k), VW) for i in range(4)]
    def x_items(n):
        sl, half = xjob(n)
        return [T(f"s_add_u32 m0, s26, {(sl % 3)*32768 + half*4096}"), T(f"s_mov_b32 s23, {KO[sl]*128 + half*65536}")] + [It(lambda i=i: dma_x(i, sl, half), VW) for i in range(4)]
    pend = []
    for n in range(-5, 0):
        if n + LW >= 0: pend += w_items(n)
        if xjob(n)[0] >= 0 and n - XS >= -5: pend += x_items(n)
    for _ in range(18): a(pend.pop(0)())
    for _ in range(6): a(pend.pop(0)())
    srd(a, 48, 36, 37, FL_SIZE, WS_FL)
    srd(a, 16, 30, 31, 4194304)
    a(f"""
    s_mov_b32 s30, s28
    s_mov_b32 s31, s29
    s_mov_b32 s32, s44
    s_mov_b32 s33, s45
    s_add_u32 s34, s36, {WS_UT}
    s_addc_u32 s35, s37, 0
    s_lshl_b32 s41, s20, 6
    v_add_u32 v12, s41, v{VL}
    v_lshlrev_b32 v13, 2, v12
    v_cmp_eq_u32 vcc, 0, v12
    s_lshl_b32 s41, s20, 8
    s_add_u32 s41, s41, s2
    v_cndmask_b32 v{VFL+1}, v11, v13, vcc
    s_cmp_eq_u32 s41, 249
    s_cbranch_scc0 {L('nononce')}
    s_mov_b32 s41, {FL_N}
    buffer_load_dword v10, v{VFL+1}, s[48:51], s41 offen sc1
    s_mov_b32 s42, 0x9e3779b1
    s_mov_b32 s12, s32
    s_mov_b32 s13, s33
    s_mov_b32 s14, 256
    s_waitcnt vmcnt(0)
    v_mul_lo_u32 v13, v10, s42
    v_add_u32 v13, 0x7f4a7c15, v13
    v_or_b32 v13, 1, v13
    v_xor_b32 v12, 2, v13
    v_cmp_eq_u32 vcc, v13, v10
    s_nop 1
    v_cndmask_b32 v13, v13, v12, vcc
    buffer_store_dword v13, v{VFL+1}, s[12:15], 0 offen offset:128 sc1
    buffer_store_dword v13, v{VFL+1}, s[12:15], 0 offen sc1
    buffer_store_dword v13, v{VFL+1}, s[48:51], s41 offen sc1
    s_mov_b32 s14, 4194304
    {L('nononce')}:
    s_mov_b32 s12, s60
    s_mov_b32 s13, s61                    ; s[12:15] = v
    v_lshlrev_b32 v14, 4, v4
    v_cmp_eq_u32 vcc, 0, v5
    s_lshr_b32 s40, s2, 4
    s_lshl_b32 s40, s40, 7
    v_cndmask_b32 v{VSA}, v11, v14, vcc
    s_lshl_b32 s41, s20, 5
    s_add_u32 s40, s40, s41
    s_and_b32 s42, s2, 15                 ; cb
    v_lshrrev_b32 v4, 4, v{VL}
    v_lshl_add_u32 v4, v4, 3, s40         ; s0 = base + 8*(l>>4)
    v_and_b32 v5, 15, v{VL}               ; p: 4 channels
    s_lshl_b32 s41, s42, 7
    v_lshl_add_u32 v6, v5, 3, s41
    v_lshl_add_u32 v{VKA}, v4, 11, v6
    v_subrev_u32 v{VKA+2}, {3*2048}, v{VKA}
    v_subrev_u32 v{VKA+3}, 2048, v{VKA}
    s_lshl_b32 s41, s42, 9
    v_lshl_add_u32 v{VWA}, v5, 5, s41
    s_lshl_b32 s41, s40, 11
    s_lshl_b32 s27, s42, 12
    s_add_u32 s41, s41, s27
    v_lshl_add_u32 v9, v5, 6, s41
    v_and_b32 v6, 48, v{VL}
    v_add_u32 v{VUA}, v6, v9
    ; lds read addresses
    v_and_b32 v10, 15, v{VL}              ; tok
    v_lshrrev_b32 v15, 4, v{VL}           ; g
    v_lshrrev_b32 v12, 1, v10
    v_xor_b32 v12, v12, v15
    v_lshlrev_b32 v12, 4, v12
    v_lshl_add_u32 v12, v10, 7, v12
    v_add_u32 v{VXR}, {XB}, v12
    v_xor_b32 v{VXR+1}, 64, v{VXR}
    v_add_u32 v236, 65536, v{VXR}
    v_add_u32 v237, 65536, v{VXR+1}
    s_mov_b32 s47, 0xffff0000
    v_bfe_u32 v12, v{VL}, 2, 2            ; e
    v_lshl_add_u32 v13, v15, 3, v12       ; row = 8g+e
    v_lshlrev_b32 v13, 8, v13
    v_and_b32 v14, 1, v15
    v_lshl_add_u32 v12, v14, 2, v12       ; sigma
    s_lshl_b32 s41, s20, 1
    v_xor_b32 v12, s41, v12
    v_lshl_add_u32 v13, v12, 5, v13
    v_and_b32 v12, 3, v{VL}
    v_lshl_add_u32 v{VWR}, v12, 3, v13
    v_xor_b32 v{VWR+1}, 32, v{VWR}
    ; smfmac A: ones where ((row>>1)&1) == (g>>1) ; index 0x4444 / 0xeeee by row parity
    v_bfe_u32 v12, v{VL}, 1, 1
    v_lshrrev_b32 v13, 5, v{VL}
    v_cmp_eq_u32 vcc, v12, v13
    v_mov_b32 v12, 0x3f803f80
    v_and_b32 v13, 1, v{VL}
    v_cndmask_b32 v12, 0, v12, vcc
    v_mul_u32_u24 v13, 0xaaaa, v13
    v_add_u32 v{VIDX}, 0x4444, v13
    v_accvgpr_write_b32 a248, v12
    v_accvgpr_write_b32 a249, v12
    v_accvgpr_write_b32 a250, v12
    v_accvgpr_write_b32 a251, v12
    v_mov_b32 v{VT}, 0
    s_lshl_b32 s40, s2, 2
    s_add_u32 s40, s40, {FL_P}
    s_lshl_b32 s41, s42, 8
    s_lshr_b32 s42, s2, 4
    s_lshl_b32 s27, s42, 2
    s_add_u32 s41, s41, s27
    s_add_u32 s41, s41, {FL_Q}
    v_mov_b32 v{VPS}, {OOB}
    v_writelane_b32 v{VPS}, s40, 0
    v_writelane_b32 v{VPS}, s41, 1
    s_lshl_b32 s40, s65, 3
    s_add_u32 s40, s40, {FL_P}
    v_lshl_add_u32 v{VPP}, v{VL}, 2, s40
    s_lshl_b32 s41, s42, 8
    s_add_u32 s41, s41, {FL_Q-128}
    v_lshl_add_u32 v12, v{VL}, 2, s41
    v_cmp_gt_u32 vcc, 32, v{VL}
    s_lshl_b32 s41, s20, 30
    v_or_b32 v{VPS}, s41, v{VPS}
    v_cndmask_b32 v{VPP}, v12, v{VPP}, vcc
    v_or_b32 v{VPP}, s41, v{VPP}
    """)
    for r in range(8): a(f"v_accvgpr_write_b32 a{240+r}, 0")
    p_ld = []
    for r, (reg, off) in enumerate([(2,0),(2,2048),(3,0)]):
        p_ld.append(split(f"buffer_load_dwordx2 v[{K0+2*r}:{K0+2*r+1}], v{VKA+reg}, s[16:19], 0 offen offset:{off} {KNT}", ("KV",)))
    for r in range(8):
        pre_ = f"s_mov_b32 s28, {4096*(r>>1)}\n"
        p_ld.append(split((pre_ if r % 2 == 0 else "") + f"buffer_load_dwordx2 v[{K0+6+2*r}:{K0+7+2*r}], v{VKA}, s[16:19], s28 offen offset:{2048*(r&1)} {KNT}", ("KV",)))
        p_ld.append(split(f"buffer_load_dwordx2 v[{V0+2*r}:{V0+2*r+1}], v{VKA}, s[12:15], s28 offen offset:{2048*(r&1)} {KNT}", ("KV",)))
    for i in range(2):
        pre_ = "s_mov_b32 s12, s62\ns_mov_b32 s13, s63\ns_mov_b32 s14, 8192\n" if i == 0 else ""
        p_ld.append(split(pre_ + f"buffer_load_dwordx4 v[{W0+4*i}:{W0+4*i+3}], v{VWA}, s[12:15], 0 offen offset:{16*i}", ("KV",)))
    def red(r, t):
        o = []
        for ctl in ("quad_perm:[1,0,3,2]", "quad_perm:[2,3,0,1]", "row_half_mirror", "row_mirror"):
            o.append(f"s_nop 1\nv_add_f32_dpp v{r}, v{r}, v{r} {ctl} row_mask:0xf bank_mask:0xf")
        o += [f"v_mov_b32 v{t}, v{r}", f"s_nop 1\nv_permlane16_swap_b32 v{r}, v{t}", f"s_nop 1\nv_add_f32 v{r}, v{r}, v{t}"]
        return o
    rne = lambda d, s_: [f"v_cvt_pk_bf16_f32 v{d}, v{s_}, v{s_}", f"v_and_b32 v{d}, s47, v{d}"]
    M_ = TT + 32; S_ = TT + 36
    st = []
    for d in range(16): st += [f"v_lshlrev_b32 v{TT+2*d}, 16, v{Q0+d}", f"v_and_b32 v{TT+2*d+1}, s47, v{Q0+d}"]
    st += [f"v_add_f32 v{M_}, v{TT}, v{TT+1}", f"v_add_f32 v{M_+1}, v{TT+2}, v{TT+3}"]
    for d in range(4, 32): st.append(f"v_add_f32 v{M_+(d&1)}, v{M_+(d&1)}, v{TT+d}")
    st += [f"v_add_f32 v{M_}, v{M_}, v{M_+1}"] + red(M_, M_+1) + [f"v_mul_f32 v{M_}, {f2u(1/1024.)}, v{M_}"]
    for d in range(32): st.append(f"v_sub_f32 v{TT+d}, v{TT+d}, v{M_}")
    st += [f"v_mul_f32 v{S_}, v{TT}, v{TT}", f"v_mul_f32 v{S_+1}, v{TT+1}, v{TT+1}"]
    for d in range(2, 32): st.append(f"v_fmac_f32 v{S_+(d&1)}, v{TT+d}, v{TT+d}")
    st += [f"v_add_f32 v{S_}, v{S_}, v{S_+1}"] + red(S_, S_+1) + [f"v_mul_f32 v{S_}, {f2u(1/1024.)}, v{S_}"]
    st += rne(M_, M_) + rne(S_, S_) + [f"v_add_f32 v{S_}, {f2u(1e-5)}, v{S_}"] + rne(S_, S_) + [f"v_sqrt_f32 v{S_}, v{S_}\ns_nop 0"] + rne(S_, S_)
    C0 = -2*0.7978845608028654*math.log2(math.e); C1 = C0*0.044715
    st += [f"v_rcp_f32 v{TT}, v{S_}", f"v_mul_f32 v{M_+3}, v{S_}, v{S_}", f"v_mul_f32 v{M_+1}, {f2u(C0)}, v{TT}", f"v_mul_f32 v{TT+1}, v{TT}, v{TT}",
           f"v_mul_f32 v{TT}, {f2u(C1)}, v{TT}", f"v_mul_f32 v{M_+2}, v{TT}, v{TT+1}"]
    p_st = [It(lambda: wait(vm=[("Q",)]))] + [T(x) for x in st]
    p_kv = [It(lambda: wait(vm=[("KV",)])),
            ] + split(f"s_mov_b32 s12, s36\ns_mov_b32 s13, s37\ns_mov_b32 s14, 32768\nbuffer_store_dwordx4 v[{M_}:{M_+3}], v{VSA}, s[12:15], 0 offen sc1\ns_mov_b32 s16, s34\ns_mov_b32 s17, s35", ("PS",))
    KX = 154; WX = 176; VX = 184; RX = 192
    for c in range(2):
        o = []
        for e in range(2):
            for h in range(2): o += [f"v_lshlrev_b32 v{WX+4*e+2*h}, 16, v{W0+4*c+2*e+h}", f"v_and_b32 v{WX+4*e+2*h+1}, s47, v{W0+4*c+2*e+h}"]
        for r in range(11): o += [f"v_lshlrev_b32 v{KX+2*r}, 16, v{K0+2*r+c}", f"v_and_b32 v{KX+2*r+1}, s47, v{K0+2*r+c}"]
        for hf_ in range(2):
            for t in range(4): o += [f"v_lshlrev_b32 v{VX+2*t}, 16, v{V0+2*(4*hf_+t)+c}", f"v_and_b32 v{VX+2*t+1}, s47, v{V0+2*(4*hf_+t)+c}"]
            for t in range(4):
                for e in range(2): o.append(f"v_mul_f32 v{RX+2*t+e}, v{KX+2*(4*hf_+t)+e}, v{WX+4*e+3}")
            for j in (2, 1, 0):
                for t in range(4):
                    for e in range(2): o.append(f"v_fmac_f32 v{RX+2*t+e}, v{KX+2*(4*hf_+t+3-j)+e}, v{WX+4*e+j}")
            for t in range(4):
                for e in range(2): o.append(f"v_mul_f32 v{RX+2*t+e}, v{RX+2*t+e}, v{VX+2*t+e}")
            for e in range(2):
                ch = 2*c + e
                o += [f"v_cvt_pk_bf16_f32 v{Q0+4*ch+2*hf_}, v{RX+e}, v{RX+2+e}", f"v_cvt_pk_bf16_f32 v{Q0+4*ch+2*hf_+1}, v{RX+4+e}, v{RX+6+e}"]
        p_kv += [T(x) for x in o]
        for e in range(2):
            ch = 2*c + e
            p_kv += [vm(("PS",), f"buffer_store_dwordx4 v[{Q0+4*ch}:{Q0+4*ch+3}], v{VUA}, s[16:19], 0 offen offset:{1024*ch} sc1")]
    p_kv += split(f"s_mov_b32 s12, s32\ns_mov_b32 s13, s33\ns_mov_b32 s14, 256\nbuffer_load_dword v{VFL+2}, v{VT}, s[12:15], 0 offen", ("N",))
    def nonce_chk(lb):
        return f"""
        s_mov_b32 s41, 0
        {L(lb)}:
        v_readfirstlane_b32 s44, v{VFL+2}
        s_add_u32 s41, s41, 1
        s_nop 3
        s_cmp_lg_u32 s44, 0
        s_cbranch_scc1 {L(lb)}_ok
        s_cmp_gt_u32 s41, {SPIN}
        s_cbranch_scc1 {L(lb)}_ok
        s_sleep 2
        buffer_load_dword v{VFL+2}, v{VT}, s[12:15], 0 offen offset:128 sc1
        s_waitcnt vmcnt(0)
        s_branch {L(lb)}
        {L(lb)}_ok:
        """
    where = {u: ("a", 16*u) for u in range(15)}
    fr = {"x": ("v", 0), "w": ("v", 60)}
    cur = {}
    def acc(u, f): k, b = where[u]; return f"{k}[{b+4*f}:{b+4*f+3}]"
    def xf(n, u): k, b = cur[("x", n)]; return f"{k}[{b+4*u}:{b+4*u+3}]"
    def wf(n, f, h=None, w=4):
        k, b = cur[("w", n)]; b += 16*(n&1) + 4*f
        return f"{k}[{b}:{b+w-1}]" if h is None else f"{k}[{b+2*h}:{b+2*h+1}]"
    def rd_w(n, f, h):
        cur.setdefault(("w", n), fr["w"])
        LG.issue(("w", n)); return f"ds_read_b64_tr_b16 {wf(n,f,h)}, v{VWR+(f&1)} offset:{(n % 4)*16384 + (f>>1)*8192 + h*1024}"
    def rd_x(n, u):
        cur.setdefault(("x", n), fr["x"])
        LG.issue(("x", n, u)); sl = (n//2) % 3; return f"ds_read_b128 {xf(n,u)}, v{(236 if sl == 2 else VXR)+(n&1)} offset:{2048*u + (32768 if sl == 1 else 0)}"
    if WARM:
        a(wait(vm=[("Q",)]))
        a(f"""
        s_mov_b64 exec, 0
        s_cmp_eq_u32 s20, 0
        s_cbranch_scc1 {L('w')}0
        s_cmp_eq_u32 s20, 1
        s_cbranch_scc1 {L('w')}1
        s_cmp_eq_u32 s20, 2
        s_cbranch_scc1 {L('w')}2
        s_branch {L('w')}3
        {L('wback')}:
        s_mov_b64 exec, -1
        """)
    a(wait(vm=[("W", 0), ("X", 0)]) + "\ns_barrier")
    stamp()
    if FINE1: a("s_memtime s[28:29]".replace("28:29", "42:43") if False else "")
    for f in range(4): a(rd_w(0, f, 0)); a(rd_w(0, f, 1))
    for u in range(15): a(rd_x(0, u))
    a("s_waitcnt lgkmcnt(0)"); LG.drain()
    lbl = [0]
    def step(n, extra=(), stream=None, mig=()):
        first = n == 0; last = n == 31
        seq = [("m", m >> 2, (m & 3) if (m >> 2) % 2 == 0 else 3 - (m & 3)) for m in range(60)]
        for pos, f in (((46, 2), (34, 0)) if not last else ((4, 2), (2, 0))): seq.insert(pos, ("s", f))
        G = lambda m: [i for i, e in enumerate(seq) if e[0] == "m"][m]
        gp = Gaps(62)
        BG = G(7); END = G(54)
        for g, fn in extra:
            if g < 0: gp.add(BG, fn)
        def dobar():
            LG.drain()
            assert last or (VM.ops.count(("W", n+1)) == 4 and VM.ops.count(("X", (n+1)//2)) == 8), n
            w = VM.need([("W", n+1)] + ([("X", (n+1)//2)] if n & 1 else []))
            fine = ((f"\nv_writelane_b32 v239, s40, {n-1}" if n else "") + "\ns_memtime s[40:41]") if FINE1 and n < 15 else ""
            if FINE1 and n >= 15: fine = (f"\nv_writelane_b32 v239, s{40 if n == 15 else 62}, {n-1}") + "\ns_memtime s[62:63]"
            if FINE1 and last: fine += "\ns_nop 0\nv_accvgpr_write_b32 a252, v239"
            return f"s_waitcnt {w+' ' if w else ''}lgkmcnt(0)\ns_barrier" + fine
        gp.add(BG, dobar, 2)
        if not last:
            gp.add(G(8), lambda: rd_x(n+1, 0), lds=True); gp.add(G(9), lambda: rd_x(n+1, 1), lds=True)
            for f in range(4):
                for h in range(2): gp.add(G(10 + 4*f + 2*h), lambda f=f, h=h: rd_w(n+1, f, h), lds=True)
            for u in range(2, 14): gp.add(G(4*u+3), lambda u=u: rd_x(n+1, u), lds=True)
        gp.add(END, lambda: "s_cmp_lt_u32 s21, 7", 2)
        def ordered(its, starts, g1=END):
            g = 0
            for it, st_ in zip(its, starts): g = gp.force(it, min(max(g, st_), g1-1), g1, it.w, it.lds)
        if pend:
            if n + LW < 32: pend.extend(w_items(n))
            pend.extend(x_items(n))
            its = [pend.pop(0) for _ in range(min(len(pend), 18))]
            ordered(its, [BG + 1 + (i*44)//len(its) for i in range(len(its))])
        else:
            its = []; sts = []
            if n + LW < 32: its += w_items(n); sts += [BG+1, BG+2, G(13), G(17), G(21), G(25)]
            if xjob(n)[0] < 16: its += x_items(n); sts += [G(26), G(27), G(29), G(36), G(42), G(48)]
            ordered(its, sts)
        if ROT and n + LW + ROT < 32:
            k = n + LW + ROT
            ordered(split(f"s_cmp_eq_u32 s21, {k % 9}|s_cselect_b32 s42, {(k-ROT)*32*7168}, s39\nbuffer_load_dword v{VPF+1}, v{VPF}, s[8:11], s42 offen {WNT}", ("R",)), [0, 2])
        ex = sorted([(g, i, fn) for i, (g, fn) in enumerate(extra) if g >= 0], key=lambda x: x[:2])
        ordered([fn for g, i, fn in ex], [G(g) for g, i, fn in ex])
        for u, dst, g0 in mig:
            src = where[u][1]; post = g0 >= 4*u + 12
            assert post or g0 + 60 >= 4*u + 12
            ordered([T(f"v_accvgpr_read_b32 v{dst+r}, a{src+r}") for r in range(16)], [G(g0)]*16, END if post else G(4*u - 3))
            if not post: where[u] = ("v", dst)
        g = 0
        while stream:
            it = stream[0]
            g = gp.place(it, g, END, min(it.w, 2), it.lds)
            if g is None: break
            stream.pop(0)
        over[0] += sum(max(0, c - 2) for c in gp.c)
        for i, e in enumerate(seq):
            if e[0] == "s":
                a(f"v_smfmac_f32_16x16x64_bf16 a[{240+2*e[1]}:{243+2*e[1]}], a[248:251], {wf(n,e[1],w=8)}, v{VIDX}")
            else:
                _, u, f = e; m = 4*u + (f if u % 2 == 0 else 3 - f)
                if m % 8 == 0:
                    a(wait(lg=[("x", n, u), ("x", n, min(u+1, 14))] + ([("w", n)] if m == 0 else [])))
                if m == 56:
                    lbl[0] += 1
                    a(f"s_cbranch_scc1 {L('sk')}{lbl[0]}")
                c = "0" if first else acc(u, f)
                a(f"v_mfma_f32_16x16x32_bf16 {acc(u,f)}, {wf(n,f)}, {xf(n,u)}, {c}")
                if m == 59:
                    a(f"{L('sk')}{lbl[0]}:")
                    if not last: a(rd_x(n+1, 14))
            for fn in gp.g[i]: a(fn())
        for u, dst, g0 in mig: where[u] = ("v", dst)
    over = [0]
    def spin(lb, reg, lanes, soff, mask, tmp="s24", sleep=4):
        lo, hi = mask & 0xffffffff, mask >> 32
        return f"""
        s_cmp_eq_u32 s20, 0
        s_cbranch_scc0 {L(lb)}_ok
        s_mov_b32 {tmp}, 0
        {L(lb)}:
        v_cmp_eq_u32 vcc, s44, v{reg}
        s_add_u32 {tmp}, {tmp}, 1
        s_nop 3
        s_andn2_b32 vcc_lo, {lo}, vcc_lo
        s_andn2_b32 vcc_hi, {hi}, vcc_hi
        s_cmp_eq_u64 vcc, 0
        s_cbranch_scc1 {L(lb)}_ok
        s_cmp_gt_u32 {tmp}, {SPIN}
        s_cbranch_scc1 {L(lb)}_ok
        s_sleep {sleep}
        buffer_load_dword v{reg}, v{lanes}, s[48:51], {soff} offen sc1
        s_waitcnt vmcnt(0)
        s_branch {L(lb)}
        {L(lb)}_ok:
        """
    PMASK = 0x0000ffff3fffffff
    CVB = 114688; HB = 448; UB = HB + 4096 + 64; WSZ = 8704; STB = 98304
    st_setup = f"""
        s_mov_b32 s12, s36
        s_mov_b32 s13, s37
        s_lshl_b32 s40, s65, 8
        s_add_u32 s14, s40, 3840
        s_lshl_b32 s29, s20, 12
        s_add_u32 m0, s29, {STB}"""
    pf_setup = f"""
        s_mov_b32 s16, s52
        s_mov_b32 s17, s53
        s_mov_b32 s18, 7340032
        s_lshl_b32 s61, s2, 2
        s_add_u32 s61, s61, s20                 ; channel d
        s_lshr_b32 s28, s22, 2
        s_mul_i32 s28, s28, 9
        s_add_u32 s28, s28, s21
        s_and_b32 s42, s22, 3
        s_lshr_b32 s41, s3, 1
        s_cmp_eq_u32 s64, 1|s_cselect_b32 s28, 63, s28|s_cselect_b32 s42, s41, s42
        s_lshl_b32 s28, s28, 2
        s_add_u32 s28, s28, s20
        s_lshl_b32 s42, s42, 2
        s_lshr_b32 s42, 0x2130, s42
        s_and_b32 s42, s42, 3
        s_lshr_b32 s41, s28, 7
        s_mul_i32 s41, s41, 384
        s_add_u32 s28, s28, s41
        s_lshl_b32 s42, s42, 7
        s_add_u32 s28, s28, s42
        s_mul_i32 s28, s28, 7168
        s_mov_b32 s45, s28
        v_min_u32 v{VFL+4}, 55, v{VL}
        v_lshlrev_b32 v{VFL+4}, 7, v{VFL+4}"""
    pf = f"buffer_load_dword v{VFL+5}, v{VFL+4}, s[16:19], s28 offen"
    pf2 = f"""
        s_mov_b32 s16, s56
        s_mov_b32 s17, s57
        s_mov_b32 s18, 4194304
        s_lshl_b32 s28, s61, 12
        v_min_u32 v{VFL+4}, 31, v{VL}
        v_lshlrev_b32 v{VFL+4}, 7, v{VFL+4}
        buffer_load_dword v{VFL+5}, v{VFL+4}, s[16:19], s28 offen"""
    cv_setup = f"""
        s_mov_b32 s18, 4194304
        s_mul_i32 s60, s20, {WSZ}
        s_add_u32 s60, s60, {CVB}
        s_lshl_b32 s28, s61, 12
        s_add_u32 m0, s60, {HB}"""
    cv_h = lambda i: f"buffer_load_dwordx4 v{VL16}, s[16:19], s28 offen offset:{1024*i} lds"
    cv_setup2 = f"""
        s_mov_b32 s16, s34
        s_mov_b32 s17, s35
        s_add_u32 m0, s60, {UB}
        s_lshr_b32 s28, s2, 4
        s_lshl_b32 s28, s28, 12
        s_and_b32 s41, s2, 15
        s_lshl_b32 s41, s41, 6
        s_add_u32 s28, s28, s41
        s_lshl_b32 s41, s20, 10
        s_add_u32 s28, s28, s41
        v_lshrrev_b32 v{VFL+4}, 2, v{VL}
        v_lshlrev_b32 v{VFL+4}, 16, v{VFL+4}
        v_and_b32 v243, 48, v{VL16}
        v_add_u32 v{VFL+4}, v{VFL+4}, v243"""
    cv_u = lambda i: f"buffer_load_dwordx4 v{VFL+4}, s[16:19], s28 offen offset:{1024*i} lds\ns_add_u32 s28, s28, {16*65536-1024}"
    cv_setup3 = f"""
        s_mov_b32 s16, s58
        s_mov_b32 s17, s59
        s_mov_b32 s18, 2048
        s_lshl_b32 s28, s61, 1
        v_mov_b32 v{VFL+3}, 0"""
    cv_d = f"buffer_load_ushort v{VFL+3}, v{VFL+3}, s[16:19], s28 offen"
    zp = [f"v_mov_b32 v240, 0\nv_lshl_add_u32 v241, v{VL}, 2, s60", f"v_min_u32 v242, 47, v{VL}\nv_lshl_add_u32 v242, v242, 2, s60",
          f"v_and_b32 v243, 15, v{VL}\nv_lshl_add_u32 v243, v243, 2, s60",
          "ds_write_b32 v241, v240", "ds_write_b32 v242, v240 offset:256", f"ds_write_b32 v243, v240 offset:{UB-64}"]
    def lg(txt):
        def f(): LG.issue(("z",)); return txt
        return It(f, 1, True)
    CS = 224; P = 208; O0 = 240; TA = 92; SR = 80
    NT = 8; RB = 256; UNIT = 8192; RP = 14; NSTEP = 56
    HS_ = 3072 if HSK else 2048; VHO = 236
    ACC = 64; DU = 0; TMP = 32; VCA = 204; VCB = 205; VCU = 206; VCD = 207
    cva = f"""
    v_bfe_u32 v244, v{VL}, 4, 1
    v_lshlrev_b32 v244, 2, v244
    v_and_b32 v245, 3, v{VL}
    v_add_u32 v244, v244, v245
    v_lshrrev_b32 v246, 5, v{VL}
    v_sub_u32 v244, v244, v246
    v_lshlrev_b32 v244, 6, v244
    v_bfe_u32 v247, v{VL}, 2, 2
    v_lshlrev_b32 v{VCD}, 3, v247
    v_sub_u32 v244, v244, v{VCD}
    s_add_u32 s25, s60, {HB-328-32}
    v_add_u32 v{VCA}, s25, v244
    v_bfe_u32 v244, v{VL}, 4, 1
    v_lshlrev_b32 v244, 5, v244
    v_add_u32 v245, v245, v247
    v_lshl_add_u32 v244, v245, 3, v244
    v_lshl_add_u32 v244, v246, 6, v244
    s_add_u32 s25, s60, {UB-56}
    v_add_u32 v{VCB}, s25, v244
    v_lshl_add_u32 v{VCU}, v{VL}, 1, s60""".strip().split("\n")
    def af(s_, q, h=None): b = 32*s_ + 4*q; return f"a[{b}:{b+3}]" if h is None else f"a[{b+2*h}:{b+2*h+1}]"
    def bf(s_, p, h=None): b = 64 + 32*s_ + 4*p; return f"a[{b}:{b+3}]" if h is None else f"a[{b+2*h}:{b+2*h+1}]"
    def reads(r):
        T_ = []
        for i in range(8):
            m = 4*i - r; e = 4*i + r
            T_.append(f"ds_read_b64_tr_b16 {af(r&1,i,0)}, v{VCA} offset:{128*(m+3)+32}")
            T_.append(f"ds_read_b64_tr_b16 {af(r&1,i,1)}, v{VCA} offset:{128*(m+3)}")
            T_.append(f"ds_read_b64_tr_b16 {bf(r&1,i,0)}, v{VCB} offset:{128*e}")
            T_.append(f"ds_read_b64_tr_b16 {bf(r&1,i,1)}, v{VCB} offset:{128*e+32}")
        return T_
    eh_s = f"""
        s_add_u32 s12, s36, {WS_HF}|s_addc_u32 s13, s37, 0
        s_cmp_eq_u32 s64, 1|s_cselect_b32 s14, 0, {64*112*HS_}
        s_lshl_b32 s41, s22, 2
        s_add_u32 s41, s41, s20
        {"s_and_b32 s40, s22, 3@s_lshl_b32 s40, s40, 1@s_sub_u32 s41, s41, s40@s_lshr_b32 s40, s20, 1@s_mul_i32 s40, s40, 6@s_add_u32 s41, s41, s40".replace("@", chr(10)) if PAIR1 else ""}
        s_lshr_b32 s40, s65, 1
        s_mul_i32 s40, s40, 112
        s_add_u32 s41, s41, s40
        s_mul_i32 s41, s41, {HS_}
        s_and_b32 s40, s65, 1|s_cselect_b32 s46, {112*HS_}, 0
        s_sub_u32 s47, {112*HS_}, s46
        s_sub_u32 s41, s41, s47
        s_add_u32 s29, s29, {STB}""".strip().split("\n")
    hoff = [f"v_cmp_lt_u32 vcc, 23, v{VL}", f"v_mov_b32 v{VHO}, v{VL16}", f"v_add_u32 v{VHO+1}, {128 if HSK else 0}, v{VL16}", f"v_cndmask_b32 v{VHO}, v{VHO}, v{VHO+1}, vcc",
            f"v_cmp_lt_u32 vcc, 15, v{VL}", f"v_add_u32 v{VHO+1}, {1152 if HSK else 1024}, v{VL16}", f"v_add_u32 v241, {1280 if HSK else 1024}, v{VL16}", f"v_cndmask_b32 v{VHO+1}, v{VHO+1}, v241, vcc"]
    eh_v = [f"v_and_b32 v240, 48, v{VL}", "v_lshrrev_b32 v241, 2, v240", "v_add_lshl_u32 v240, v240, v241, 2",
            f"v_and_b32 v{VT}, 15, v{VL}", f"v_lshl_add_u32 v{VT}, v{VT}, 4, s29",
            f"v_cmp_eq_u32 vcc, s40, v{VFL+3}x", f"s_nop 1", f"v_cndmask_b32 v216, v{VHO+1}, v{VHO}, vcc", f"v_cndmask_b32 v217, v{VHO}, v{VHO+1}, vcc"]
    eh_v = [x.replace(f"v{VFL+3}x", "v218") for x in ["v_mov_b32 v218, 0"] + eh_v]
    eh_c = [f"v_accvgpr_read_b32 v{208+r}, a{240+r}" for r in range(8)] + [f"v_add_f32 v{208+2*f}, v{208+2*f}, v{209+2*f}" for f in range(4)]
    eh_p = [f"ds_bpermute_b32 v{CS+4*f+r}, v240, v{208+2*f} offset:{4*r}" for f in range(4) for r in range(4)]
    NL, NS_, NK_ = P0AT
    stream = []; sig_at = None
    migs = {}
    if MIG:
        migs = {19: [(0, 92, 12), (4, 108, 28)], 20: [(1, 124, 16), (5, 140, 32)], 21: [(2, 156, 20), (6, 172, 36)], 22: [(3, 188, 24)],
                24: [(11, 0, 12), (7, 16, 40)], 25: [(10, 32, 12), (8, 48, 44)], 26: [(9, 64, 12)]}
        if MIGN == 7:
            migs = {22: [(0, 92, 12)], 23: [(1, 108, 16)], 24: [(2, 124, 20)], 25: [(3, 140, 24)], 26: [(4, 156, 28)], 27: [(5, 172, 32)], 28: [(6, 188, 36)]}
    at = lambda g, its: [(g, it) for it in its]
    for n in range(32):
        ex = []
        NLS = -(-21 // KPS)
        if NL <= n < NL + NLS:
            its = p_ld[KPS*(n-NL):KPS*(n-NL)+KPS]
            for g, it in zip({7: (15, 23, 27, 33, 39, 45, 50), 6: (15, 23, 33, 39, 45, 50), 4: (15, 33, 39, 50), 3: (15, 33, 50), 2: (33, 50), 1: (50,)}[KPS], its): ex += at(g, it)
        if n == NS_: stream += p_st
        if n == max(NK_, NL + NLS + 1): stream += p_kv
        if sig_at is None and n > NK_ and not stream and ("N",) in VM.ops: sig_at = n + 2
        if n == sig_at:
            ex += [(-1, lambda: wait(vm=[("PS",), ("N",)])), (8, It(lambda: nonce_chk("nc"), 2)), (12, vm(("F",), f"buffer_store_dword v{VFL+2}, v{VPS}, s[48:51], 0 offen sc1"))]
            assert n <= (18 if MIG and MIGN == 12 else 21), n
        nw = 56 // TRK; ns = 32 // TRK; t0 = 29 - nw - ns
        assert sig_at is None or sig_at - 1 <= t0 or n < sig_at, (sig_at, t0)
        slow = f"\ns_and_b32 s42, s22, 3\ns_cmp_eq_u32 s42, 1|s_cselect_b32 s18, 0, s18" if SLOWX else ""
        if n == t0: ex += at(10, split(pf_setup.replace("55", str(TRK-1)) + slow))
        if n == t0 + nw: ex += at(40, split("s_mov_b32 s16, s56\ns_mov_b32 s17, s57\ns_mov_b32 s18, 4194304\ns_lshl_b32 s28, s61, 12" + (slow if SLOWS else "")))
        if t0 <= n < t0 + nw + ns: ex += at(50, split(pf + f"\ns_add_u32 s28, s28, {128*TRK}", ("PF",)))
        if n == 23: ex += [(43, vm(("PC",), f"buffer_load_dword v{VT}, v{VPP}, s[48:51], 0 offen sc1"))]
        if n == 26: ex += [(-1, lambda: wait(vm=[("PC",)]) + "\n" + spin("pc", VT, VPP, "0", PMASK, tmp="s41"))]
        if n == 28: ex += at(27, split(st_setup)) + [(33+4*i, vm(("ST",), f"buffer_load_dwordx4 v{VL16}, s[12:15], s40 offen offset:{1024*i} lds")) for i in range(4)]
        if n == 29: ex += at(9, split(cv_setup)) + [(13+8*i, vm(("CV",), cv_h(i))) for i in range(4)] + at(40, split("\n".join(zp[:3]))) + at(46, [lg(x) for x in zp[3:]])
        if n == 30:
            ex += at(0, split(cv_setup2))
            for i in range(4): ex += at(17+8*i, split(cv_u(i), ("CV",)))
            ex += at(44, split(cv_setup3 + "\n" + cv_d, ("CV",)))
            stream += split("\n".join(cva))
        if n == 31:
            ex += at(0, split("\n".join(hoff))) + at(8, split("\n".join(eh_s))) + at(16, split("\n".join(eh_v + eh_c))) + at(30, [lg(x) for x in eh_p])
        if MIG and MIGN == 12 and n == 23: fr["x"] = ("a", 0); fr["w"] = ("a", 64)
        step(n, extra=ex, stream=stream, mig=migs.get(n, ()))
    print("gemm1: sig_at", sig_at, "over", over[0])
    assert not stream and sig_at
    stamp()
    a(wait(vm=[("ST",)]))
    a(f"ds_read_b128 v[{SR}:{SR+3}], v{VT}")
    LG.drain()
    fs(True)
    def epi(u):
        O = O0 + 4*(u & 1); MS = SR + 4*(u & 1)
        if where[u][0] == "v": B = where[u][1]
        else:
            B = TA
            for r in range(16): a(f"v_accvgpr_read_b32 v{B+r}, a{where[u][1]+r}")
        a("s_waitcnt lgkmcnt(0)")
        if u < 14: fs()
        if u < 14: a(f"ds_read_b128 v[{SR+4*((u+1)&1)}:{SR+3+4*((u+1)&1)}], v{VT} offset:{256*(u+1)}")
        if RSP and 9 <= u < 13:
            a(wait(vm=[("CV",)]))
            for x in reads(0)[8*(u-9):8*(u-8)]: a(x)
        G = [B+2*p for p in range(4)]; U = [B+8+2*p for p in range(4)]
        for p in range(8): a(f"v_pk_fma_f32 {pr(B+2*p)}, {pr(CS+2*p)}, {pr(MS)}, {pr(B+2*p)} op_sel_hi:[1,0,1] neg_lo:[0,1,0] neg_hi:[0,1,0]")
        for p in range(4): a(f"v_pk_mul_f32 {pr(P+2*p)}, {pr(G[p])}, {pr(G[p])}")
        for p in range(4): a(f"v_pk_fma_f32 {pr(P+2*p)}, {pr(P+2*p)}, {pr(MS+2)}, {pr(MS)} op_sel:[0,0,1] op_sel_hi:[1,0,1]")
        for p in range(4): a(f"v_pk_mul_f32 {pr(P+2*p)}, {pr(P+2*p)}, {pr(G[p])}")
        for r in range(8): a(f"v_exp_f32 v{P+r}, v{P+r}")
        for p in range(4): a(f"v_pk_mul_f32 {pr(G[p])}, {pr(G[p])}, {pr(U[p])}")
        for p in range(4): a(f"v_pk_fma_f32 {pr(P+2*p)}, {pr(P+2*p)}, {pr(MS+2)}, {pr(MS+2)} op_sel:[0,1,1] op_sel_hi:[1,1,1]")
        for r in range(8): a(f"v_rcp_f32 v{P+r}, v{P+r}")
        a(f"s_add_u32 s41, s41, {'s46' if u & 1 else 's47'}")
        for p in range(4): a(f"v_pk_mul_f32 {pr(G[p])}, {pr(G[p])}, {pr(P+2*p)}")
        for p in range(4): a(f"v_cvt_pk_bf16_f32 v{O+p}, v{G[p]}, v{G[p]+1}")
        a(f"buffer_store_dwordx4 v[{O}:{O+3}], v{216+(u&1)}, s[12:15], s41 offen sc1")
    assert where[0] == ("v", TA) or not MIG
    for u in range(14):
        if u == 13:
            assert MIG
            if not RSP:
                a(wait(vm=[("CV",)]))
                for x in reads(0): a(x)
        if L2PF and u == L2AT - 1:
            a(f"""
            s_mov_b32 s16, s52
            s_mov_b32 s17, s53
            s_mov_b32 s18, 7340032
            s_lshl_b32 s24, s38, 2
            s_add_u32 s24, s24, s20
            s_lshr_b32 s25, s24, 6
            s_and_b32 s24, s24, 63
            s_mul_i32 s25, s25, 1792
            s_mul_i32 s24, s24, 7
            s_add_u32 s24, s24, s25
            s_add_u32 s24, s24, 448
            s_lshl_b32 s24, s24, 11
            s_and_b32 s25, s3, 1
            s_lshl_b32 s25, s25, 10
            s_add_u32 s24, s24, s25
            v_min_u32 v{VFL+4}, 55, v{VL}
            v_lshrrev_b32 v{VFL+5}, 3, v{VFL+4}
            v_and_b32 v{VFL+4}, 7, v{VFL+4}
            v_lshlrev_b32 v{VFL+4}, 7, v{VFL+4}
            v_lshl_add_u32 v{VFL+4}, v{VFL+5}, 11, v{VFL+4}
            """)
        if L2PF and u >= L2AT and (u - L2AT) % 3 == 0 and (u - L2AT)//3 < L2PF:
            VM.issue(("PF",)); a(f"buffer_load_dword v{VFL+5}, v{VFL+4}, s[16:19], s24 offen\ns_add_u32 s24, s24, {448*2048}")
        epi(u); VM.issue(("HS",))
    a(f"s_cmp_lt_u32 s21, 7\ns_cbranch_scc1 {L('conv')}")
    epi(14)
    a(f"{L('conv')}:")
    fs(True)
    stamp()
    VWR2 = 196; T0_ = 36
    RHO = [31, 27, 22, 18, 13, 8, 8, 4] if REMAP else [0]*8
    g2s = f"""
    s_cmp_lt_u32 s3, 4|s_cselect_b32 s39, s24, s25
    s_and_b32 s41, s3, 3
    s_lshl_b32 s41, s41, 3
    s_lshr_b32 s39, s39, s41
    s_add_u32 s38, s38, s39
    s_and_b32 s38, s38, 31               ; gemm2 slot: slow gemm1 columns get fast gemm2 tiles
    s_lshr_b32 s61, s3, 1
    s_lshl_b32 s61, s61, 2
    s_and_b32 s39, s38, 3
    s_add_u32 s61, s61, s39              ; mt
    s_and_b32 s62, s3, 1
    s_lshl_b32 s62, s62, 2
    s_bfe_u32 s39, s38, 0x20002
    s_add_u32 s62, s62, s39              ; nt
    s_lshr_b32 s63, s38, 4               ; kh
    s_lshl_b32 s41, s20, 14
    {'s_and_b32 s39, s62, 3@s_lshl_b32 s42, s62, 8@s_lshl_b32 s39, s39, 7@s_sub_u32 s42, s42, s39'.replace('@', chr(10)) if PAIR2 else 's_lshl_b32 s42, s62, 8'}
    s_lshr_b32 s35, s42, 1
    s_add_u32 s41, s41, s42
    s_mul_i32 s43, s63, {NSTEP*32*2048}
    s_add_u32 s43, s43, s41
    s_add_u32 s8, s52, s43|s_addc_u32 s9, s53, 0
    s_sub_u32 s10, {NSTEP*32*2048}, s41
    s_lshl_b32 s45, s20, 12""".strip().replace("|", "@").split("\n")
    g2s = [f"s_mov_b32 s24, {sum(r << 8*i for i, r in enumerate(RHO[:4]))}", f"s_mov_b32 s25, {sum(r << 8*i for i, r in enumerate(RHO[4:]))}"] + [x.replace("@", "\n") for x in g2s]
    g2h = f"""
    s_lshl_b32 s40, s61, 2
    s_add_u32 s40, s40, s20              ; tokgroup
    s_mul_i32 s41, s40, 112
    s_mul_i32 s42, s63, {NSTEP}
    s_add_u32 s41, s41, s42
    s_mul_i32 s41, s41, {HS_}
    s_add_u32 s41, s41, {WS_HF}
    s_add_u32 s4, s36, s41|s_addc_u32 s5, s37, 0
    s_mov_b32 s6, {NSTEP*HS_}""".strip().split("\n")
    g2h = [x.replace("|", "\n") for x in g2h] + [x.replace(f"v{VHO+1}", "v233").replace(f"v{VHO}", "v232").replace("v241", f"v{T0_}") for x in hoff]
    def dma2(n):
        p = n >> 1
        head = [T(f"s_add_u32 m0, s45, {(p % (R//2))*2*UNIT}"), T(f"s_mov_b32 s26, {p*131072}")] if n % 2 == 0 else []
        return head + [vm(("W2", n), f"buffer_load_dwordx4 v{VWO2+i}, s[8:11], s26 offen offset:{1024*i} {W2NT} lds") for i in (2*(n&1), 2*(n&1)+1)]
    du = [f"ds_read_u16 v{DU+g}, v{VCU} offset:{UB+128*g}" for g in range(32)]
    du2 = [f"v_lshlrev_b32 v{VCD}, 16, v{VFL+3}"]
    for g in range(32): du2 += [f"v_lshlrev_b32 v{DU+g}, 16, v{DU+g}", f"v_mul_f32 v{DU+g}, v{VCD}, v{DU+g}"]
    g2addr = [f"v_bfe_u32 v{T0_}, v{VL}, 2, 3", f"v_lshlrev_b32 v{T0_+1}, 8, v{T0_}", f"v_lshrrev_b32 v{T0_+2}, 5, v{VL}", f"v_lshl_add_u32 v{T0_+1}, v{T0_+2}, 12, v{T0_+1}",
              f"v_and_b32 v{T0_+2}, 3, v{VL}", f"v_lshl_add_u32 v{T0_+1}, v{T0_+2}, 3, v{T0_+1}",
              "s_lshl_b32 s24, s63, 2", f"v_xor_b32 v{T0_}, s24, v{T0_}", f"v_lshl_add_u32 v{VWR2}, v{T0_}, 5, v{T0_+1}"] \
             + [f"v_xor_b32 v{VWR2+ft}, {ft<<5}, v{VWR2}" for ft in range(1, 8)] + ["s_mov_b32 s24, 65536"] \
             + [f"v_add_u32 v{208+ft}, s24, v{VWR2+ft}" for ft in range(8)] + [f"v_add_u32 v{224+ft}, s24, v{208+ft}" for ft in range(8)]
    g2dma = []
    for i in range(2):
        g2dma += [f"v_lshrrev_b32 v{T0_}, 4, v{VL}", f"v_add_u32 v{T0_}, {4*i}, v{T0_}", f"v_lshlrev_b32 v{T0_+1}, 1, v{T0_}", f"v_and_b32 v{T0_+2}, 15, v{VL}", f"v_xor_b32 v{T0_+2}, v{T0_+2}, v{T0_+1}",
                  f"v_and_b32 v{T0_+1}, 7, v{T0_+2}", f"v_lshlrev_b32 v{T0_+1}, 4, v{T0_+1}", f"v_and_b32 v{T0_+2}, 8, v{T0_+2}", f"v_lshl_add_u32 v{T0_+2}, v{T0_+2}, {6 if PAIR2 else 4}, v{T0_+1}",
                  f"v_lshl_add_u32 v{VWO2+i}, v{T0_}, 11, v{T0_+2}"]
    g2dma += [f"v_subrev_u32 v{VWO2+1}, 1024, v{VWO2+1}", f"v_add_u32 v{VWO2+2}, {65536-2048}, v{VWO2}", f"v_add_u32 v{VWO2+3}, {65536-2048}, v{VWO2+1}"]
    VHP = 192; VPR = 193; VYW = 194
    hp = f"""
    s_lshl_b32 s24, s61, 3
    s_mul_i32 s25, s24, 4682
    s_lshr_b32 s25, s25, 16
    s_min_u32 s25, s25, 7
    s_cmp_ge_u32 s24, 113|s_cselect_b32 s25, 8, s25
    s_add_u32 s24, s24, 7
    s_mul_i32 s27, s24, 4682
    s_lshr_b32 s27, s27, 16
    s_min_u32 s27, s27, 7
    s_cmp_ge_u32 s24, 113|s_cselect_b32 s27, 8, s27
    s_sub_u32 s27, s27, s25
    s_lshl_b32 s27, s27, 8
    s_lshl_b32 s25, s25, 8
    s_mul_i32 s24, s63, 48
    s_add_u32 s25, s25, s24
    v_and_b32 v{T0_}, 15, v{VL}
    v_lshrrev_b32 v{T0_+1}, 4, v{VL}
    v_mul_lo_u32 v{T0_+2}, v{T0_+1}, s27
    v_lshl_add_u32 v{T0_+2}, v{T0_}, 2, v{T0_+2}
    s_lshl_b32 s24, s20, 2
    v_add_u32 v{T0_+1}, s24, v{T0_+1}
    v_cmp_gt_u32 vcc, 2, v{T0_+1}
    v_mov_b32 v{T0_}, {OOB}
    s_lshl_b32 s24, s20, 6
    v_add_u32 v{T0_+1}, s24, v{VL}
    v_cndmask_b32 v{VHP}, v{T0_}, v{T0_+2}, vcc
    v_lshlrev_b32 v{T0_+2}, 2, v{T0_+1}
    v_cmp_gt_u32 vcc, 16, v{T0_+1}
    s_lshl_b32 s24, s20, 1
    s_add_u32 s24, s24, {CVB}
    v_cndmask_b32 v{VFL}, v{T0_}, v{T0_+2}, vcc
    v_lshl_add_u32 v{VYW}, v{VL}, 3, s24
    s_mov_b32 s28, 0
    s_brev_b32 s29, 1
    v_mov_b32 v{VYW+1}, 0""".strip().split("\n")
    hp = [x.replace("|", "\n") for x in hp]
    sg = ["s_lshl_b32 s34, s21, 8", "s_lshl_b32 s24, s22, 2", "s_add_u32 s34, s34, s24", "s_lshl_b32 s24, s64, 30", "s_add_u32 s34, s34, s24"]
    ACC2 = 128
    def acc2(ft, u): b = ACC2 + 4*(2*ft+u); return f"v[{b}:{b+3}]"
    def wf2(buf, ft, h=None):
        b = 32*buf + 4*ft
        return f"a[{b}:{b+3}]" if h is None else f"a[{b+2*h}:{b+2*h+1}]"
    AH = 128
    def hf(slot, u): b = AH + 8*slot + 4*u; return f"a[{b}:{b+3}]"
    def ld_h(n):
        return [T(f"s_mov_b32 s23, {HS_*n}")] + [vm(("H", n), f"buffer_load_dwordx4 {hf(n % HD, u)}, v{232+u}, s[4:7], s23 offen {HNT}") for u in range(2)]
    def rd_w2(n, ft, h, buf=None):
        LG.issue(("w", n, ft))
        return f"ds_read_b64_tr_b16 {wf2(n&1 if buf is None else buf, ft, h)}, v{(VWR2, 208, 224)[(n % R)//8]+ft} offset:{((n % R) % 8 >> 1)*2*UNIT + (n & 1)*2048 + h*8192}"
    Rg = lambda g, rho: ACC + 4*g + rho
    def combine(n):
        o = []
        for rho in (2, 1, 0):
            for k in range(4):
                g = 4*n + k
                prev = f"v{Rg(g-1, rho+1)}" if g else f"v{VYW+1}"
                o.append(f"v_cndmask_b32 v{TMP+k}, v{Rg(g,rho+1)}, {prev}, s[28:29]")
            for k in range(4):
                g = 4*n + k
                o.append(f"v_add_f32_dpp v{Rg(g,rho)}, v{TMP+k}, v{Rg(g,rho)} wave_ror:1 row_mask:0xf bank_mask:0xf")
        for k in range(4): o.append(f"v_add_f32 v{Rg(4*n+k,0)}, v{Rg(4*n+k,0)}, v{DU+4*n+k}")
        for k in (0, 2): o.append(f"v_cvt_pk_bf16_f32 v{DU+4*n+k}, v{Rg(4*n+k,0)}, v{Rg(4*n+k+1,0)}")
        for k in (0, 2): o += [f"ds_write_b16 v{VYW}, v{DU+4*n+k} offset:{512*(4*n+k)}", f"ds_write_b16_d16_hi v{VYW}, v{DU+4*n+k} offset:{512*(4*n+k+1)}"]
        return o
    XR = 48; YR = 24; ST = 40; T6 = 44; VXA = 216; XLB = 131072
    xa = f"""
    s_lshl_b32 s41, s40, 5
    s_lshl_b32 s43, s63, {8 if PAIR2 else 6}
    s_add_u32 s42, s35, s43              ; f0
    v_and_b32 v{VXA+2}, 15, v{VL}
    v_add_u32 v{VXA+2}, s41, v{VXA+2}    ; token
    v_lshrrev_b32 v{T0_}, 4, v{VL}
    v_lshl_add_u32 v{VXA+3}, v{T0_}, 2, s42    ; feature
    v_lshrrev_b32 v{VXA}, 3, v{VL}
    v_add_u32 v{VXA}, s41, v{VXA}
    v_lshlrev_b32 v{VXA}, 11, v{VXA}
    v_and_b32 v{VXA+1}, 7, v{VL}
    v_lshl_add_u32 v{VXA}, v{VXA+1}, 4, v{VXA}
    v_and_b32 v{VXA+1}, 15, v{VL}
    v_lshlrev_b32 v{VXA+1}, 7, v{VXA+1}
    v_lshl_add_u32 v{VXA+1}, v{T0_}, 3, v{VXA+1}
    s_add_u32 s24, s45, {XLB}
    v_add_u32 v{VXA+1}, s24, v{VXA+1}"""
    xd = f"s_mov_b32 s12, s30\ns_mov_b32 s13, s31\ns_mov_b32 s14, 4194304\ns_lshl_b32 s24, s42, 1\ns_add_u32 m0, s45, {XLB}\n"
    for i in range(4): xd += f"buffer_load_dwordx4 v{VXA}, s[12:15], s24 offen offset:{1024*i} lds\n" + (f"s_add_u32 s24, s24, {16384-1024}\n" if i < 3 else "")
    xr = [f"ds_read_b64 v[{XR+4*ft+2*u}:{XR+4*ft+2*u+1}], v{VXA+1} offset:{2048*u + 32*ft}" for ft in range(4) for u in range(2)]
    xs = f"v_lshlrev_b32 v22, 4, v{VXA+2}\ns_mov_b32 s12, s36\ns_mov_b32 s13, s37\ns_mov_b32 s14, 32768"
    for u in range(2): xs += f"\nbuffer_load_dwordx2 v[{ST+2*u}:{ST+2*u+1}], v22, s[12:15], 0 offen offset:{256*u}"
    def rdi(r):
        def mk(x, i):
            def f(): LG.issue(("c", r, i)); return x
            return It(f, 1, True)
        return [mk(x, j//4) for j, x in enumerate(reads(r))]
    pairs = [(q, n-q) for n in range(8) for q in range(n+1)]
    phases = [[(0, q, p) for q, p in pairs], [(1, q, p) for q, p in pairs], []]
    for grp in ((0, 1, 2), (3,), (4,), (5,), (6,), (7,)):
        for r in (2, 3): phases[2] += [(r, q, p) for q, p in pairs if q + p in grp]
    started = set(); cnt = 0
    pfq = [it for u_ in range(RP) for it in dma2(u_)]
    for ph, ms in enumerate(phases):
        a("s_waitcnt lgkmcnt(0)"); LG.drain()
        fs()
        NG = len(ms); gp = Gaps(NG, CCAP)
        def seqp(its, g0, g1=NG, step_=0):
            g = g0
            for i, it in enumerate(its): g = gp.force(it, min(max(g, g0 + int(i*step_)), g1-1), g1, CVW if getattr(it, "vm", False) else 1, getattr(it, "lds", False))
            return g
        if ph == SIGAT[0]:
            gp.add(SIGAT[1], lambda: wait(vm=[("HS",)]) + "\ns_barrier", 2)
            gp.add(SIGAT[1], vm(("F",), f"buffer_store_dword v{VFL+2}, v{VFL+1}, s[48:51], s34 offen sc1"))
        seqp(rdi(ph+1), 0)
        if ph == 0:
            seqp([lg(x) for x in du], 11)
            lpf = split(f"""
            s_mov_b32 s16, s52
            s_mov_b32 s17, s53
            s_and_b32 s42, s22, 3
            s_cmp_eq_u32 s42, 1|s_cselect_b32 s18, 7340032, 0
            s_mov_b32 s28, s45
            v_min_u32 v{VFL+4}, 55, v{VL}
            v_lshlrev_b32 v{VFL+4}, 7, v{VFL+4}
            buffer_load_dword v{VFL+5}, v{VFL+4}, s[16:19], s28 offen""", ("PF",)) if SLOWX else []
            g = seqp(lpf + [T(x) for x in sg + g2dma + g2s], 0)
            span = (NG-g-1) + PFEND + PF2; tot = len(pfq)
            k = (tot*(NG-g-1)) // span
            seqp(pfq[:k], g+1, NG, (NG-g-1)/k); pfq = pfq[k:]
        if ph == 1:
            k = len(pfq) if not PF2 else (tot*PFEND) // span
            seqp(pfq[:k], 0, NG, PFEND/k); pfq = pfq[k:]
            g = seqp([T(x) for x in du2 + g2h + g2addr + hp], 0)
        left = []
        if ph == 2:
            YB_ = 12
            if pfq: seqp(pfq, 0, NG, PF2/len(pfq))
            gp.add(YB_, lambda: (LG.drain(), "s_waitcnt lgkmcnt(0)\ns_barrier")[1], 2)
            gp.add(PHAT, vm(("PH",), f"buffer_load_dword v{VPR}, v{VHP}, s[48:51], s25 offen sc1"))
            def hchk():
                sv = a.l; a.l = []
                assert VM.ops.count(("W2", 3)) == 2
                a(wait(vm=[("PH",), ("W2", 3)]))
                if not TWO:
                    stamp(); a(spin("ph", VPR, VHP, "s25", 0xffffffff, sleep=PSL)); a("s_barrier"); stamp()
                else:
                    a(f"""
                    v_cmp_eq_u32 vcc, s44, v{VPR}
                    v_mov_b32 v{T0_+1}, {163836}
                    s_lshl_b32 s24, s20, 2
                    v_subrev_u32 v{T0_+2}, s24, v{T0_+1}
                    s_cmp_eq_u32 vcc_lo, -1
                    s_cselect_b32 s24, s6, 0
                    v_mov_b32 v{T0_}, s24
                    ds_write_b32 v{T0_+2}, v{T0_}
                    s_waitcnt lgkmcnt(0)
                    s_barrier
                    ds_read_b32 v{T0_}, v{T0_+1}
                    """)
                    LG.drain(); LG.issue(("hf",))
                t = "\n".join(a.l); a.l = sv; return t
            gp.add(HCHK, hchk, 6)
            H0 = HCHK + 1
            if TWO:
                gp.add(HCHK+1, vm(("PH",), f"buffer_load_dword v{VPR}, v{VHP}, s[48:51], s25 offen sc1"))
                gp.add(HCHK+3, lambda: wait(lg=[("hf",)]) + f"\nv_readfirstlane_b32 s6, v{T0_}\ns_nop 3", 6)
                H0 = HCHK + 4
            c3 = f"""
            s_lshl_b32 s24, s38, 2
            s_add_u32 s24, s24, s20
            s_cmp_ge_u32 s24, 64|s_cselect_b32 s41, {1792 - 64*C3}, 0
            s_mul_i32 s24, s24, {C3}
            s_add_u32 s24, s24, s41
            s_add_u32 s24, s24, 448
            s_lshl_b32 s24, s24, 11
            s_and_b32 s41, s3, 1
            s_lshl_b32 s41, s41, 10
            s_add_u32 s24, s24, s41
            s_add_u32 s24, s24, 384
            v_min_u32 v{T0_}, {C3-1}, v{VL}
            v_lshlrev_b32 v{T0_}, 11, v{T0_}
            s_mov_b32 s16, s52
            s_mov_b32 s17, s53
            s_mov_b32 s18, 7340032
            buffer_load_dword v{VFL+5}, v{T0_}, s[16:19], s24 offen
            """ if C3 else ""
            seqp(split(c3 + xa, ("E",)), 0, PHAT, 0.5)
            seqp([It(lambda ft=ft, h=h: rd_w2(0, ft, h), 1, True) for ft in range(NT) for h in range(2)], max(HCHK+1, 64), NG, 0.5)
            seqp([it for n_ in range(HB0-1) for it in ld_h(n_)], H0, NG, 0.5)
            g = 0
            for n_ in range(7):
                at_ = max(i for i, (r, q, p) in enumerate(ms) if q + p == n_) + 3
                for x in combine(n_):
                    w_ = x.startswith("ds_")
                    g2_ = gp.place(T(x), max(g, at_, YB_+1 if w_ else 0), NG, DPW if "dpp" in x else 1, w_) if not left else None
                    if g2_ is None: left.append(x)
                    elif not w_: g = g2_
        for i, (r, q, p) in enumerate(ms):
            n = p + q
            d = f"v[{ACC+16*n}:{ACC+16*n+15}]"
            c = d if n in started else "0"
            started.add(n)
            if FINE2 and ph == 2 and i in (12, 24, 36, 48, 54, 60): fs(True)
            if r == 3: a(wait(lg=[("c", 3, q), ("c", 3, p)]))
            a(f"v_mfma_f32_32x32x16_bf16 {d}, {af(r&1,q)}, {bf(r&1,p)}, {c}")
            for fn in gp.g[i]:
                t = fn()
                if CX:
                    keep = []
                    for x in t.split("\n"):
                        y = x.strip()
                        if "c" in CX and (y.startswith("v_cndmask_b32 v3") or "dpp" in y): continue
                        if "w" in CX and y.startswith("ds_write_b16"): continue
                        if "p" in CX and y.endswith(" lds"): continue
                        if "h" in CX and y.startswith("buffer_load_dwordx4 a["): continue
                        if "d" in CX and (y.startswith("ds_read_u16") or y.startswith("v_mul_f32 v") or y.startswith("v_lshlrev_b32")): continue
                        if "b" in CX and y == "s_barrier": continue
                        keep.append(x)
                    t = "\n".join(keep)
                a(t)
    print("conv leftover", len(left))
    for x in left: a(x)
    if len(left) < 12: a("s_nop 7\ns_nop 3")
    fs(True)
    for x in combine(7): a(x)
    a(f"""
    s_mov_b32 s27, s25
    s_lshl_b32 s25, s20, 12
    v_add_u32 v5, s25, v{VL16}
    v_add_u32 v6, {CVB}, v5
    s_lshl_b32 s24, s2, 14
    s_add_u32 s16, s36, {WS_Y4}
    s_addc_u32 s17, s37, 0
    s_mov_b32 s18, 4194304
    """)
    if TWO:
        stamp()
        a(f"s_cmp_lg_u32 s6, 0\ns_cbranch_scc1 {L('hrdy')}\ns_waitcnt vmcnt(0)")
        a(spin("ph", VPR, VHP, "s27", 0xffffffff, tmp="s41", sleep=PSL))
        a(f"s_waitcnt lgkmcnt(0)\ns_barrier\ns_mov_b32 s6, {NSTEP*HS_}")
        st_ = VM.save()
        for n_ in range(HB0-1):
            for it in ld_h(n_): a(it())
        VM.restore(st_)
        a(f"s_branch {L('hgo')}\n{L('hrdy')}:\ns_waitcnt lgkmcnt(0)\ns_barrier\n{L('hgo')}:")
        stamp()
    else: a("s_waitcnt lgkmcnt(0)\ns_barrier")
    LG.drain()
    fs()
    XF_ = 64; SF = 96; QO = 224
    setup_e = f"""
    v_lshrrev_b32 v13, 4, v{VL}
    v_lshlrev_b32 v16, 12, v{VXA+3}
    v_lshl_add_u32 v16, v{VXA+2}, 3, v16
    v_and_b32 v19, 1, v13
    v_lshlrev_b32 v19, 4, v19
    v_lshrrev_b32 v20, 1, v13
    v_lshl_add_u32 v19, v20, 3, v19
    v_add_u32 v19, s42, v19
    v_lshlrev_b32 v19, 1, v19
    v_lshl_add_u32 v19, v{VXA+2}, 11, v19
    v_add_u32 v20, 32768, v19
    s_lshr_b32 s27, s42, 6
    s_lshl_b32 s27, s27, 8
    s_add_u32 s27, s27, {FL_Y}
    s_add_u32 s56, s36, {WS_PX}|s_addc_u32 s57, s37, 0
    s_mov_b32 s58, {256*32768}
    s_mov_b32 s59, 0x20000
    s_lshl_b32 s32, s38, 3
    s_add_u32 s32, s32, s3
    s_lshl_b32 s32, s32, 15
    s_lshl_b32 s33, s20, 13
    s_add_u32 s32, s32, s33
    s_add_u32 s33, s32, 4096
    s_xor_b32 s34, s32, {128<<15}
    s_xor_b32 s35, s33, {128<<15}
    s_lshr_b32 s29, s44, 8
    s_lshr_b32 s46, s44, 16
    s_lshr_b32 s47, s44, 24
    v_mov_b32 v21, 0xff""".strip().split("\n")
    setup_e = [x.replace("|", "\n") for x in setup_e]
    if FINE or FINE2: setup_e = [x.replace("s32", "s60").replace("s33", "s65") for x in setup_e]
    PXA, PXB = ("s60", "s65") if FINE or FINE2 else ("s32", "s33")
    TAG = ["s44", "s29", "s46", "s47"]
    fi = [0]
    def barrier2(need):
        LG.drain()
        w = VM.need(need)
        fine = ""
        if FINE:
            fi[0] += 1
            fine = (f"\nv_writelane_b32 v255, s32, {fi[0]-1}" if fi[0] > 1 else "") + "\ns_memtime s[32:33]"
        return f"s_waitcnt {w+' ' if w else ''}lgkmcnt(0)\ns_barrier" + fine
    TAIL = NSTEP - TN
    seg = lambda n: (n % R) // 8
    issued = [RP]; hn = [HB0 - 1]
    freed = [-1]
    def loads(n, nm):
        its = []
        k = 0
        while issued[0] < NSTEP and k < nm and (issued[0] - R <= freed[0]) and (issued[0] < RP or n >= 3):
            its += dma2(issued[0]); issued[0] += 1; k += 1
        k = 0
        while hn[0] < NSTEP and k < (2 if n < 4 else nm) and hn[0] - HD < n:
            its += ld_h(hn[0]); hn[0] += 1; k += 1
        return its
    over2 = [0]
    def spread(gp, its, g0, g1):
        g = g0
        for i, it in enumerate(its): g = gp.force(it, min(max(g, g0 + (i*(g1-g0))//len(its)), g1-1), g1, 1)
    def step2(n, extra, stream):
        NM = 16
        gp = Gaps(NM)
        bar = (n+1) % 4 == 0
        if bar:
            assert VM.ops.count(("W2", n+4)) == 2, n
            gp.add(0, lambda: barrier2([("W2", n+4)] + ([("YS",)] if n == 7 else [])), 2)
            freed[0] = n
        for ft in range(NT if 'r' not in G2X else 0):
            if n + 1 == TAIL and ft < 4: continue
            for h in range(2): gp.add(2*ft+h, lambda ft=ft, h=h: rd_w2(n+1, ft, h), lds=True)
        for g in range(WEV-1, NM, WEV): gp.c[g] += 1
        its = loads(n, NMX)
        if G2X:
            def drop(fn):
                def g():
                    t = fn()
                    return "" if "buffer_load" in t and ((" lds" in t and "w" in G2X) or (" lds" not in t and "h" in G2X)) else t
                return g
            its = [drop(fn) for fn in its]
        if its: spread(gp, its, 1, NM)
        if extra: spread(gp, extra, 1, NM)
        g = 1
        while stream:
            g = gp.place(stream[0], g, NM, stream[0].w if stream[0].w < 2 else 1)
            if g is None: break
            stream.pop(0)
        over2[0] += sum(max(0, c - 2) for c in gp.c)
        for m in range(NM):
            ft = m >> 1; u = (m & 1) ^ (ft & 1)
            if m % WEV == 0: a(wait(vm=[("H", n)] if m == 0 else None, lg=[("w", n, ft + j) for j in range(WEV//2)]))
            c = "0" if n == 0 else acc2(ft, u)
            a(f"v_mfma_f32_16x16x32_bf16 {acc2(ft,u)}, {wf2(n&1,ft)}, {hf(n % HD, u)}, {c}")
            for fn in gp.g[m]: a(fn())
    extras = {n: [] for n in range(NSTEP)}
    extras[0] = [lg(f"ds_read_b128 v[{24+4*i}:{27+4*i}], v6 offset:{1024*i}") for i in range(4)]
    extras[1] += [It(lambda: wait(lg=[("z",)]))] + [vm(("YS",), f"buffer_store_dwordx4 v[{24+4*i}:{27+4*i}], v5, s[16:19], s24 offen offset:{1024*i} sc1") for i in range(4)]
    extras[2] += split(f"s_lshr_b32 s64, s2, 4\ns_lshl_b32 s64, s64, 8\ns_and_b32 s65, s2, 15\ns_lshl_b32 s65, s65, 2\ns_add_u32 s64, s64, s65\ns_add_u32 s64, s64, {FL_Y}")
    xit = split(xd, ("XD",))
    extras[4] += split(xs, ("E",))
    extras[7] += [vm(("F",), f"buffer_store_dword v{VFL+2}, v{VFL+1}, s[48:51], s64 offen sc1")]
    assert HD >= TN + 1
    extras[TAIL-PYB] = [vm(("PY",), f"buffer_load_dword v{VPR}, v{VFL}, s[48:51], s27 offen sc1")]
    xl = []; yl = []
    for ft in range(4):
        for u in range(2):
            i = 2*ft+u
            yl += split((f"s_mov_b32 s43, {ft*65536}\n" if u == 0 else "") + f"buffer_load_dwordx2 v[{YR+2*i}:{YR+2*i+1}], v16, s[16:19], s43 offen offset:{128*u}", ("E",))
    st2 = []
    for n in range(TAIL):
        if FINE2 and n in (1, 2, 3, 4, 8, 44): fs(True)
        if n == 8: st2 += [T(x) for x in setup_e]
        step2(n, extras[n], st2)
    assert not st2
    print("gemm2 over", over2[0])
    assert hn[0] == NSTEP
    rest = [it for u_ in range(issued[0], NSTEP) for it in dma2(u_)] + xit
    seq = [(n, 4) for n in range(TAIL, NSTEP)] + [(n, 0) for n in range(TAIL, NSTEP)]
    send = []
    if not XBF:
        NPX = 8
        for i in range(8):
            for r in range(4): send.append(T(f"v_bfi_b32 v{ACC2+32+4*i+r}, v21, {TAG[r]}, v{ACC2+32+4*i+r}"))
            send.append(vm(("PXS",), f"buffer_store_dwordx4 v[{ACC2+32+4*i}:{ACC2+35+4*i}], v{VL16}, s[56:59], {PXA if i < 4 else PXB} offen offset:{1024*(i&3)} {XST}"))
    else:
        NPX = 6; SB = 64
        for i in range(6):
            for r in range(3):
                d = 3*i + r
                if d < 16: send.append(T(f"v_cvt_pk_bf16_f32 v{SB+4*i+r}, v{ACC2+32+2*d}, v{ACC2+33+2*d}"))
            send.append(T(f"v_mov_b32 v{SB+4*i+3}, s44"))
            send.append(vm(("PXS",), f"buffer_store_dwordx4 v[{SB+4*i}:{SB+4*i+3}], v{VL16}, s[56:59], {PXA if i < 4 else PXB} offen offset:{1024*(i&3)} {XST}"))
    lastst = [-99]
    ychk = lambda: wait(vm=[("PY",)]) + "\n" + spin("py", VPR, VFL, "s27", 0xffff)
    for k, (n, f0) in enumerate(seq):
        if FINE2 and k in (0, 3, TN, TN+3): fs(True)
        buf = (TAIL + k) & 1
        gp = Gaps(8)
        if k < TN - 1 and k % 4 == 3:
            gp.add(0, lambda: (ychk() if YK == k else "") + barrier2([("W2", n+4)]), 2)
        elif k == YK: gp.add(0, lambda: ychk() + "s_barrier", 2)
        if k + 1 < len(seq):
            n1, f1 = seq[k+1]
            for j in range(4):
                for h in range(2): gp.add(2*j+h, lambda j=j, h=h, n1=n1, f1=f1: rd_w2(n1, f1+j, h, buf^1), lds=True)
        gp.c[7] += 1
        if YK <= k < YK + 3: spread(gp, yl[4*(k-YK):4*(k-YK)+4], 1, 7)
        if k < 3 and rest:
            cnt_ = min(len(rest), 6); spread(gp, rest[:cnt_], 0, 7); rest = rest[cnt_:]
        if k >= TN:
            g = 5 if k == TN else 0
            while send:
                isst = send[0].w >= VW and len(send) % (5) == 1 if not XBF else False
                g = gp.place(send[0], g, 8, 1)
                if g is None: break
                send.pop(0)
        for m in range(8):
            ft = f0 + (m >> 1); u = (m & 1) ^ (ft & 1)
            if m == 0: a(wait(vm=[("H", n)], lg=[("w", n, f0 + j) for j in range(4)]))
            a(f"v_mfma_f32_16x16x32_bf16 {acc2(ft,u)}, {wf2(buf,ft)}, {hf(n % HD, u)}, {acc2(ft,u)}")
            for fn in gp.g[m]: a(fn())
    assert not send and not rest
    fs(True)
    stamp()
    PXR = 192
    pxl = "\n".join(f"buffer_load_dwordx4 v[{PXR+4*i}:{PXR+3+4*i}], v{VL16}, s[56:59], {'s34' if i < 4 else 's35'} offen offset:{1024*(i&3)} {XLD}" for i in range(NPX))
    a(f"v_mov_b32 v2, v{VL16}\nv_cmp_eq_u32 vcc, 0, v{VL}\nv_mov_b32 v3, {OOB}\nv_mov_b32 v4, 1008\nv_cndmask_b32 v3, v3, v4, vcc")
    pxl = pxl.replace(f"v{VL16},", "v2,")
    a(wait(vm=[("E",), ("XD",)]))
    for x in xr: a(x)
    lp = f"buffer_load_dword v1, v3, s[56:59], s35 offen offset:{1024*((NPX-1)&3) + (12 if XBF else 0)} sc1"
    if EPOLL: a(lp)
    for u in range(2): a(f"v_mul_f32 v{ST+2*u+1}, {f2u(1/C0)}, v{ST+2*u+1}")
    a("s_waitcnt lgkmcnt(0)")
    for i in range(8):
        u = i & 1
        for h in range(2):
            b = 4*i + 2*h
            a(f"""v_lshlrev_b32 v{XF_+b}, 16, v{XR+2*i+h}
            v_and_b32 v{XF_+b+1}, 0xffff0000, v{XR+2*i+h}
            v_lshlrev_b32 v{T6}, 16, v{YR+2*i+h}
            v_and_b32 v{T6+1}, 0xffff0000, v{YR+2*i+h}
            v_pk_add_f32 {pr(SF+b)}, {pr(XF_+b)}, {pr(ST+2*u)} op_sel_hi:[1,0] neg_lo:[0,1] neg_hi:[0,1]
            v_pk_mul_f32 {pr(T6)}, {pr(T6)}, {pr(ST+2*u)} op_sel:[0,1] op_sel_hi:[1,1]
            v_pk_mul_f32 {pr(SF+b)}, {pr(SF+b)}, {pr(T6)}""")
    fs(True); fs(True)
    a(f"""
    s_mov_b32 s16, s54
    s_mov_b32 s17, s55
    s_mov_b32 s24, 0
    s_mov_b32 s42, {f2u(-math.log2(math.e))}
    s_mov_b32 s43, s42
    {"s_branch " + L('px3') if EPOLL else ""}
    {L('px2')}:
    {lp}
    {L('px3')}:
    s_add_u32 s24, s24, 1
    s_cmp_gt_u32 s24, {SPIN}
    s_cbranch_scc1 {L('px_ok')}
    s_waitcnt vmcnt(0)
    v_xor_b32 v1, {TAG[0]}, v1
    {'' if XBF else 'v_and_b32 v1, v1, v21'}
    v_cmp_eq_u32 vcc, 0, v1
    s_nop 4
    s_bitcmp1_b32 vcc_lo, 0
    s_cbranch_scc1 {L('px')}
    s_sleep {XSL}
    s_branch {L('px2')}
    {L('px')}:
    """)
    a(pxl)
    for i in range(NPX):
        a(f"s_waitcnt vmcnt({NPX-1-i})")
        if XBF:
            a(f"v_xor_b32 v1, s44, v{PXR+3}" if i == 0 else f"v_bitop3_b32 v1, v1, v{PXR+4*i+3}, s44 bitop3:0xf6")
            for r in range(3):
                d = 3*i + r
                if d < 16: a(f"v_lshlrev_b32 v{ACC2+32+2*d}, 16, v{PXR+4*i+r}\nv_and_b32 v{ACC2+33+2*d}, 0xffff0000, v{PXR+4*i+r}")
        else:
            for r in range(4*i, 4*i+4):
                a(f"v_xor_b32 v1, {TAG[0]}, v{PXR}" if r == 0 else f"v_bitop3_b32 v1, v1, v{PXR+r}, {TAG[r&3]} bitop3:0xf6")
    if XBF: PXR = ACC2 + 32
    a(f"""
    {'' if XBF else 'v_and_b32 v1, 0xff, v1'}
    v_cmp_ne_u32 vcc, 0, v1
    s_nop 4
    s_cbranch_vccnz {L('px2')}
    {L('px_ok')}:
    """)
    stamp()
    E = T6
    for ft in range(4):
        for u in range(2):
            i = 2*ft+u; O = ACC2 + 4*i; S_ = SF + 4*i; X_ = XF_ + 4*i
            for h in range(2): a(f"v_pk_add_f32 {pr(O+2*h)}, {pr(O+2*h)}, {pr(PXR+4*i+2*h)}")
            for h in range(2): a(f"v_pk_mul_f32 {pr(E+2*h)}, {pr(O+2*h)}, s[42:43]")
            for r in range(4): a(f"v_exp_f32 v{E+r}, v{E+r}")
            for h in range(2): a(f"v_pk_mul_f32 {pr(S_+2*h)}, {pr(S_+2*h)}, {pr(O+2*h)}")
            for h in range(2): a(f"v_pk_add_f32 {pr(E+2*h)}, {pr(E+2*h)}, 1.0 op_sel_hi:[1,0]")
            for r in range(4): a(f"v_rcp_f32 v{E+r}, v{E+r}")
            a("s_nop 0")
            for h in range(2): a(f"v_pk_fma_f32 {pr(S_+2*h)}, {pr(S_+2*h)}, {pr(E+2*h)}, {pr(X_+2*h)}")
            Q = QO + 8*(ft>>1) + 4*u + 2*(ft&1)
            for h in range(2): a(f"v_cvt_pk_bf16_f32 v{Q+h}, v{S_+2*h}, v{S_+2*h+1}")
        if ft & 1:
            a("s_nop 1")
            for u in range(2):
                Q = QO + 8*(ft>>1) + 4*u
                a(f"v_permlane16_swap_b32 v{Q}, v{Q+2}\nv_permlane16_swap_b32 v{Q+1}, v{Q+3}")
            for u in range(2):
                Q = QO + 8*(ft>>1) + 4*u
                a(f"buffer_store_dwordx4 v[{Q}:{Q+3}], v{19+u}, s[16:19], 0 offen offset:{64*(ft>>1)} {OSC}")
    if STAMP:
        a("s_waitcnt vmcnt(0)")
        stamp()
        a(f"""
        s_waitcnt lgkmcnt(0)
        s_cmp_eq_u32 s20, 0
        s_cbranch_scc0 {L('end')}
        s_add_u32 s12, s36, {WS_TS}
        s_addc_u32 s13, s37, 0
        s_mov_b32 s14, 65536
        s_lshl_b32 s41, s2, 7
        v_mov_b32 v1, 0
        """)
        a("v_mov_b32 v4, v2")
        for i in range(nst[0]):
            a(f"v_mov_b32 v2, s{66+4*i}\nv_mov_b32 v3, s{68+4*i}\nbuffer_store_dwordx2 v[2:3], v1, s[12:15], s41 offen offset:{8*i}\ns_nop 1")
        assert 69 + 4*(nst[0]-1) <= 101
        if FINE1: a("v_accvgpr_read_b32 v255, a252")
        if FINE or FINE1 or FINE2:
            a(f"s_lshl_b32 s41, s2, 8\ns_add_u32 s41, s41, 0x40000\ns_mov_b32 s14, 0x80000\nv_lshrrev_b32 v1, 2, v4\nbuffer_store_dword v255, v1, s[12:15], s41 offen")
    a(f"{L('end')}:\ns_endpgm")
    return a.text()

def check_m0(t):
    own = {"s43": "s[8:11]", "s26": "s[4:7]", "s29": "s[12:15]", "s60": "s[16:19]", "s45": "s["}
    cur = None; k = 0; prev = ""
    for ln in t.split("\n"):
        x = ln.strip()
        m = re.match(r"s_add_u32 m0, (s\d+),", x)
        if m: assert cur is None or k == 4, ("m0 rewritten early", x); cur = m.group(1); k = 0
        elif x.endswith(" lds"):
            assert own[cur] in x and f"offset:{1024*k} " in x and "m0" not in prev, (cur, k, x); k += 1
        prev = x
def add_stubs(body):
    import subprocess
    lines = body.split("\n")
    tmp = "\n".join(lines) + "\n" + "".join(f"L_k_w{i}:\n" for i in range(4))
    open("stub.s", "w").write('.amdgcn_target "amdgcn-amd-amdhsa--gfx950"\n.text\n' + KN + ":\n" + tmp)
    subprocess.run(["clang", "-x", "assembler", "-target", "amdgcn-amd-amdhsa", "-mcpu=gfx950", "-c", "stub.s", "-o", "stub.o"], check=True)
    dis = subprocess.run(["llvm-objdump", "-d", "--mcpu=gfx950", "stub.o"], capture_output=True, text=True).stdout
    ad = [(int(m.group(1), 16), len(m.group(2).split())*4) for m in re.finditer(r"// ([0-9A-F]{12}): ((?:[0-9A-F]{8} ?)+)", dis)]
    sizes = [sz for adr, sz in ad if adr >= 4096]
    i0 = lines.index("L_k_main:")
    out = lines[:i0+1]; pos = 0; k = 0; n = 0; nxt = 4096
    for ln in lines[i0+1:]:
        x = ln.split(";")[0].strip()
        if x and not x.endswith(":"):
            if pos >= nxt:
                out += [f"L_k_w{n}:", f"    s_cbranch_execz @{n}"]; n += 1; pos += 4; nxt += 4096
            pos += sizes[k]; k += 1
        out.append(ln)
    assert k == len(sizes) and n >= 4, (k, len(sizes))
    return "\n".join(re.sub(r"@(\d+)", lambda m: f"L_k_w{int(m.group(1))+4}" if int(m.group(1))+4 < n else "L_k_wback", x) if "execz @" in x else x for x in out)
def make(fn, **kw):
    body = gen("k", **kw)
    if not kw.get('G2X') and not kw.get('CX'): check_m0(body)
    if kw.get("WARM", True): body = add_stubs(body)
    t = header([(KN, 256, 256, 163840)]) + kstart(KN) + body + rodata() + kdesc(KN, 512, 256)
    open(fn, "w").write(t)
if __name__ == "__main__":
    import sys
    B = dict(ROT=0, KPS=3, P0AT=(2,2,9), ROT0=5, KNT="")
    B.update(PYB=8, YK=3)
    B["PFEND"] = 36
    make("t4.s", STAMP=True, **B); make("t4_ns.s", **B)
```

```python
from asmlib import *
from g1b import f2u, Cnt
from p0 import srd, rne_bf16, red32
import math, re
WS_STATS = 0; WS_FL = 0x80000; WS_UT = 0x100000; WS_Y4 = 0x600000; WS_HF = 0x1000000; WS_PX = 0x2800000; WS_TS = 0x3000000
FL_H = 0; FL_Y = 8192; FL_X = 12288; FL_P = 12288 + 256*128; FL_Q = FL_P + 1024; FL_N = FL_Q + 4096; FL_SIZE = FL_N + 256
OOB = 0x80000000
KN = "recurrent_scan__ssm_conv_h3__geglu_ffn__prompt_kernel"
pr = lambda b: f"v[{b}:{b+1}]"

class Gaps:
    def __init__(self, n, cap=2): self.n = n; self.cap = cap; self.g = [[] for _ in range(n)]; self.c = [0]*n; self.l = [0]*n; self.maxl = 1 if cap == 2 else 3
    def add(self, g, fn, w=1, lds=False): self.g[g].append(fn); self.c[g] += w; self.l[g] += lds
    def fits(self, g, w, lds): return self.c[g] + w <= self.cap and not (lds and (self.l[g] >= self.maxl or self.c[g] > self.l[g]))
    def place(self, fn, g0, g1, w=1, lds=False):
        for g in range(g0, g1):
            if self.fits(g, w, lds): self.add(g, fn, w, lds); return g
        return None
    def force(self, fn, g0, g1, w=1, lds=False):
        g = self.place(fn, g0, g1, w, lds)
        if g is None:
            g = min(range(g0, g1), key=lambda x: (self.c[x], x)); self.add(g, fn, w, lds)
        return g
class It:
    def __init__(self, fn, w=1, lds=False): self.fn = fn; self.w = w; self.lds = lds
    def __call__(self): return self.fn()

def gen(name, STAMP=False, SPIN=400000, SIGAT=(1,2), FINE=False, PFEVERY=5, WNT="", KNT="nt", OSC="", FINE1=False, LW=3, XS=1, ROT=2, CAP=2, MIG=True, P0AT=(3,5,7), PROST=False, G1X="", KPS=4, TRK=8, MIGN=7, ROT0=0, FINE2=False, HD=9, PHAT=24, HCHK=50, PFEND=30, PYB=8, YK=3, XSL=1, CQ=6, XST='sc1', XLD='sc1', R=20, WEV=8, HB0=9, NMX=1, L2PF=0, HNT='', W2NT='', L2AT=2, G2X='', VW=2, XAT=44, WARM=True, PAIR1=False, PAIR2=False, HSK=False, KORD=None, RSP=True, TN=8, SSP=0, XBF=True, C3=0, REMAP=True, TWO=True, PSL=4, SLOWX=True, SLOWS=False, CCAP=6, CVW=1, DPW=1, PF2=40, EPOLL=False, CX='', HC2=4):
    a = A()
    nst = [0]
    def pstamp():
        if PROST: stamp(True)
    def stamp(p=False):
        if STAMP and nst[0] < 9 and (p or not PROST or nst[0] == 0 or nst[0] >= 6):
            i = nst[0]; nst[0] += 1
            a(f"s_memtime s[{66+4*i}:{67+4*i}]\ns_memrealtime s[{68+4*i}:{69+4*i}]")
    VM = Cnt("vmcnt", 63); LG = Cnt("lgkmcnt", 15)
    def wait(vm=None, lg=None):
        w = [x for x in (VM.need(vm) if vm else None, LG.need(lg) if lg else None) if x]
        return ("s_waitcnt " + " ".join(w)) if w else ""
    def vm(tag, txt):
        def f(): VM.issue(tag); return txt
        it = It(f, VW + txt.strip().count("\n")); it.vm = True
        return it
    def T(txt): return It(lambda: txt, 1 + txt.strip().count("\n") + ("0x" in txt and txt.strip().startswith("v_")))
    def split(txt, tag=None):
        return [vm(tag, x.replace("|", "\n")) if "buffer_" in x else T(x.replace("|", "\n")) for x in txt.strip().split("\n") if x.strip()]
    L = lambda s_: f"L_{name}_{s_}"
    f2 = [0]
    def fs(w=False):
        if not FINE2: return
        if w: a("s_waitcnt lgkmcnt(0)")
        if f2[0]: a(f"v_writelane_b32 v255, s32, {f2[0]-1}")
        a("s_memtime s[32:33]"); f2[0] += 1
    VXO = 208; VWO = 212; VXR = 216; VWR = 218; VIDX = 220; VL = 221; VL16 = 222; VT = 223
    VPS = 224; VPP = 225; VPF = 226; VQA = 228; VKA = 229; VSA = 233; VUA = 234; VWA = 235
    VWO2 = 246; VFL = 250
    Q0 = 92; K0 = 108; V0 = 130; W0 = 146; TT = 168
    a(f"""
    s_cmp_ge_u32 s2, 256
    s_cbranch_scc1 {L('end')}
    s_load_dwordx4 s[28:31], s[0:1], 0      ; q k
    s_load_dwordx4 s[32:35], s[0:1], 56
    s_load_dwordx4 s[60:63], s[0:1], 16     ; v shift_k
    s_load_dwordx4 s[44:47], s[0:1], 88
    s_load_dwordx4 s[52:55], s[0:1], 72
    s_load_dwordx4 s[56:59], s[0:1], 32
    s_branch {L('main')}
    .p2align 12
    {L('main')}:
    """)
    stamp()
    a(f"""
    v_lshrrev_b32 v1, 6, v0
    v_and_b32 v{VL}, 63, v0
    s_and_b32 s3, s2, 7
    v_readfirstlane_b32 s20, v1
    s_lshr_b32 s38, s2, 3                ; slot 0..31
    s_lshr_b32 s39, s3, 1
    s_mul_i32 s39, s39, 63
    s_and_b32 s40, s3, 1
    s_lshl_b32 s41, s40, 5
    s_add_u32 s39, s39, s41
    s_add_u32 s39, s39, s38              ; i
    s_add_u32 s41, s41, s38
    s_cmp_eq_u32 s41, 63
    s_cselect_b32 s64, 1, 0
    s_cselect_b32 s39, 0, s39
    s_mul_i32 s22, s39, 7282
    s_lshr_b32 s22, s22, 16              ; j
    s_mul_i32 s40, s22, 9
    s_sub_u32 s21, s39, s40              ; band
    s_mul_i32 s65, s21, 14
    s_cmp_eq_u32 s21, 8
    s_cselect_b32 s65, 113, s65          ; s65 = first token tile
    v_lshlrev_b32 v{VL16}, 4, v{VL}
    s_getpc_b64 s[16:17]
    {L('here')}:
    s_sub_u32 s16, s16, {L('here')}-{L('main')}
    s_subb_u32 s17, s17, 0
    s_mov_b32 s18, {L('end')}-{L('main')}
    s_mov_b32 s19, 0x20000
    s_lshl_b32 s41, s38, 2
    s_add_u32 s41, s41, s20
    s_mul_i32 s41, s41, {5*128}
    v_min_u32 v10, 4, v{VL}
    v_lshlrev_b32 v10, 7, v10
    buffer_load_dword v{VFL+5}, v10, s[16:19], s41 offen
    v_lshrrev_b32 v10, 1, v{VL}
    v_mul_u32_u24 v10, 7168, v10
    v_and_b32 v11, 1, v{VL}
    v_lshl_add_u32 v10, v11, {9 if PAIR1 else 7}, v10
    v_cmp_gt_u32 vcc, 32, v{VL}
    v_mov_b32 v11, {OOB}
    s_mul_i32 s39, s21, {32*7168}
    v_cndmask_b32 v10, v11, v10, vcc
    s_lshl_b32 s40, s2, 3
    s_lshl_b32 s41, s20, 1
    s_add_u32 s40, s40, s41
    v_lshrrev_b32 v4, 5, v{VL}
    v_add_u32 v4, s40, v4
    v_and_b32 v5, 31, v{VL}
    v_lshlrev_b32 v6, 4, v5
    v_lshl_add_u32 v{VQA}, v4, 11, v6
    v_lshrrev_b32 v0, 3, v{VL}
    v_lshlrev_b32 v0, 11, v0
    v_and_b32 v1, 7, v{VL}
    v_lshrrev_b32 v2, 4, v{VL}
    v_xor_b32 v3, v1, v2
    v_lshl_add_u32 v{VXO}, v3, 4, v0
    v_xor_b32 v3, 4, v3
    v_lshl_add_u32 v{VXO+1}, v3, 4, v0
    v_add_u32 v{VXO+1}, {16384-1024}, v{VXO+1}
    v_add_u32 v{VXO+2}, {2*(16384-1024)}, v{VXO}
    v_add_u32 v{VXO+3}, {2*(16384-1024)}, v{VXO+1}
    s_waitcnt lgkmcnt(0)
    ; SRD W
    s_cmp_lt_u32 s20, 2
    s_cselect_b32 s8, s32, s34
    s_cselect_b32 s9, s33, s35
    {"s_and_b32 s42, s22, 3|s_lshl_b32 s41, s22, 8|s_lshl_b32 s42, s42, 7|s_sub_u32 s41, s41, s42".replace("|", chr(10)) if PAIR1 else "s_lshl_b32 s41, s22, 8"}
    s_and_b32 s42, s20, 1
    s_mul_i32 s42, s42, {16*7168}
    s_add_u32 s41, s41, s42
    s_add_u32 s8, s8, s41
    s_addc_u32 s9, s9, 0
    s_sub_u32 s10, {1024*7168}, s41
    s_mov_b32 s11, 0x20000
    s_cmp_eq_u32 s64, 1
    s_cselect_b32 s10, 0, s10
    s_cmp_lt_u32 s21, {LW+ROT if ROT else ROT0}
    s_cselect_b32 s40, s39, {OOB//2}
    """)
    VM.issue(("C",)); VM.issue(("R",)); a(f"buffer_load_dword v{VPF+1}, v10, s[8:11], s40 offen {WNT}")
    srd(a, 12, 28, 29, 4194304)
    for i in range(4): VM.issue(("Q",)); a(f"buffer_load_dwordx4 v[{Q0+4*i}:{Q0+3+4*i}], v{VQA}, s[12:15], 0 offen offset:{512*i}")
    a(f"""
    s_mov_b32 s39, {OOB//2}
    v_add_u32 v{VPF}, {ROT*32*7168}, v10
    s_mov_b32 s36, s46
    s_mov_b32 s37, s47
    s_lshl_b32 s40, s65, 15
    s_lshl_b32 s41, s20, 17
    s_add_u32 s40, s40, s41
    s_add_u32 s4, s28, s40
    s_addc_u32 s5, s29, 0
    s_cmp_lt_u32 s21, 7
    s_cselect_b32 s6, 0, 32768
    s_add_u32 s6, s6, {224*2048}
    s_sub_u32 s6, s6, s41
    s_mov_b32 s7, 0x20000
    s_cmp_eq_u32 s64, 1
    s_cselect_b32 s6, 0, s6
    s_lshl_b32 s43, s20, 12              ; W lds wave part
    s_lshl_b32 s26, s20, 13
    s_add_u32 s26, s26, 65536            ; x lds write address (slot 0)
    s_mov_b32 s25, 0
    s_mov_b32 s23, 0
    v_mul_u32_u24 v0, 7168, v2
    v_and_b32 v1, 15, v{VL}
    v_lshlrev_b32 v3, 1, v2
    v_xor_b32 v3, v1, v3
    v_and_b32 v1, 7, v3
    v_lshl_add_u32 v0, v1, 4, v0
    v_and_b32 v3, 8, v3
    v_lshl_add_u32 v{VWO}, v3, {6 if PAIR1 else 4}, v0
    v_add_u32 v{VWO+1}, {28672-1024}, v{VWO}
    v_xor_b32 v3, 8, v3
    v_lshl_add_u32 v{VWO+2}, v3, {6 if PAIR1 else 4}, v0
    v_add_u32 v{VWO+2}, {2*(28672-1024)}, v{VWO+2}
    v_add_u32 v{VWO+3}, {28672-1024}, v{VWO+2}
    """)
    XB = 65536
    def dma_w(i, ks):
        VM.issue(("W", ks)); return f"buffer_load_dwordx4 v{VWO+i}, s[8:11], s25 offen offset:{1024*i} {WNT} lds"
    def dma_x(i, sl, half):
        VM.issue(("X", sl)); return f"buffer_load_dwordx4 v{VXO+i}, s[4:7], s23 offen offset:{1024*i} lds"
    KO = list(KORD or range(16)); assert sorted(KO) == list(range(16))
    kphys = lambda k: 2*KO[k >> 1] + (k & 1)
    def xjob(n):
        m = n - XS
        return ((m+5)//2, 0) if m & 1 else (m//2 + 2, 1)
    def w_items(n):
        k = n + LW
        return [T(f"s_add_u32 m0, s43, {(k % 4)*16384}"), T(f"s_mov_b32 s25, {kphys(k)*32*7168}")] + [It(lambda i=i: dma_w(i, k), VW) for i in range(4)]
    def x_items(n):
        sl, half = xjob(n)
        return [T(f"s_add_u32 m0, s26, {(sl % 3)*32768 + half*4096}"), T(f"s_mov_b32 s23, {KO[sl]*128 + half*65536}")] + [It(lambda i=i: dma_x(i, sl, half), VW) for i in range(4)]
    pend = []
    for n in range(-5, 0):
        if n + LW >= 0: pend += w_items(n)
        if xjob(n)[0] >= 0 and n - XS >= -5: pend += x_items(n)
    for _ in range(18): a(pend.pop(0)())
    for _ in range(6): a(pend.pop(0)())
    srd(a, 48, 36, 37, FL_SIZE, WS_FL)
    srd(a, 16, 30, 31, 4194304)
    a(f"""
    s_mov_b32 s30, s28
    s_mov_b32 s31, s29
    s_mov_b32 s32, s44
    s_mov_b32 s33, s45
    s_add_u32 s34, s36, {WS_UT}
    s_addc_u32 s35, s37, 0
    s_lshl_b32 s41, s20, 6
    v_add_u32 v12, s41, v{VL}
    v_lshlrev_b32 v13, 2, v12
    v_cmp_eq_u32 vcc, 0, v12
    s_lshl_b32 s41, s20, 8
    s_add_u32 s41, s41, s2
    v_cndmask_b32 v{VFL+1}, v11, v13, vcc
    s_cmp_eq_u32 s41, 249
    s_cbranch_scc0 {L('nononce')}
    s_mov_b32 s41, {FL_N}
    buffer_load_dword v10, v{VFL+1}, s[48:51], s41 offen sc1
    s_mov_b32 s42, 0x9e3779b1
    s_mov_b32 s12, s32
    s_mov_b32 s13, s33
    s_mov_b32 s14, 256
    s_waitcnt vmcnt(0)
    v_mul_lo_u32 v13, v10, s42
    v_add_u32 v13, 0x7f4a7c15, v13
    v_or_b32 v13, 1, v13
    v_xor_b32 v12, 2, v13
    v_cmp_eq_u32 vcc, v13, v10
    s_nop 1
    v_cndmask_b32 v13, v13, v12, vcc
    buffer_store_dword v13, v{VFL+1}, s[12:15], 0 offen offset:128 sc1
    buffer_store_dword v13, v{VFL+1}, s[12:15], 0 offen sc1
    buffer_store_dword v13, v{VFL+1}, s[48:51], s41 offen sc1
    s_mov_b32 s14, 4194304
    {L('nononce')}:
    s_mov_b32 s12, s60
    s_mov_b32 s13, s61                    ; s[12:15] = v
    v_lshlrev_b32 v14, 4, v4
    v_cmp_eq_u32 vcc, 0, v5
    s_lshr_b32 s40, s2, 4
    s_lshl_b32 s40, s40, 7
    v_cndmask_b32 v{VSA}, v11, v14, vcc
    s_lshl_b32 s41, s20, 5
    s_add_u32 s40, s40, s41
    s_and_b32 s42, s2, 15                 ; cb
    v_lshrrev_b32 v4, 4, v{VL}
    v_lshl_add_u32 v4, v4, 3, s40         ; s0 = base + 8*(l>>4)
    v_and_b32 v5, 15, v{VL}               ; p: 4 channels
    s_lshl_b32 s41, s42, 7
    v_lshl_add_u32 v6, v5, 3, s41
    v_lshl_add_u32 v{VKA}, v4, 11, v6
    v_subrev_u32 v{VKA+2}, {3*2048}, v{VKA}
    v_subrev_u32 v{VKA+3}, 2048, v{VKA}
    s_lshl_b32 s41, s42, 9
    v_lshl_add_u32 v{VWA}, v5, 5, s41
    s_lshl_b32 s41, s40, 11
    s_lshl_b32 s27, s42, 12
    s_add_u32 s41, s41, s27
    v_lshl_add_u32 v9, v5, 6, s41
    v_and_b32 v6, 48, v{VL}
    v_add_u32 v{VUA}, v6, v9
    ; lds read addresses
    v_and_b32 v10, 15, v{VL}              ; tok
    v_lshrrev_b32 v15, 4, v{VL}           ; g
    v_lshrrev_b32 v12, 1, v10
    v_xor_b32 v12, v12, v15
    v_lshlrev_b32 v12, 4, v12
    v_lshl_add_u32 v12, v10, 7, v12
    v_add_u32 v{VXR}, {XB}, v12
    v_xor_b32 v{VXR+1}, 64, v{VXR}
    v_add_u32 v236, 65536, v{VXR}
    v_add_u32 v237, 65536, v{VXR+1}
    s_mov_b32 s47, 0xffff0000
    v_bfe_u32 v12, v{VL}, 2, 2            ; e
    v_lshl_add_u32 v13, v15, 3, v12       ; row = 8g+e
    v_lshlrev_b32 v13, 8, v13
    v_and_b32 v14, 1, v15
    v_lshl_add_u32 v12, v14, 2, v12       ; sigma
    s_lshl_b32 s41, s20, 1
    v_xor_b32 v12, s41, v12
    v_lshl_add_u32 v13, v12, 5, v13
    v_and_b32 v12, 3, v{VL}
    v_lshl_add_u32 v{VWR}, v12, 3, v13
    v_xor_b32 v{VWR+1}, 32, v{VWR}
    ; smfmac A: ones where ((row>>1)&1) == (g>>1) ; index 0x4444 / 0xeeee by row parity
    v_bfe_u32 v12, v{VL}, 1, 1
    v_lshrrev_b32 v13, 5, v{VL}
    v_cmp_eq_u32 vcc, v12, v13
    v_mov_b32 v12, 0x3f803f80
    v_and_b32 v13, 1, v{VL}
    v_cndmask_b32 v12, 0, v12, vcc
    v_mul_u32_u24 v13, 0xaaaa, v13
    v_add_u32 v{VIDX}, 0x4444, v13
    v_accvgpr_write_b32 a248, v12
    v_accvgpr_write_b32 a249, v12
    v_accvgpr_write_b32 a250, v12
    v_accvgpr_write_b32 a251, v12
    v_mov_b32 v{VT}, 0
    s_lshl_b32 s40, s2, 2
    s_add_u32 s40, s40, {FL_P}
    s_lshl_b32 s41, s42, 8
    s_lshr_b32 s42, s2, 4
    s_lshl_b32 s27, s42, 2
    s_add_u32 s41, s41, s27
    s_add_u32 s41, s41, {FL_Q}
    v_mov_b32 v{VPS}, {OOB}
    v_writelane_b32 v{VPS}, s40, 0
    v_writelane_b32 v{VPS}, s41, 1
    s_lshl_b32 s40, s65, 3
    s_add_u32 s40, s40, {FL_P}
    v_lshl_add_u32 v{VPP}, v{VL}, 2, s40
    s_lshl_b32 s41, s42, 8
    s_add_u32 s41, s41, {FL_Q-128}
    v_lshl_add_u32 v12, v{VL}, 2, s41
    v_cmp_gt_u32 vcc, 32, v{VL}
    s_lshl_b32 s41, s20, 30
    v_or_b32 v{VPS}, s41, v{VPS}
    v_cndmask_b32 v{VPP}, v12, v{VPP}, vcc
    v_or_b32 v{VPP}, s41, v{VPP}
    """)
    for r in range(8): a(f"v_accvgpr_write_b32 a{240+r}, 0")
    p_ld = []
    for r, (reg, off) in enumerate([(2,0),(2,2048),(3,0)]):
        p_ld.append(split(f"buffer_load_dwordx2 v[{K0+2*r}:{K0+2*r+1}], v{VKA+reg}, s[16:19], 0 offen offset:{off} {KNT}", ("KV",)))
    for r in range(8):
        pre_ = f"s_mov_b32 s28, {4096*(r>>1)}\n"
        p_ld.append(split((pre_ if r % 2 == 0 else "") + f"buffer_load_dwordx2 v[{K0+6+2*r}:{K0+7+2*r}], v{VKA}, s[16:19], s28 offen offset:{2048*(r&1)} {KNT}", ("KV",)))
        p_ld.append(split(f"buffer_load_dwordx2 v[{V0+2*r}:{V0+2*r+1}], v{VKA}, s[12:15], s28 offen offset:{2048*(r&1)} {KNT}", ("KV",)))
    for i in range(2):
        pre_ = "s_mov_b32 s12, s62\ns_mov_b32 s13, s63\ns_mov_b32 s14, 8192\n" if i == 0 else ""
        p_ld.append(split(pre_ + f"buffer_load_dwordx4 v[{W0+4*i}:{W0+4*i+3}], v{VWA}, s[12:15], 0 offen offset:{16*i}", ("KV",)))
    def red(r, t):
        o = []
        for ctl in ("quad_perm:[1,0,3,2]", "quad_perm:[2,3,0,1]", "row_half_mirror", "row_mirror"):
            o.append(f"s_nop 1\nv_add_f32_dpp v{r}, v{r}, v{r} {ctl} row_mask:0xf bank_mask:0xf")
        o += [f"v_mov_b32 v{t}, v{r}", f"s_nop 1\nv_permlane16_swap_b32 v{r}, v{t}", f"s_nop 1\nv_add_f32 v{r}, v{r}, v{t}"]
        return o
    rne = lambda d, s_: [f"v_cvt_pk_bf16_f32 v{d}, v{s_}, v{s_}", f"v_and_b32 v{d}, s47, v{d}"]
    M_ = TT + 32; S_ = TT + 36
    st = []
    for d in range(16): st += [f"v_lshlrev_b32 v{TT+2*d}, 16, v{Q0+d}", f"v_and_b32 v{TT+2*d+1}, s47, v{Q0+d}"]
    st += [f"v_add_f32 v{M_}, v{TT}, v{TT+1}", f"v_add_f32 v{M_+1}, v{TT+2}, v{TT+3}"]
    for d in range(4, 32): st.append(f"v_add_f32 v{M_+(d&1)}, v{M_+(d&1)}, v{TT+d}")
    st += [f"v_add_f32 v{M_}, v{M_}, v{M_+1}"] + red(M_, M_+1) + [f"v_mul_f32 v{M_}, {f2u(1/1024.)}, v{M_}"]
    for d in range(32): st.append(f"v_sub_f32 v{TT+d}, v{TT+d}, v{M_}")
    st += [f"v_mul_f32 v{S_}, v{TT}, v{TT}", f"v_mul_f32 v{S_+1}, v{TT+1}, v{TT+1}"]
    for d in range(2, 32): st.append(f"v_fmac_f32 v{S_+(d&1)}, v{TT+d}, v{TT+d}")
    st += [f"v_add_f32 v{S_}, v{S_}, v{S_+1}"] + red(S_, S_+1) + [f"v_mul_f32 v{S_}, {f2u(1/1024.)}, v{S_}"]
    st += rne(M_, M_) + rne(S_, S_) + [f"v_add_f32 v{S_}, {f2u(1e-5)}, v{S_}"] + rne(S_, S_) + [f"v_sqrt_f32 v{S_}, v{S_}\ns_nop 0"] + rne(S_, S_)
    C0 = -2*0.7978845608028654*math.log2(math.e); C1 = C0*0.044715
    st += [f"v_rcp_f32 v{TT}, v{S_}", f"v_mul_f32 v{M_+3}, v{S_}, v{S_}", f"v_mul_f32 v{M_+1}, {f2u(C0)}, v{TT}", f"v_mul_f32 v{TT+1}, v{TT}, v{TT}",
           f"v_mul_f32 v{TT}, {f2u(C1)}, v{TT}", f"v_mul_f32 v{M_+2}, v{TT}, v{TT+1}"]
    p_st = [It(lambda: wait(vm=[("Q",)]))] + [T(x) for x in st]
    p_kv = [It(lambda: wait(vm=[("KV",)])),
            ] + split(f"s_mov_b32 s12, s36\ns_mov_b32 s13, s37\ns_mov_b32 s14, 32768\nbuffer_store_dwordx4 v[{M_}:{M_+3}], v{VSA}, s[12:15], 0 offen sc1\ns_mov_b32 s16, s34\ns_mov_b32 s17, s35", ("PS",))
    KX = 154; WX = 176; VX = 184; RX = 192
    for c in range(2):
        o = []
        for e in range(2):
            for h in range(2): o += [f"v_lshlrev_b32 v{WX+4*e+2*h}, 16, v{W0+4*c+2*e+h}", f"v_and_b32 v{WX+4*e+2*h+1}, s47, v{W0+4*c+2*e+h}"]
        for r in range(11): o += [f"v_lshlrev_b32 v{KX+2*r}, 16, v{K0+2*r+c}", f"v_and_b32 v{KX+2*r+1}, s47, v{K0+2*r+c}"]
        for hf_ in range(2):
            for t in range(4): o += [f"v_lshlrev_b32 v{VX+2*t}, 16, v{V0+2*(4*hf_+t)+c}", f"v_and_b32 v{VX+2*t+1}, s47, v{V0+2*(4*hf_+t)+c}"]
            for t in range(4):
                for e in range(2): o.append(f"v_mul_f32 v{RX+2*t+e}, v{KX+2*(4*hf_+t)+e}, v{WX+4*e+3}")
            for j in (2, 1, 0):
                for t in range(4):
                    for e in range(2): o.append(f"v_fmac_f32 v{RX+2*t+e}, v{KX+2*(4*hf_+t+3-j)+e}, v{WX+4*e+j}")
            for t in range(4):
                for e in range(2): o.append(f"v_mul_f32 v{RX+2*t+e}, v{RX+2*t+e}, v{VX+2*t+e}")
            for e in range(2):
                ch = 2*c + e
                o += [f"v_cvt_pk_bf16_f32 v{Q0+4*ch+2*hf_}, v{RX+e}, v{RX+2+e}", f"v_cvt_pk_bf16_f32 v{Q0+4*ch+2*hf_+1}, v{RX+4+e}, v{RX+6+e}"]
        p_kv += [T(x) for x in o]
        for e in range(2):
            ch = 2*c + e
            p_kv += [vm(("PS",), f"buffer_store_dwordx4 v[{Q0+4*ch}:{Q0+4*ch+3}], v{VUA}, s[16:19], 0 offen offset:{1024*ch} sc1")]
    p_kv += split(f"s_mov_b32 s12, s32\ns_mov_b32 s13, s33\ns_mov_b32 s14, 256\nbuffer_load_dword v{VFL+2}, v{VT}, s[12:15], 0 offen", ("N",))
    def nonce_chk(lb):
        return f"""
        s_mov_b32 s41, 0
        {L(lb)}:
        v_readfirstlane_b32 s44, v{VFL+2}
        s_add_u32 s41, s41, 1
        s_nop 3
        s_cmp_lg_u32 s44, 0
        s_cbranch_scc1 {L(lb)}_ok
        s_cmp_gt_u32 s41, {SPIN}
        s_cbranch_scc1 {L(lb)}_ok
        s_sleep 2
        buffer_load_dword v{VFL+2}, v{VT}, s[12:15], 0 offen offset:128 sc1
        s_waitcnt vmcnt(0)
        s_branch {L(lb)}
        {L(lb)}_ok:
        """
    where = {u: ("a", 16*u) for u in range(15)}
    fr = {"x": ("v", 0), "w": ("v", 60)}
    cur = {}
    def acc(u, f): k, b = where[u]; return f"{k}[{b+4*f}:{b+4*f+3}]"
    def xf(n, u): k, b = cur[("x", n)]; return f"{k}[{b+4*u}:{b+4*u+3}]"
    def wf(n, f, h=None, w=4):
        k, b = cur[("w", n)]; b += 16*(n&1) + 4*f
        return f"{k}[{b}:{b+w-1}]" if h is None else f"{k}[{b+2*h}:{b+2*h+1}]"
    def rd_w(n, f, h):
        cur.setdefault(("w", n), fr["w"])
        LG.issue(("w", n)); return f"ds_read_b64_tr_b16 {wf(n,f,h)}, v{VWR+(f&1)} offset:{(n % 4)*16384 + (f>>1)*8192 + h*1024}"
    def rd_x(n, u):
        cur.setdefault(("x", n), fr["x"])
        LG.issue(("x", n, u)); sl = (n//2) % 3; return f"ds_read_b128 {xf(n,u)}, v{(236 if sl == 2 else VXR)+(n&1)} offset:{2048*u + (32768 if sl == 1 else 0)}"
    if WARM:
        a(wait(vm=[("Q",)]))
        a(f"""
        s_mov_b64 exec, 0
        s_cmp_eq_u32 s20, 0
        s_cbranch_scc1 {L('w')}0
        s_cmp_eq_u32 s20, 1
        s_cbranch_scc1 {L('w')}1
        s_cmp_eq_u32 s20, 2
        s_cbranch_scc1 {L('w')}2
        s_branch {L('w')}3
        {L('wback')}:
        s_mov_b64 exec, -1
        """)
    a(wait(vm=[("W", 0), ("X", 0)]) + "\ns_barrier")
    stamp()
    if FINE1: a("s_memtime s[28:29]".replace("28:29", "42:43") if False else "")
    for f in range(4): a(rd_w(0, f, 0)); a(rd_w(0, f, 1))
    for u in range(15): a(rd_x(0, u))
    a("s_waitcnt lgkmcnt(0)"); LG.drain()
    lbl = [0]
    def step(n, extra=(), stream=None, mig=()):
        first = n == 0; last = n == 31
        seq = [("m", m >> 2, (m & 3) if (m >> 2) % 2 == 0 else 3 - (m & 3)) for m in range(60)]
        for pos, f in (((46, 2), (34, 0)) if not last else ((4, 2), (2, 0))): seq.insert(pos, ("s", f))
        G = lambda m: [i for i, e in enumerate(seq) if e[0] == "m"][m]
        gp = Gaps(62)
        BG = G(7); END = G(54)
        for g, fn in extra:
            if g < 0: gp.add(BG, fn)
        def dobar():
            LG.drain()
            assert last or (VM.ops.count(("W", n+1)) == 4 and VM.ops.count(("X", (n+1)//2)) == 8), n
            w = VM.need([("W", n+1)] + ([("X", (n+1)//2)] if n & 1 else []))
            fine = ((f"\nv_writelane_b32 v239, s40, {n-1}" if n else "") + "\ns_memtime s[40:41]") if FINE1 and n < 15 else ""
            if FINE1 and n >= 15: fine = (f"\nv_writelane_b32 v239, s{40 if n == 15 else 62}, {n-1}") + "\ns_memtime s[62:63]"
            if FINE1 and last: fine += "\ns_nop 0\nv_accvgpr_write_b32 a252, v239"
            return f"s_waitcnt {w+' ' if w else ''}lgkmcnt(0)\ns_barrier" + fine
        gp.add(BG, dobar, 2)
        if not last:
            gp.add(G(8), lambda: rd_x(n+1, 0), lds=True); gp.add(G(9), lambda: rd_x(n+1, 1), lds=True)
            for f in range(4):
                for h in range(2): gp.add(G(10 + 4*f + 2*h), lambda f=f, h=h: rd_w(n+1, f, h), lds=True)
            for u in range(2, 14): gp.add(G(4*u+3), lambda u=u: rd_x(n+1, u), lds=True)
        gp.add(END, lambda: "s_cmp_lt_u32 s21, 7", 2)
        def ordered(its, starts, g1=END):
            g = 0
            for it, st_ in zip(its, starts): g = gp.force(it, min(max(g, st_), g1-1), g1, it.w, it.lds)
        if pend:
            if n + LW < 32: pend.extend(w_items(n))
            pend.extend(x_items(n))
            its = [pend.pop(0) for _ in range(min(len(pend), 18))]
            ordered(its, [BG + 1 + (i*44)//len(its) for i in range(len(its))])
        else:
            its = []; sts = []
            if n + LW < 32: its += w_items(n); sts += [BG+1, BG+2, G(13), G(17), G(21), G(25)]
            if xjob(n)[0] < 16: its += x_items(n); sts += [G(26), G(27), G(29), G(36), G(42), G(48)]
            ordered(its, sts)
        if ROT and n + LW + ROT < 32:
            k = n + LW + ROT
            ordered(split(f"s_cmp_eq_u32 s21, {k % 9}|s_cselect_b32 s42, {(k-ROT)*32*7168}, s39\nbuffer_load_dword v{VPF+1}, v{VPF}, s[8:11], s42 offen {WNT}", ("R",)), [0, 2])
        ex = sorted([(g, i, fn) for i, (g, fn) in enumerate(extra) if g >= 0], key=lambda x: x[:2])
        ordered([fn for g, i, fn in ex], [G(g) for g, i, fn in ex])
        for u, dst, g0 in mig:
            src = where[u][1]; post = g0 >= 4*u + 12
            assert post or g0 + 60 >= 4*u + 12
            ordered([T(f"v_accvgpr_read_b32 v{dst+r}, a{src+r}") for r in range(16)], [G(g0)]*16, END if post else G(4*u - 3))
            if not post: where[u] = ("v", dst)
        g = 0
        while stream:
            it = stream[0]
            g = gp.place(it, g, END, min(it.w, 2), it.lds)
            if g is None: break
            stream.pop(0)
        over[0] += sum(max(0, c - 2) for c in gp.c)
        for i, e in enumerate(seq):
            if e[0] == "s":
                a(f"v_smfmac_f32_16x16x64_bf16 a[{240+2*e[1]}:{243+2*e[1]}], a[248:251], {wf(n,e[1],w=8)}, v{VIDX}")
            else:
                _, u, f = e; m = 4*u + (f if u % 2 == 0 else 3 - f)
                if m % 8 == 0:
                    a(wait(lg=[("x", n, u), ("x", n, min(u+1, 14))] + ([("w", n)] if m == 0 else [])))
                if m == 56:
                    lbl[0] += 1
                    a(f"s_cbranch_scc1 {L('sk')}{lbl[0]}")
                c = "0" if first else acc(u, f)
                a(f"v_mfma_f32_16x16x32_bf16 {acc(u,f)}, {wf(n,f)}, {xf(n,u)}, {c}")
                if m == 59:
                    a(f"{L('sk')}{lbl[0]}:")
                    if not last: a(rd_x(n+1, 14))
            for fn in gp.g[i]: a(fn())
        for u, dst, g0 in mig: where[u] = ("v", dst)
    over = [0]
    def spin(lb, reg, lanes, soff, mask, tmp="s24", sleep=4):
        lo, hi = mask & 0xffffffff, mask >> 32
        return f"""
        s_cmp_eq_u32 s20, 0
        s_cbranch_scc0 {L(lb)}_ok
        s_mov_b32 {tmp}, 0
        {L(lb)}:
        v_cmp_eq_u32 vcc, s44, v{reg}
        s_add_u32 {tmp}, {tmp}, 1
        s_nop 3
        s_andn2_b32 vcc_lo, {lo}, vcc_lo
        s_andn2_b32 vcc_hi, {hi}, vcc_hi
        s_cmp_eq_u64 vcc, 0
        s_cbranch_scc1 {L(lb)}_ok
        s_cmp_gt_u32 {tmp}, {SPIN}
        s_cbranch_scc1 {L(lb)}_ok
        s_sleep {sleep}
        buffer_load_dword v{reg}, v{lanes}, s[48:51], {soff} offen sc1
        s_waitcnt vmcnt(0)
        s_branch {L(lb)}
        {L(lb)}_ok:
        """
    PMASK = 0x0000ffff3fffffff
    CVB = 114688; HB = 448; UB = HB + 4096 + 64; WSZ = 8704; STB = 98304
    st_setup = f"""
        s_mov_b32 s12, s36
        s_mov_b32 s13, s37
        s_lshl_b32 s40, s65, 8
        s_add_u32 s14, s40, 3840
        s_lshl_b32 s29, s20, 12
        s_add_u32 m0, s29, {STB}"""
    pf_setup = f"""
        s_mov_b32 s16, s52
        s_mov_b32 s17, s53
        s_mov_b32 s18, 7340032
        s_lshl_b32 s61, s2, 2
        s_add_u32 s61, s61, s20                 ; channel d
        s_lshr_b32 s28, s22, 2
        s_mul_i32 s28, s28, 9
        s_add_u32 s28, s28, s21
        s_and_b32 s42, s22, 3
        s_lshr_b32 s41, s3, 1
        s_cmp_eq_u32 s64, 1|s_cselect_b32 s28, 63, s28|s_cselect_b32 s42, s41, s42
        s_lshl_b32 s28, s28, 2
        s_add_u32 s28, s28, s20
        s_lshl_b32 s42, s42, 2
        s_lshr_b32 s42, 0x2130, s42
        s_and_b32 s42, s42, 3
        s_lshr_b32 s41, s28, 7
        s_mul_i32 s41, s41, 384
        s_add_u32 s28, s28, s41
        s_lshl_b32 s42, s42, 7
        s_add_u32 s28, s28, s42
        s_mul_i32 s28, s28, 7168
        s_mov_b32 s45, s28
        v_min_u32 v{VFL+4}, 55, v{VL}
        v_lshlrev_b32 v{VFL+4}, 7, v{VFL+4}"""
    pf = f"buffer_load_dword v{VFL+5}, v{VFL+4}, s[16:19], s28 offen"
    pf2 = f"""
        s_mov_b32 s16, s56
        s_mov_b32 s17, s57
        s_mov_b32 s18, 4194304
        s_lshl_b32 s28, s61, 12
        v_min_u32 v{VFL+4}, 31, v{VL}
        v_lshlrev_b32 v{VFL+4}, 7, v{VFL+4}
        buffer_load_dword v{VFL+5}, v{VFL+4}, s[16:19], s28 offen"""
    cv_setup = f"""
        s_mov_b32 s18, 4194304
        s_mul_i32 s60, s20, {WSZ}
        s_add_u32 s60, s60, {CVB}
        s_lshl_b32 s28, s61, 12
        s_add_u32 m0, s60, {HB}"""
    cv_h = lambda i: f"buffer_load_dwordx4 v{VL16}, s[16:19], s28 offen offset:{1024*i} lds"
    cv_setup2 = f"""
        s_mov_b32 s16, s34
        s_mov_b32 s17, s35
        s_add_u32 m0, s60, {UB}
        s_lshr_b32 s28, s2, 4
        s_lshl_b32 s28, s28, 12
        s_and_b32 s41, s2, 15
        s_lshl_b32 s41, s41, 6
        s_add_u32 s28, s28, s41
        s_lshl_b32 s41, s20, 10
        s_add_u32 s28, s28, s41
        v_lshrrev_b32 v{VFL+4}, 2, v{VL}
        v_lshlrev_b32 v{VFL+4}, 16, v{VFL+4}
        v_and_b32 v243, 48, v{VL16}
        v_add_u32 v{VFL+4}, v{VFL+4}, v243"""
    cv_u = lambda i: f"buffer_load_dwordx4 v{VFL+4}, s[16:19], s28 offen offset:{1024*i} lds\ns_add_u32 s28, s28, {16*65536-1024}"
    cv_setup3 = f"""
        s_mov_b32 s16, s58
        s_mov_b32 s17, s59
        s_mov_b32 s18, 2048
        s_lshl_b32 s28, s61, 1
        v_mov_b32 v{VFL+3}, 0"""
    cv_d = f"buffer_load_ushort v{VFL+3}, v{VFL+3}, s[16:19], s28 offen"
    zp = [f"v_mov_b32 v240, 0\nv_lshl_add_u32 v241, v{VL}, 2, s60", f"v_min_u32 v242, 47, v{VL}\nv_lshl_add_u32 v242, v242, 2, s60",
          f"v_and_b32 v243, 15, v{VL}\nv_lshl_add_u32 v243, v243, 2, s60",
          "ds_write_b32 v241, v240", "ds_write_b32 v242, v240 offset:256", f"ds_write_b32 v243, v240 offset:{UB-64}"]
    def lg(txt):
        def f(): LG.issue(("z",)); return txt
        return It(f, 1, True)
    CS = 224; P = 208; O0 = 240; TA = 92; SR = 80
    NT = 8; RB = 256; UNIT = 8192; RP = 14; NSTEP = 56
    HS_ = 3072 if HSK else 2048; VHO = 236
    ACC = 64; DU = 0; TMP = 32; VCA = 204; VCB = 205; VCU = 206; VCD = 207
    cva = f"""
    v_bfe_u32 v244, v{VL}, 4, 1
    v_lshlrev_b32 v244, 2, v244
    v_and_b32 v245, 3, v{VL}
    v_add_u32 v244, v244, v245
    v_lshrrev_b32 v246, 5, v{VL}
    v_sub_u32 v244, v244, v246
    v_lshlrev_b32 v244, 6, v244
    v_bfe_u32 v247, v{VL}, 2, 2
    v_lshlrev_b32 v{VCD}, 3, v247
    v_sub_u32 v244, v244, v{VCD}
    s_add_u32 s25, s60, {HB-328-32}
    v_add_u32 v{VCA}, s25, v244
    v_bfe_u32 v244, v{VL}, 4, 1
    v_lshlrev_b32 v244, 5, v244
    v_add_u32 v245, v245, v247
    v_lshl_add_u32 v244, v245, 3, v244
    v_lshl_add_u32 v244, v246, 6, v244
    s_add_u32 s25, s60, {UB-56}
    v_add_u32 v{VCB}, s25, v244
    v_lshl_add_u32 v{VCU}, v{VL}, 1, s60""".strip().split("\n")
    def af(s_, q, h=None): b = 32*s_ + 4*q; return f"a[{b}:{b+3}]" if h is None else f"a[{b+2*h}:{b+2*h+1}]"
    def bf(s_, p, h=None): b = 64 + 32*s_ + 4*p; return f"a[{b}:{b+3}]" if h is None else f"a[{b+2*h}:{b+2*h+1}]"
    def reads(r):
        T_ = []
        for i in range(8):
            m = 4*i - r; e = 4*i + r
            T_.append(f"ds_read_b64_tr_b16 {af(r&1,i,0)}, v{VCA} offset:{128*(m+3)+32}")
            T_.append(f"ds_read_b64_tr_b16 {af(r&1,i,1)}, v{VCA} offset:{128*(m+3)}")
            T_.append(f"ds_read_b64_tr_b16 {bf(r&1,i,0)}, v{VCB} offset:{128*e}")
            T_.append(f"ds_read_b64_tr_b16 {bf(r&1,i,1)}, v{VCB} offset:{128*e+32}")
        return T_
    eh_s = f"""
        s_add_u32 s12, s36, {WS_HF}|s_addc_u32 s13, s37, 0
        s_cmp_eq_u32 s64, 1|s_cselect_b32 s14, 0, {64*112*HS_}
        s_lshl_b32 s41, s22, 2
        s_add_u32 s41, s41, s20
        {"s_and_b32 s40, s22, 3@s_lshl_b32 s40, s40, 1@s_sub_u32 s41, s41, s40@s_lshr_b32 s40, s20, 1@s_mul_i32 s40, s40, 6@s_add_u32 s41, s41, s40".replace("@", chr(10)) if PAIR1 else ""}
        s_lshr_b32 s40, s65, 1
        s_mul_i32 s40, s40, 112
        s_add_u32 s41, s41, s40
        s_mul_i32 s41, s41, {HS_}
        s_and_b32 s40, s65, 1|s_cselect_b32 s46, {112*HS_}, 0
        s_sub_u32 s47, {112*HS_}, s46
        s_sub_u32 s41, s41, s47
        s_add_u32 s29, s29, {STB}""".strip().split("\n")
    hoff = [f"v_cmp_lt_u32 vcc, 23, v{VL}", f"v_mov_b32 v{VHO}, v{VL16}", f"v_add_u32 v{VHO+1}, {128 if HSK else 0}, v{VL16}", f"v_cndmask_b32 v{VHO}, v{VHO}, v{VHO+1}, vcc",
            f"v_cmp_lt_u32 vcc, 15, v{VL}", f"v_add_u32 v{VHO+1}, {1152 if HSK else 1024}, v{VL16}", f"v_add_u32 v241, {1280 if HSK else 1024}, v{VL16}", f"v_cndmask_b32 v{VHO+1}, v{VHO+1}, v241, vcc"]
    eh_v = [f"v_and_b32 v240, 48, v{VL}", "v_lshrrev_b32 v241, 2, v240", "v_add_lshl_u32 v240, v240, v241, 2",
            f"v_and_b32 v{VT}, 15, v{VL}", f"v_lshl_add_u32 v{VT}, v{VT}, 4, s29",
            f"v_cmp_eq_u32 vcc, s40, v{VFL+3}x", f"s_nop 1", f"v_cndmask_b32 v216, v{VHO+1}, v{VHO}, vcc", f"v_cndmask_b32 v217, v{VHO}, v{VHO+1}, vcc"]
    eh_v = [x.replace(f"v{VFL+3}x", "v218") for x in ["v_mov_b32 v218, 0"] + eh_v]
    eh_c = [f"v_accvgpr_read_b32 v{208+r}, a{240+r}" for r in range(8)] + [f"v_add_f32 v{208+2*f}, v{208+2*f}, v{209+2*f}" for f in range(4)]
    eh_p = [f"ds_bpermute_b32 v{CS+4*f+r}, v240, v{208+2*f} offset:{4*r}" for f in range(4) for r in range(4)]
    NL, NS_, NK_ = P0AT
    stream = []; sig_at = None
    migs = {}
    if MIG:
        migs = {19: [(0, 92, 12), (4, 108, 28)], 20: [(1, 124, 16), (5, 140, 32)], 21: [(2, 156, 20), (6, 172, 36)], 22: [(3, 188, 24)],
                24: [(11, 0, 12), (7, 16, 40)], 25: [(10, 32, 12), (8, 48, 44)], 26: [(9, 64, 12)]}
        if MIGN == 7:
            migs = {22: [(0, 92, 12)], 23: [(1, 108, 16)], 24: [(2, 124, 20)], 25: [(3, 140, 24)], 26: [(4, 156, 28)], 27: [(5, 172, 32)], 28: [(6, 188, 36)]}
    at = lambda g, its: [(g, it) for it in its]
    for n in range(32):
        ex = []
        NLS = -(-21 // KPS)
        if NL <= n < NL + NLS:
            its = p_ld[KPS*(n-NL):KPS*(n-NL)+KPS]
            for g, it in zip({7: (15, 23, 27, 33, 39, 45, 50), 6: (15, 23, 33, 39, 45, 50), 4: (15, 33, 39, 50), 3: (15, 33, 50), 2: (33, 50), 1: (50,)}[KPS], its): ex += at(g, it)
        if n == NS_: stream += p_st
        if n == max(NK_, NL + NLS + 1): stream += p_kv
        if sig_at is None and n > NK_ and not stream and ("N",) in VM.ops: sig_at = n + 2
        if n == sig_at:
            ex += [(-1, lambda: wait(vm=[("PS",), ("N",)])), (8, It(lambda: nonce_chk("nc"), 2)), (12, vm(("F",), f"buffer_store_dword v{VFL+2}, v{VPS}, s[48:51], 0 offen sc1"))]
            assert n <= (18 if MIG and MIGN == 12 else 21), n
        nw = 56 // TRK; ns = 32 // TRK; t0 = 29 - nw - ns
        assert sig_at is None or sig_at - 1 <= t0 or n < sig_at, (sig_at, t0)
        slow = f"\ns_and_b32 s42, s22, 3\ns_cmp_eq_u32 s42, 1|s_cselect_b32 s18, 0, s18" if SLOWX else ""
        if n == t0: ex += at(10, split(pf_setup.replace("55", str(TRK-1)) + slow))
        if n == t0 + nw: ex += at(40, split("s_mov_b32 s16, s56\ns_mov_b32 s17, s57\ns_mov_b32 s18, 4194304\ns_lshl_b32 s28, s61, 12" + (slow if SLOWS else "")))
        if t0 <= n < t0 + nw + ns: ex += at(50, split(pf + f"\ns_add_u32 s28, s28, {128*TRK}", ("PF",)))
        if n == 23: ex += [(43, vm(("PC",), f"buffer_load_dword v{VT}, v{VPP}, s[48:51], 0 offen sc1"))]
        if n == 26: ex += [(-1, lambda: wait(vm=[("PC",)]) + "\n" + spin("pc", VT, VPP, "0", PMASK, tmp="s41"))]
        if n == 28: ex += at(27, split(st_setup)) + [(33+4*i, vm(("ST",), f"buffer_load_dwordx4 v{VL16}, s[12:15], s40 offen offset:{1024*i} lds")) for i in range(4)]
        if n == 29: ex += at(9, split(cv_setup)) + [(13+8*i, vm(("CV",), cv_h(i))) for i in range(4)] + at(40, split("\n".join(zp[:3]))) + at(46, [lg(x) for x in zp[3:]])
        if n == 30:
            ex += at(0, split(cv_setup2))
            for i in range(4): ex += at(17+8*i, split(cv_u(i), ("CV",)))
            ex += at(44, split(cv_setup3 + "\n" + cv_d, ("CV",)))
            stream += split("\n".join(cva))
        if n == 31:
            ex += at(0, split("\n".join(hoff))) + at(8, split("\n".join(eh_s))) + at(16, split("\n".join(eh_v + eh_c))) + at(30, [lg(x) for x in eh_p])
        if MIG and MIGN == 12 and n == 23: fr["x"] = ("a", 0); fr["w"] = ("a", 64)
        step(n, extra=ex, stream=stream, mig=migs.get(n, ()))
    print("gemm1: sig_at", sig_at, "over", over[0])
    assert not stream and sig_at
    stamp()
    a(wait(vm=[("ST",)]))
    a(f"ds_read_b128 v[{SR}:{SR+3}], v{VT}")
    LG.drain()
    fs(True)
    def epi(u):
        O = O0 + 4*(u & 1); MS = SR + 4*(u & 1)
        if where[u][0] == "v": B = where[u][1]
        else:
            B = TA
            for r in range(16): a(f"v_accvgpr_read_b32 v{B+r}, a{where[u][1]+r}")
        a("s_waitcnt lgkmcnt(0)")
        if u < 14: fs()
        if u < 14: a(f"ds_read_b128 v[{SR+4*((u+1)&1)}:{SR+3+4*((u+1)&1)}], v{VT} offset:{256*(u+1)}")
        if RSP and 9 <= u < 13:
            a(wait(vm=[("CV",)]))
            for x in reads(0)[8*(u-9):8*(u-8)]: a(x)
        G = [B+2*p for p in range(4)]; U = [B+8+2*p for p in range(4)]
        for p in range(8): a(f"v_pk_fma_f32 {pr(B+2*p)}, {pr(CS+2*p)}, {pr(MS)}, {pr(B+2*p)} op_sel_hi:[1,0,1] neg_lo:[0,1,0] neg_hi:[0,1,0]")
        for p in range(4): a(f"v_pk_mul_f32 {pr(P+2*p)}, {pr(G[p])}, {pr(G[p])}")
        for p in range(4): a(f"v_pk_fma_f32 {pr(P+2*p)}, {pr(P+2*p)}, {pr(MS+2)}, {pr(MS)} op_sel:[0,0,1] op_sel_hi:[1,0,1]")
        for p in range(4): a(f"v_pk_mul_f32 {pr(P+2*p)}, {pr(P+2*p)}, {pr(G[p])}")
        for r in range(8): a(f"v_exp_f32 v{P+r}, v{P+r}")
        for p in range(4): a(f"v_pk_mul_f32 {pr(G[p])}, {pr(G[p])}, {pr(U[p])}")
        for p in range(4): a(f"v_pk_fma_f32 {pr(P+2*p)}, {pr(P+2*p)}, {pr(MS+2)}, {pr(MS+2)} op_sel:[0,1,1] op_sel_hi:[1,1,1]")
        for r in range(8): a(f"v_rcp_f32 v{P+r}, v{P+r}")
        a(f"s_add_u32 s41, s41, {'s46' if u & 1 else 's47'}")
        for p in range(4): a(f"v_pk_mul_f32 {pr(G[p])}, {pr(G[p])}, {pr(P+2*p)}")
        for p in range(4): a(f"v_cvt_pk_bf16_f32 v{O+p}, v{G[p]}, v{G[p]+1}")
        a(f"buffer_store_dwordx4 v[{O}:{O+3}], v{216+(u&1)}, s[12:15], s41 offen sc1")
    assert where[0] == ("v", TA) or not MIG
    for u in range(14):
        if u == 13:
            assert MIG
            if not RSP:
                a(wait(vm=[("CV",)]))
                for x in reads(0): a(x)
        if L2PF and u == L2AT - 1:
            a(f"""
            s_mov_b32 s16, s52
            s_mov_b32 s17, s53
            s_mov_b32 s18, 7340032
            s_lshl_b32 s24, s38, 2
            s_add_u32 s24, s24, s20
            s_lshr_b32 s25, s24, 6
            s_and_b32 s24, s24, 63
            s_mul_i32 s25, s25, 1792
            s_mul_i32 s24, s24, 7
            s_add_u32 s24, s24, s25
            s_add_u32 s24, s24, 448
            s_lshl_b32 s24, s24, 11
            s_and_b32 s25, s3, 1
            s_lshl_b32 s25, s25, 10
            s_add_u32 s24, s24, s25
            v_min_u32 v{VFL+4}, 55, v{VL}
            v_lshrrev_b32 v{VFL+5}, 3, v{VFL+4}
            v_and_b32 v{VFL+4}, 7, v{VFL+4}
            v_lshlrev_b32 v{VFL+4}, 7, v{VFL+4}
            v_lshl_add_u32 v{VFL+4}, v{VFL+5}, 11, v{VFL+4}
            """)
        if L2PF and u >= L2AT and (u - L2AT) % 3 == 0 and (u - L2AT)//3 < L2PF:
            VM.issue(("PF",)); a(f"buffer_load_dword v{VFL+5}, v{VFL+4}, s[16:19], s24 offen\ns_add_u32 s24, s24, {448*2048}")
        epi(u); VM.issue(("HS",))
    a(f"s_cmp_lt_u32 s21, 7\ns_cbranch_scc1 {L('conv')}")
    epi(14)
    a(f"{L('conv')}:")
    fs(True)
    stamp()
    VWR2 = 196; T0_ = 36
    RHO = [31, 27, 22, 18, 13, 8, 8, 4] if REMAP else [0]*8
    g2s = f"""
    s_cmp_lt_u32 s3, 4|s_cselect_b32 s39, s24, s25
    s_and_b32 s41, s3, 3
    s_lshl_b32 s41, s41, 3
    s_lshr_b32 s39, s39, s41
    s_add_u32 s38, s38, s39
    s_and_b32 s38, s38, 31               ; gemm2 slot: slow gemm1 columns get fast gemm2 tiles
    s_lshr_b32 s61, s3, 1
    s_lshl_b32 s61, s61, 2
    s_and_b32 s39, s38, 3
    s_add_u32 s61, s61, s39              ; mt
    s_and_b32 s62, s3, 1
    s_lshl_b32 s62, s62, 2
    s_bfe_u32 s39, s38, 0x20002
    s_add_u32 s62, s62, s39              ; nt
    s_lshr_b32 s63, s38, 4               ; kh
    s_lshl_b32 s41, s20, 14
    {'s_and_b32 s39, s62, 3@s_lshl_b32 s42, s62, 8@s_lshl_b32 s39, s39, 7@s_sub_u32 s42, s42, s39'.replace('@', chr(10)) if PAIR2 else 's_lshl_b32 s42, s62, 8'}
    s_lshr_b32 s35, s42, 1
    s_add_u32 s41, s41, s42
    s_mul_i32 s43, s63, {NSTEP*32*2048}
    s_add_u32 s43, s43, s41
    s_add_u32 s8, s52, s43|s_addc_u32 s9, s53, 0
    s_sub_u32 s10, {NSTEP*32*2048}, s41
    s_lshl_b32 s45, s20, 12""".strip().replace("|", "@").split("\n")
    g2s = [f"s_mov_b32 s24, {sum(r << 8*i for i, r in enumerate(RHO[:4]))}", f"s_mov_b32 s25, {sum(r << 8*i for i, r in enumerate(RHO[4:]))}"] + [x.replace("@", "\n") for x in g2s]
    g2h = f"""
    s_lshl_b32 s40, s61, 2
    s_add_u32 s40, s40, s20              ; tokgroup
    s_mul_i32 s41, s40, 112
    s_mul_i32 s42, s63, {NSTEP}
    s_add_u32 s41, s41, s42
    s_mul_i32 s41, s41, {HS_}
    s_add_u32 s41, s41, {WS_HF}
    s_add_u32 s4, s36, s41|s_addc_u32 s5, s37, 0
    s_mov_b32 s6, {NSTEP*HS_}""".strip().split("\n")
    g2h = [x.replace("|", "\n") for x in g2h] + [x.replace(f"v{VHO+1}", "v233").replace(f"v{VHO}", "v232").replace("v241", f"v{T0_}") for x in hoff]
    def dma2(n):
        p = n >> 1
        head = [T(f"s_add_u32 m0, s45, {(p % (R//2))*2*UNIT}"), T(f"s_mov_b32 s26, {p*131072}")] if n % 2 == 0 else []
        return head + [vm(("W2", n), f"buffer_load_dwordx4 v{VWO2+i}, s[8:11], s26 offen offset:{1024*i} {W2NT} lds") for i in (2*(n&1), 2*(n&1)+1)]
    du = [f"ds_read_u16 v{DU+g}, v{VCU} offset:{UB+128*g}" for g in range(32)]
    du2 = [f"v_lshlrev_b32 v{VCD}, 16, v{VFL+3}"]
    for g in range(32): du2 += [f"v_lshlrev_b32 v{DU+g}, 16, v{DU+g}", f"v_mul_f32 v{DU+g}, v{VCD}, v{DU+g}"]
    g2addr = [f"v_bfe_u32 v{T0_}, v{VL}, 2, 3", f"v_lshlrev_b32 v{T0_+1}, 8, v{T0_}", f"v_lshrrev_b32 v{T0_+2}, 5, v{VL}", f"v_lshl_add_u32 v{T0_+1}, v{T0_+2}, 12, v{T0_+1}",
              f"v_and_b32 v{T0_+2}, 3, v{VL}", f"v_lshl_add_u32 v{T0_+1}, v{T0_+2}, 3, v{T0_+1}",
              "s_lshl_b32 s24, s63, 2", f"v_xor_b32 v{T0_}, s24, v{T0_}", f"v_lshl_add_u32 v{VWR2}, v{T0_}, 5, v{T0_+1}"] \
             + [f"v_xor_b32 v{VWR2+ft}, {ft<<5}, v{VWR2}" for ft in range(1, 8)] + ["s_mov_b32 s24, 65536"] \
             + [f"v_add_u32 v{208+ft}, s24, v{VWR2+ft}" for ft in range(8)] + [f"v_add_u32 v{224+ft}, s24, v{208+ft}" for ft in range(8)]
    g2dma = []
    for i in range(2):
        g2dma += [f"v_lshrrev_b32 v{T0_}, 4, v{VL}", f"v_add_u32 v{T0_}, {4*i}, v{T0_}", f"v_lshlrev_b32 v{T0_+1}, 1, v{T0_}", f"v_and_b32 v{T0_+2}, 15, v{VL}", f"v_xor_b32 v{T0_+2}, v{T0_+2}, v{T0_+1}",
                  f"v_and_b32 v{T0_+1}, 7, v{T0_+2}", f"v_lshlrev_b32 v{T0_+1}, 4, v{T0_+1}", f"v_and_b32 v{T0_+2}, 8, v{T0_+2}", f"v_lshl_add_u32 v{T0_+2}, v{T0_+2}, {6 if PAIR2 else 4}, v{T0_+1}",
                  f"v_lshl_add_u32 v{VWO2+i}, v{T0_}, 11, v{T0_+2}"]
    g2dma += [f"v_subrev_u32 v{VWO2+1}, 1024, v{VWO2+1}", f"v_add_u32 v{VWO2+2}, {65536-2048}, v{VWO2}", f"v_add_u32 v{VWO2+3}, {65536-2048}, v{VWO2+1}"]
    VHP = 192; VPR = 193; VYW = 194
    hp = f"""
    s_lshl_b32 s24, s61, 3
    s_mul_i32 s25, s24, 4682
    s_lshr_b32 s25, s25, 16
    s_min_u32 s25, s25, 7
    s_cmp_ge_u32 s24, 113|s_cselect_b32 s25, 8, s25
    s_add_u32 s24, s24, 7
    s_mul_i32 s27, s24, 4682
    s_lshr_b32 s27, s27, 16
    s_min_u32 s27, s27, 7
    s_cmp_ge_u32 s24, 113|s_cselect_b32 s27, 8, s27
    s_sub_u32 s27, s27, s25
    s_lshl_b32 s27, s27, 8
    s_lshl_b32 s25, s25, 8
    s_mul_i32 s24, s63, 48
    s_add_u32 s25, s25, s24
    v_and_b32 v{T0_}, 15, v{VL}
    v_lshrrev_b32 v{T0_+1}, 4, v{VL}
    v_mul_lo_u32 v{T0_+2}, v{T0_+1}, s27
    v_lshl_add_u32 v{T0_+2}, v{T0_}, 2, v{T0_+2}
    s_lshl_b32 s24, s20, 2
    v_add_u32 v{T0_+1}, s24, v{T0_+1}
    v_cmp_gt_u32 vcc, 2, v{T0_+1}
    v_mov_b32 v{T0_}, {OOB}
    s_lshl_b32 s24, s20, 6
    v_add_u32 v{T0_+1}, s24, v{VL}
    v_cndmask_b32 v{VHP}, v{T0_}, v{T0_+2}, vcc
    v_lshlrev_b32 v{T0_+2}, 2, v{T0_+1}
    v_cmp_gt_u32 vcc, 16, v{T0_+1}
    s_lshl_b32 s24, s20, 1
    s_add_u32 s24, s24, {CVB}
    v_cndmask_b32 v{VFL}, v{T0_}, v{T0_+2}, vcc
    v_lshl_add_u32 v{VYW}, v{VL}, 3, s24
    s_mov_b32 s28, 0
    s_brev_b32 s29, 1
    v_mov_b32 v{VYW+1}, 0""".strip().split("\n")
    hp = [x.replace("|", "\n") for x in hp]
    sg = ["s_lshl_b32 s34, s21, 8", "s_lshl_b32 s24, s22, 2", "s_add_u32 s34, s34, s24", "s_lshl_b32 s24, s64, 30", "s_add_u32 s34, s34, s24"]
    ACC2 = 128
    def acc2(ft, u): b = ACC2 + 4*(2*ft+u); return f"v[{b}:{b+3}]"
    def wf2(buf, ft, h=None):
        b = 32*buf + 4*ft
        return f"a[{b}:{b+3}]" if h is None else f"a[{b+2*h}:{b+2*h+1}]"
    AH = 128
    def hf(slot, u): b = AH + 8*slot + 4*u; return f"a[{b}:{b+3}]"
    def ld_h(n):
        return [T(f"s_mov_b32 s23, {HS_*n}")] + [vm(("H", n), f"buffer_load_dwordx4 {hf(n % HD, u)}, v{232+u}, s[4:7], s23 offen {HNT}") for u in range(2)]
    def rd_w2(n, ft, h, buf=None):
        LG.issue(("w", n, ft))
        return f"ds_read_b64_tr_b16 {wf2(n&1 if buf is None else buf, ft, h)}, v{(VWR2, 208, 224)[(n % R)//8]+ft} offset:{((n % R) % 8 >> 1)*2*UNIT + (n & 1)*2048 + h*8192}"
    Rg = lambda g, rho: ACC + 4*g + rho
    def combine(n):
        o = []
        for rho in (2, 1, 0):
            for k in range(4):
                g = 4*n + k
                prev = f"v{Rg(g-1, rho+1)}" if g else f"v{VYW+1}"
                o.append(f"v_cndmask_b32 v{TMP+k}, v{Rg(g,rho+1)}, {prev}, s[28:29]")
            for k in range(4):
                g = 4*n + k
                o.append(f"v_add_f32_dpp v{Rg(g,rho)}, v{TMP+k}, v{Rg(g,rho)} wave_ror:1 row_mask:0xf bank_mask:0xf")
        for k in range(4): o.append(f"v_add_f32 v{Rg(4*n+k,0)}, v{Rg(4*n+k,0)}, v{DU+4*n+k}")
        for k in (0, 2): o.append(f"v_cvt_pk_bf16_f32 v{DU+4*n+k}, v{Rg(4*n+k,0)}, v{Rg(4*n+k+1,0)}")
        for k in (0, 2): o += [f"ds_write_b16 v{VYW}, v{DU+4*n+k} offset:{512*(4*n+k)}", f"ds_write_b16_d16_hi v{VYW}, v{DU+4*n+k} offset:{512*(4*n+k+1)}"]
        return o
    XR = 48; YR = 24; ST = 40; T6 = 44; VXA = 216; XLB = 131072
    xa = f"""
    s_lshl_b32 s41, s40, 5
    s_lshl_b32 s43, s63, {8 if PAIR2 else 6}
    s_add_u32 s42, s35, s43              ; f0
    v_and_b32 v{VXA+2}, 15, v{VL}
    v_add_u32 v{VXA+2}, s41, v{VXA+2}    ; token
    v_lshrrev_b32 v{T0_}, 4, v{VL}
    v_lshl_add_u32 v{VXA+3}, v{T0_}, 2, s42    ; feature
    v_lshrrev_b32 v{VXA}, 3, v{VL}
    v_add_u32 v{VXA}, s41, v{VXA}
    v_lshlrev_b32 v{VXA}, 11, v{VXA}
    v_and_b32 v{VXA+1}, 7, v{VL}
    v_lshl_add_u32 v{VXA}, v{VXA+1}, 4, v{VXA}
    v_and_b32 v{VXA+1}, 15, v{VL}
    v_lshlrev_b32 v{VXA+1}, 7, v{VXA+1}
    v_lshl_add_u32 v{VXA+1}, v{T0_}, 3, v{VXA+1}
    s_add_u32 s24, s45, {XLB}
    v_add_u32 v{VXA+1}, s24, v{VXA+1}"""
    xd = f"s_mov_b32 s12, s30\ns_mov_b32 s13, s31\ns_mov_b32 s14, 4194304\ns_lshl_b32 s24, s42, 1\ns_add_u32 m0, s45, {XLB}\n"
    for i in range(4): xd += f"buffer_load_dwordx4 v{VXA}, s[12:15], s24 offen offset:{1024*i} lds\n" + (f"s_add_u32 s24, s24, {16384-1024}\n" if i < 3 else "")
    xr = [f"ds_read_b64 v[{XR+4*ft+2*u}:{XR+4*ft+2*u+1}], v{VXA+1} offset:{2048*u + 32*ft}" for ft in range(4) for u in range(2)]
    xs = f"v_lshlrev_b32 v22, 4, v{VXA+2}\ns_mov_b32 s12, s36\ns_mov_b32 s13, s37\ns_mov_b32 s14, 32768"
    for u in range(2): xs += f"\nbuffer_load_dwordx2 v[{ST+2*u}:{ST+2*u+1}], v22, s[12:15], 0 offen offset:{256*u}"
    def rdi(r):
        def mk(x, i):
            def f(): LG.issue(("c", r, i)); return x
            return It(f, 1, True)
        return [mk(x, j//4) for j, x in enumerate(reads(r))]
    pairs = [(q, n-q) for n in range(8) for q in range(n+1)]
    phases = [[(0, q, p) for q, p in pairs], [(1, q, p) for q, p in pairs], []]
    for grp in ((0, 1, 2), (3,), (4,), (5,), (6,), (7,)):
        for r in (2, 3): phases[2] += [(r, q, p) for q, p in pairs if q + p in grp]
    started = set(); cnt = 0
    pfq = [it for u_ in range(RP) for it in dma2(u_)]
    for ph, ms in enumerate(phases):
        a("s_waitcnt lgkmcnt(0)"); LG.drain()
        fs()
        NG = len(ms); gp = Gaps(NG, CCAP)
        def seqp(its, g0, g1=NG, step_=0):
            g = g0
            for i, it in enumerate(its): g = gp.force(it, min(max(g, g0 + int(i*step_)), g1-1), g1, CVW if getattr(it, "vm", False) else 1, getattr(it, "lds", False))
            return g
        if ph == SIGAT[0]:
            gp.add(SIGAT[1], lambda: wait(vm=[("HS",)]) + "\ns_barrier", 2)
            gp.add(SIGAT[1], vm(("F",), f"buffer_store_dword v{VFL+2}, v{VFL+1}, s[48:51], s34 offen sc1"))
        seqp(rdi(ph+1), 0)
        if ph == 0:
            seqp([lg(x) for x in du], 11)
            lpf = split(f"""
            s_mov_b32 s16, s52
            s_mov_b32 s17, s53
            s_and_b32 s42, s22, 3
            s_cmp_eq_u32 s42, 1|s_cselect_b32 s18, 7340032, 0
            s_mov_b32 s28, s45
            v_min_u32 v{VFL+4}, 55, v{VL}
            v_lshlrev_b32 v{VFL+4}, 7, v{VFL+4}
            buffer_load_dword v{VFL+5}, v{VFL+4}, s[16:19], s28 offen""", ("PF",)) if SLOWX else []
            g = seqp(lpf + [T(x) for x in sg + g2dma + g2s], 0)
            span = (NG-g-1) + PFEND + PF2; tot = len(pfq)
            k = (tot*(NG-g-1)) // span
            seqp(pfq[:k], g+1, NG, (NG-g-1)/k); pfq = pfq[k:]
        if ph == 1:
            k = len(pfq) if not PF2 else (tot*PFEND) // span
            seqp(pfq[:k], 0, NG, PFEND/k); pfq = pfq[k:]
            g = seqp([T(x) for x in du2 + g2h + g2addr + hp], 0)
        left = []
        if ph == 2:
            YB_ = 12
            if pfq: seqp(pfq, 0, NG, PF2/len(pfq))
            gp.add(YB_, lambda: (LG.drain(), "s_waitcnt lgkmcnt(0)\ns_barrier")[1], 2)
            gp.add(PHAT, vm(("PH",), f"buffer_load_dword v{VPR}, v{VHP}, s[48:51], s25 offen sc1"))
            def hchk():
                sv = a.l; a.l = []
                assert VM.ops.count(("W2", 3)) == 2
                a(wait(vm=[("PH",), ("W2", 3)]))
                if not TWO:
                    stamp(); a(spin("ph", VPR, VHP, "s25", 0xffffffff, sleep=PSL)); a("s_barrier"); stamp()
                else:
                    a(f"""
                    v_cmp_eq_u32 vcc, s44, v{VPR}
                    v_mov_b32 v{T0_+1}, {163836}
                    s_lshl_b32 s24, s20, 2
                    v_subrev_u32 v{T0_+2}, s24, v{T0_+1}
                    s_cmp_eq_u32 vcc_lo, -1
                    s_cselect_b32 s24, s6, 0
                    v_mov_b32 v{T0_}, s24
                    ds_write_b32 v{T0_+2}, v{T0_}
                    s_waitcnt lgkmcnt(0)
                    s_barrier
                    ds_read_b32 v{T0_}, v{T0_+1}
                    """)
                    LG.drain(); LG.issue(("hf",))
                t = "\n".join(a.l); a.l = sv; return t
            gp.add(HCHK, hchk, 6)
            H0 = HCHK + 1
            if TWO:
                gp.add(HCHK+1, vm(("PH",), f"buffer_load_dword v{VPR}, v{VHP}, s[48:51], s25 offen sc1"))
                gp.add(HCHK+3, lambda: wait(lg=[("hf",)]) + f"\nv_readfirstlane_b32 s6, v{T0_}\ns_nop 3", 6)
                H0 = HCHK + 4
            c3 = f"""
            s_lshl_b32 s24, s38, 2
            s_add_u32 s24, s24, s20
            s_cmp_ge_u32 s24, 64|s_cselect_b32 s41, {1792 - 64*C3}, 0
            s_mul_i32 s24, s24, {C3}
            s_add_u32 s24, s24, s41
            s_add_u32 s24, s24, 448
            s_lshl_b32 s24, s24, 11
            s_and_b32 s41, s3, 1
            s_lshl_b32 s41, s41, 10
            s_add_u32 s24, s24, s41
            s_add_u32 s24, s24, 384
            v_min_u32 v{T0_}, {C3-1}, v{VL}
            v_lshlrev_b32 v{T0_}, 11, v{T0_}
            s_mov_b32 s16, s52
            s_mov_b32 s17, s53
            s_mov_b32 s18, 7340032
            buffer_load_dword v{VFL+5}, v{T0_}, s[16:19], s24 offen
            """ if C3 else ""
            seqp(split(c3 + xa, ("E",)), 0, PHAT, 0.5)
            seqp([It(lambda ft=ft, h=h: rd_w2(0, ft, h), 1, True) for ft in range(NT) for h in range(2)], max(HCHK+1, 64), NG, 0.5)
            seqp([it for n_ in range(HB0-1) for it in ld_h(n_)], H0, NG, 0.5)
            g = 0
            for n_ in range(7):
                at_ = max(i for i, (r, q, p) in enumerate(ms) if q + p == n_) + 3
                for x in combine(n_):
                    w_ = x.startswith("ds_")
                    g2_ = gp.place(T(x), max(g, at_, YB_+1 if w_ else 0), NG, DPW if "dpp" in x else 1, w_) if not left else None
                    if g2_ is None: left.append(x)
                    elif not w_: g = g2_
        for i, (r, q, p) in enumerate(ms):
            n = p + q
            d = f"v[{ACC+16*n}:{ACC+16*n+15}]"
            c = d if n in started else "0"
            started.add(n)
            if FINE2 and ph == 2 and i in (12, 24, 36, 48, 54, 60): fs(True)
            if r == 3: a(wait(lg=[("c", 3, q), ("c", 3, p)]))
            a(f"v_mfma_f32_32x32x16_bf16 {d}, {af(r&1,q)}, {bf(r&1,p)}, {c}")
            for fn in gp.g[i]:
                t = fn()
                if CX:
                    keep = []
                    for x in t.split("\n"):
                        y = x.strip()
                        if "c" in CX and (y.startswith("v_cndmask_b32 v3") or "dpp" in y): continue
                        if "w" in CX and y.startswith("ds_write_b16"): continue
                        if "p" in CX and y.endswith(" lds"): continue
                        if "h" in CX and y.startswith("buffer_load_dwordx4 a["): continue
                        if "d" in CX and (y.startswith("ds_read_u16") or y.startswith("v_mul_f32 v") or y.startswith("v_lshlrev_b32")): continue
                        if "b" in CX and y == "s_barrier": continue
                        keep.append(x)
                    t = "\n".join(keep)
                a(t)
    print("conv leftover", len(left))
    for x in left: a(x)
    if len(left) < 12: a("s_nop 7\ns_nop 3")
    fs(True)
    for x in combine(7): a(x)
    a(f"""
    s_mov_b32 s27, s25
    s_lshl_b32 s25, s20, 12
    v_add_u32 v5, s25, v{VL16}
    v_add_u32 v6, {CVB}, v5
    s_lshl_b32 s24, s2, 14
    s_add_u32 s16, s36, {WS_Y4}
    s_addc_u32 s17, s37, 0
    s_mov_b32 s18, 4194304
    """)
    if TWO:
        stamp()
        a(f"s_cmp_lg_u32 s6, 0\ns_cbranch_scc1 {L('hrdy')}\ns_waitcnt vmcnt(0)")
        a(spin("ph", VPR, VHP, "s27", 0xffffffff, tmp="s41", sleep=PSL))
        a(f"s_waitcnt lgkmcnt(0)\ns_barrier\ns_mov_b32 s6, {NSTEP*HS_}")
        st_ = VM.save()
        for n_ in range(HB0-1):
            for it in ld_h(n_): a(it())
        VM.restore(st_)
        a(f"s_branch {L('hgo')}\n{L('hrdy')}:\ns_waitcnt lgkmcnt(0)\ns_barrier\n{L('hgo')}:")
        stamp()
    else: a("s_waitcnt lgkmcnt(0)\ns_barrier")
    LG.drain()
    fs()
    XF_ = 64; SF = 96; QO = 224
    setup_e = f"""
    v_lshrrev_b32 v13, 4, v{VL}
    v_lshlrev_b32 v16, 12, v{VXA+3}
    v_lshl_add_u32 v16, v{VXA+2}, 3, v16
    v_and_b32 v19, 1, v13
    v_lshlrev_b32 v19, 4, v19
    v_lshrrev_b32 v20, 1, v13
    v_lshl_add_u32 v19, v20, 3, v19
    v_add_u32 v19, s42, v19
    v_lshlrev_b32 v19, 1, v19
    v_lshl_add_u32 v19, v{VXA+2}, 11, v19
    v_add_u32 v20, 32768, v19
    s_lshr_b32 s27, s42, 6
    s_lshl_b32 s27, s27, 8
    s_add_u32 s27, s27, {FL_Y}
    s_add_u32 s56, s36, {WS_PX}|s_addc_u32 s57, s37, 0
    s_mov_b32 s58, {256*32768}
    s_mov_b32 s59, 0x20000
    s_lshl_b32 s32, s38, 3
    s_add_u32 s32, s32, s3
    s_lshl_b32 s32, s32, 15
    s_lshl_b32 s33, s20, 13
    s_add_u32 s32, s32, s33
    s_add_u32 s33, s32, 4096
    s_xor_b32 s34, s32, {128<<15}
    s_xor_b32 s35, s33, {128<<15}
    s_lshr_b32 s29, s44, 8
    s_lshr_b32 s46, s44, 16
    s_lshr_b32 s47, s44, 24
    v_mov_b32 v21, 0xff""".strip().split("\n")
    setup_e = [x.replace("|", "\n") for x in setup_e]
    if FINE or FINE2: setup_e = [x.replace("s32", "s60").replace("s33", "s65") for x in setup_e]
    PXA, PXB = ("s60", "s65") if FINE or FINE2 else ("s32", "s33")
    TAG = ["s44", "s29", "s46", "s47"]
    fi = [0]
    def barrier2(need):
        LG.drain()
        w = VM.need(need)
        fine = ""
        if FINE:
            fi[0] += 1
            fine = (f"\nv_writelane_b32 v255, s32, {fi[0]-1}" if fi[0] > 1 else "") + "\ns_memtime s[32:33]"
        return f"s_waitcnt {w+' ' if w else ''}lgkmcnt(0)\ns_barrier" + fine
    TAIL = NSTEP - TN
    seg = lambda n: (n % R) // 8
    issued = [RP]; hn = [HB0 - 1]
    freed = [-1]
    def loads(n, nm):
        its = []
        k = 0
        while issued[0] < NSTEP and k < nm and (issued[0] - R <= freed[0]) and (issued[0] < RP or n >= 3):
            its += dma2(issued[0]); issued[0] += 1; k += 1
        k = 0
        while hn[0] < NSTEP and k < (2 if n < HC2 else nm) and hn[0] - HD < n:
            its += ld_h(hn[0]); hn[0] += 1; k += 1
        return its
    over2 = [0]
    def spread(gp, its, g0, g1):
        g = g0
        for i, it in enumerate(its): g = gp.force(it, min(max(g, g0 + (i*(g1-g0))//len(its)), g1-1), g1, 1)
    def step2(n, extra, stream):
        NM = 16
        gp = Gaps(NM)
        bar = (n+1) % 4 == 0
        if bar:
            assert VM.ops.count(("W2", n+4)) == 2, n
            gp.add(0, lambda: barrier2([("W2", n+4)] + ([("YS",)] if n == 7 else [])), 2)
            freed[0] = n
        for ft in range(NT if 'r' not in G2X else 0):
            if n + 1 == TAIL and ft < 4: continue
            for h in range(2): gp.add(2*ft+h, lambda ft=ft, h=h: rd_w2(n+1, ft, h), lds=True)
        for g in range(WEV-1, NM, WEV): gp.c[g] += 1
        its = loads(n, NMX)
        if G2X:
            def drop(fn):
                def g():
                    t = fn()
                    return "" if "buffer_load" in t and ((" lds" in t and "w" in G2X) or (" lds" not in t and "h" in G2X)) else t
                return g
            its = [drop(fn) for fn in its]
        if its: spread(gp, its, 1, NM)
        if extra: spread(gp, extra, 1, NM)
        g = 1
        while stream:
            g = gp.place(stream[0], g, NM, stream[0].w if stream[0].w < 2 else 1)
            if g is None: break
            stream.pop(0)
        over2[0] += sum(max(0, c - 2) for c in gp.c)
        for m in range(NM):
            ft = m >> 1; u = (m & 1) ^ (ft & 1)
            if m % WEV == 0: a(wait(vm=[("H", n)] if m == 0 else None, lg=[("w", n, ft + j) for j in range(WEV//2)]))
            c = "0" if n == 0 else acc2(ft, u)
            a(f"v_mfma_f32_16x16x32_bf16 {acc2(ft,u)}, {wf2(n&1,ft)}, {hf(n % HD, u)}, {c}")
            for fn in gp.g[m]: a(fn())
    extras = {n: [] for n in range(NSTEP)}
    extras[0] = [lg(f"ds_read_b128 v[{24+4*i}:{27+4*i}], v6 offset:{1024*i}") for i in range(4)]
    extras[1] += [It(lambda: wait(lg=[("z",)]))] + [vm(("YS",), f"buffer_store_dwordx4 v[{24+4*i}:{27+4*i}], v5, s[16:19], s24 offen offset:{1024*i} sc1") for i in range(4)]
    extras[2] += split(f"s_lshr_b32 s64, s2, 4\ns_lshl_b32 s64, s64, 8\ns_and_b32 s65, s2, 15\ns_lshl_b32 s65, s65, 2\ns_add_u32 s64, s64, s65\ns_add_u32 s64, s64, {FL_Y}")
    xit = split(xd, ("XD",))
    extras[4] += split(xs, ("E",))
    extras[7] += [vm(("F",), f"buffer_store_dword v{VFL+2}, v{VFL+1}, s[48:51], s64 offen sc1")]
    assert HD >= TN + 1
    extras[TAIL-PYB] = [vm(("PY",), f"buffer_load_dword v{VPR}, v{VFL}, s[48:51], s27 offen sc1")]
    xl = []; yl = []
    for ft in range(4):
        for u in range(2):
            i = 2*ft+u
            yl += split((f"s_mov_b32 s43, {ft*65536}\n" if u == 0 else "") + f"buffer_load_dwordx2 v[{YR+2*i}:{YR+2*i+1}], v16, s[16:19], s43 offen offset:{128*u}", ("E",))
    st2 = []
    for n in range(TAIL):
        if FINE2 and n in (1, 2, 3, 4, 8, 44): fs(True)
        if n == 8: st2 += [T(x) for x in setup_e]
        step2(n, extras[n], st2)
    assert not st2
    print("gemm2 over", over2[0])
    assert hn[0] == NSTEP
    rest = [it for u_ in range(issued[0], NSTEP) for it in dma2(u_)] + xit
    seq = [(n, 4) for n in range(TAIL, NSTEP)] + [(n, 0) for n in range(TAIL, NSTEP)]
    send = []
    if not XBF:
        NPX = 8
        for i in range(8):
            for r in range(4): send.append(T(f"v_bfi_b32 v{ACC2+32+4*i+r}, v21, {TAG[r]}, v{ACC2+32+4*i+r}"))
            send.append(vm(("PXS",), f"buffer_store_dwordx4 v[{ACC2+32+4*i}:{ACC2+35+4*i}], v{VL16}, s[56:59], {PXA if i < 4 else PXB} offen offset:{1024*(i&3)} {XST}"))
    else:
        NPX = 6; SB = 64
        for i in range(6):
            for r in range(3):
                d = 3*i + r
                if d < 16: send.append(T(f"v_cvt_pk_bf16_f32 v{SB+4*i+r}, v{ACC2+32+2*d}, v{ACC2+33+2*d}"))
            send.append(T(f"v_mov_b32 v{SB+4*i+3}, s44"))
            send.append(vm(("PXS",), f"buffer_store_dwordx4 v[{SB+4*i}:{SB+4*i+3}], v{VL16}, s[56:59], {PXA if i < 4 else PXB} offen offset:{1024*(i&3)} {XST}"))
    lastst = [-99]
    ychk = lambda: wait(vm=[("PY",)]) + "\n" + spin("py", VPR, VFL, "s27", 0xffff)
    for k, (n, f0) in enumerate(seq):
        if FINE2 and k in (0, 3, TN, TN+3): fs(True)
        buf = (TAIL + k) & 1
        gp = Gaps(8)
        if k < TN - 1 and k % 4 == 3:
            gp.add(0, lambda: (ychk() if YK == k else "") + barrier2([("W2", n+4)]), 2)
        elif k == YK: gp.add(0, lambda: ychk() + "s_barrier", 2)
        if k + 1 < len(seq):
            n1, f1 = seq[k+1]
            for j in range(4):
                for h in range(2): gp.add(2*j+h, lambda j=j, h=h, n1=n1, f1=f1: rd_w2(n1, f1+j, h, buf^1), lds=True)
        gp.c[7] += 1
        if YK <= k < YK + 3: spread(gp, yl[4*(k-YK):4*(k-YK)+4], 1, 7)
        if k < 3 and rest:
            cnt_ = min(len(rest), 6); spread(gp, rest[:cnt_], 0, 7); rest = rest[cnt_:]
        if k >= TN:
            g = 5 if k == TN else 0
            while send:
                isst = send[0].w >= VW and len(send) % (5) == 1 if not XBF else False
                g = gp.place(send[0], g, 8, 1)
                if g is None: break
                send.pop(0)
        for m in range(8):
            ft = f0 + (m >> 1); u = (m & 1) ^ (ft & 1)
            if m == 0: a(wait(vm=[("H", n)], lg=[("w", n, f0 + j) for j in range(4)]))
            a(f"v_mfma_f32_16x16x32_bf16 {acc2(ft,u)}, {wf2(buf,ft)}, {hf(n % HD, u)}, {acc2(ft,u)}")
            for fn in gp.g[m]: a(fn())
    assert not send and not rest
    fs(True)
    stamp()
    PXR = 192
    pxl = "\n".join(f"buffer_load_dwordx4 v[{PXR+4*i}:{PXR+3+4*i}], v{VL16}, s[56:59], {'s34' if i < 4 else 's35'} offen offset:{1024*(i&3)} {XLD}" for i in range(NPX))
    a(f"v_mov_b32 v2, v{VL16}\nv_cmp_eq_u32 vcc, 0, v{VL}\nv_mov_b32 v3, {OOB}\nv_mov_b32 v4, 1008\nv_cndmask_b32 v3, v3, v4, vcc")
    pxl = pxl.replace(f"v{VL16},", "v2,")
    a(wait(vm=[("E",), ("XD",)]))
    for x in xr: a(x)
    lp = f"buffer_load_dword v1, v3, s[56:59], s35 offen offset:{1024*((NPX-1)&3) + (12 if XBF else 0)} sc1"
    if EPOLL: a(lp)
    for u in range(2): a(f"v_mul_f32 v{ST+2*u+1}, {f2u(1/C0)}, v{ST+2*u+1}")
    a("s_waitcnt lgkmcnt(0)")
    for i in range(8):
        u = i & 1
        for h in range(2):
            b = 4*i + 2*h
            a(f"""v_lshlrev_b32 v{XF_+b}, 16, v{XR+2*i+h}
            v_and_b32 v{XF_+b+1}, 0xffff0000, v{XR+2*i+h}
            v_lshlrev_b32 v{T6}, 16, v{YR+2*i+h}
            v_and_b32 v{T6+1}, 0xffff0000, v{YR+2*i+h}
            v_pk_add_f32 {pr(SF+b)}, {pr(XF_+b)}, {pr(ST+2*u)} op_sel_hi:[1,0] neg_lo:[0,1] neg_hi:[0,1]
            v_pk_mul_f32 {pr(T6)}, {pr(T6)}, {pr(ST+2*u)} op_sel:[0,1] op_sel_hi:[1,1]
            v_pk_mul_f32 {pr(SF+b)}, {pr(SF+b)}, {pr(T6)}""")
    fs(True); fs(True)
    a(f"""
    s_mov_b32 s16, s54
    s_mov_b32 s17, s55
    s_mov_b32 s24, 0
    s_mov_b32 s42, {f2u(-math.log2(math.e))}
    s_mov_b32 s43, s42
    {"s_branch " + L('px3') if EPOLL else ""}
    {L('px2')}:
    {lp}
    {L('px3')}:
    s_add_u32 s24, s24, 1
    s_cmp_gt_u32 s24, {SPIN}
    s_cbranch_scc1 {L('px_ok')}
    s_waitcnt vmcnt(0)
    v_xor_b32 v1, {TAG[0]}, v1
    {'' if XBF else 'v_and_b32 v1, v1, v21'}
    v_cmp_eq_u32 vcc, 0, v1
    s_nop 4
    s_bitcmp1_b32 vcc_lo, 0
    s_cbranch_scc1 {L('px')}
    s_sleep {XSL}
    s_branch {L('px2')}
    {L('px')}:
    """)
    a(pxl)
    for i in range(NPX):
        a(f"s_waitcnt vmcnt({NPX-1-i})")
        if XBF:
            a(f"v_xor_b32 v1, s44, v{PXR+3}" if i == 0 else f"v_bitop3_b32 v1, v1, v{PXR+4*i+3}, s44 bitop3:0xf6")
            for r in range(3):
                d = 3*i + r
                if d < 16: a(f"v_lshlrev_b32 v{ACC2+32+2*d}, 16, v{PXR+4*i+r}\nv_and_b32 v{ACC2+33+2*d}, 0xffff0000, v{PXR+4*i+r}")
        else:
            for r in range(4*i, 4*i+4):
                a(f"v_xor_b32 v1, {TAG[0]}, v{PXR}" if r == 0 else f"v_bitop3_b32 v1, v1, v{PXR+r}, {TAG[r&3]} bitop3:0xf6")
    if XBF: PXR = ACC2 + 32
    a(f"""
    {'' if XBF else 'v_and_b32 v1, 0xff, v1'}
    v_cmp_ne_u32 vcc, 0, v1
    s_nop 4
    s_cbranch_vccnz {L('px2')}
    {L('px_ok')}:
    """)
    stamp()
    E = T6
    for ft in range(4):
        for u in range(2):
            i = 2*ft+u; O = ACC2 + 4*i; S_ = SF + 4*i; X_ = XF_ + 4*i
            for h in range(2): a(f"v_pk_add_f32 {pr(O+2*h)}, {pr(O+2*h)}, {pr(PXR+4*i+2*h)}")
            for h in range(2): a(f"v_pk_mul_f32 {pr(E+2*h)}, {pr(O+2*h)}, s[42:43]")
            for r in range(4): a(f"v_exp_f32 v{E+r}, v{E+r}")
            for h in range(2): a(f"v_pk_mul_f32 {pr(S_+2*h)}, {pr(S_+2*h)}, {pr(O+2*h)}")
            for h in range(2): a(f"v_pk_add_f32 {pr(E+2*h)}, {pr(E+2*h)}, 1.0 op_sel_hi:[1,0]")
            for r in range(4): a(f"v_rcp_f32 v{E+r}, v{E+r}")
            a("s_nop 0")
            for h in range(2): a(f"v_pk_fma_f32 {pr(S_+2*h)}, {pr(S_+2*h)}, {pr(E+2*h)}, {pr(X_+2*h)}")
            Q = QO + 8*(ft>>1) + 4*u + 2*(ft&1)
            for h in range(2): a(f"v_cvt_pk_bf16_f32 v{Q+h}, v{S_+2*h}, v{S_+2*h+1}")
        if ft & 1:
            a("s_nop 1")
            for u in range(2):
                Q = QO + 8*(ft>>1) + 4*u
                a(f"v_permlane16_swap_b32 v{Q}, v{Q+2}\nv_permlane16_swap_b32 v{Q+1}, v{Q+3}")
            for u in range(2):
                Q = QO + 8*(ft>>1) + 4*u
                a(f"buffer_store_dwordx4 v[{Q}:{Q+3}], v{19+u}, s[16:19], 0 offen offset:{64*(ft>>1)} {OSC}")
    if STAMP:
        a("s_waitcnt vmcnt(0)")
        stamp()
        a(f"""
        s_waitcnt lgkmcnt(0)
        s_cmp_eq_u32 s20, 0
        s_cbranch_scc0 {L('end')}
        s_add_u32 s12, s36, {WS_TS}
        s_addc_u32 s13, s37, 0
        s_mov_b32 s14, 65536
        s_lshl_b32 s41, s2, 7
        v_mov_b32 v1, 0
        """)
        a("v_mov_b32 v4, v2")
        for i in range(nst[0]):
            a(f"v_mov_b32 v2, s{66+4*i}\nv_mov_b32 v3, s{68+4*i}\nbuffer_store_dwordx2 v[2:3], v1, s[12:15], s41 offen offset:{8*i}\ns_nop 1")
        assert 69 + 4*(nst[0]-1) <= 101
        if FINE1: a("v_accvgpr_read_b32 v255, a252")
        if FINE or FINE1 or FINE2:
            a(f"s_lshl_b32 s41, s2, 8\ns_add_u32 s41, s41, 0x40000\ns_mov_b32 s14, 0x80000\nv_lshrrev_b32 v1, 2, v4\nbuffer_store_dword v255, v1, s[12:15], s41 offen")
    a(f"{L('end')}:\ns_endpgm")
    return a.text()

def check_m0(t):
    own = {"s43": "s[8:11]", "s26": "s[4:7]", "s29": "s[12:15]", "s60": "s[16:19]", "s45": "s["}
    cur = None; k = 0; prev = ""
    for ln in t.split("\n"):
        x = ln.strip()
        m = re.match(r"s_add_u32 m0, (s\d+),", x)
        if m: assert cur is None or k == 4, ("m0 rewritten early", x); cur = m.group(1); k = 0
        elif x.endswith(" lds"):
            assert own[cur] in x and f"offset:{1024*k} " in x and "m0" not in prev, (cur, k, x); k += 1
        prev = x
def add_stubs(body):
    import subprocess
    lines = body.split("\n")
    tmp = "\n".join(lines) + "\n" + "".join(f"L_k_w{i}:\n" for i in range(4))
    open("stub.s", "w").write('.amdgcn_target "amdgcn-amd-amdhsa--gfx950"\n.text\n' + KN + ":\n" + tmp)
    subprocess.run(["clang", "-x", "assembler", "-target", "amdgcn-amd-amdhsa", "-mcpu=gfx950", "-c", "stub.s", "-o", "stub.o"], check=True)
    dis = subprocess.run(["llvm-objdump", "-d", "--mcpu=gfx950", "stub.o"], capture_output=True, text=True).stdout
    ad = [(int(m.group(1), 16), len(m.group(2).split())*4) for m in re.finditer(r"// ([0-9A-F]{12}): ((?:[0-9A-F]{8} ?)+)", dis)]
    sizes = [sz for adr, sz in ad if adr >= 4096]
    i0 = lines.index("L_k_main:")
    out = lines[:i0+1]; pos = 0; k = 0; n = 0; nxt = 4096
    for ln in lines[i0+1:]:
        x = ln.split(";")[0].strip()
        if x and not x.endswith(":"):
            if pos >= nxt:
                out += [f"L_k_w{n}:", f"    s_cbranch_execz @{n}"]; n += 1; pos += 4; nxt += 4096
            pos += sizes[k]; k += 1
        out.append(ln)
    assert k == len(sizes) and n >= 4, (k, len(sizes))
    return "\n".join(re.sub(r"@(\d+)", lambda m: f"L_k_w{int(m.group(1))+4}" if int(m.group(1))+4 < n else "L_k_wback", x) if "execz @" in x else x for x in out)
def make(fn, **kw):
    body = gen("k", **kw)
    if not kw.get('G2X') and not kw.get('CX'): check_m0(body)
    if kw.get("WARM", True): body = add_stubs(body)
    t = header([(KN, 256, 256, 163840)]) + kstart(KN) + body + rodata() + kdesc(KN, 512, 256)
    open(fn, "w").write(t)
if __name__ == "__main__":
    import sys
    B = dict(ROT=0, KPS=3, P0AT=(2,2,9), ROT0=5, KNT="")
    B.update(PYB=8, YK=3)
    B["PFEND"] = 36
    make("t4.s", STAMP=True, **B); make("t4_ns.s", **B)
    make("t4a.s", STAMP=True, HB0=5, **B)
    make("t4b.s", STAMP=True, HB0=7, **B)
    make("t4c.s", STAMP=True, HB0=5, HCHK=56, PHAT=30, **B)
    make("t4d.s", STAMP=True, WEV=16, **B)
    make("t4e.s", STAMP=True, HD=12, HB0=7, HC2=6, **B)
```

```python
from asmlib import *
from g1b import f2u, Cnt
from p0 import srd, rne_bf16, red32
import math, re
WS_STATS = 0; WS_FL = 0x80000; WS_UT = 0x100000; WS_Y4 = 0x600000; WS_HF = 0x1000000; WS_PX = 0x2800000; WS_TS = 0x3000000
FL_H = 0; FL_Y = 8192; FL_X = 12288; FL_P = 12288 + 256*128; FL_Q = FL_P + 1024; FL_N = FL_Q + 4096; FL_SIZE = FL_N + 256
OOB = 0x80000000
KN = "recurrent_scan__ssm_conv_h3__geglu_ffn__prompt_kernel"
pr = lambda b: f"v[{b}:{b+1}]"

class Gaps:
    def __init__(self, n, cap=2): self.n = n; self.cap = cap; self.g = [[] for _ in range(n)]; self.c = [0]*n; self.l = [0]*n; self.maxl = 1 if cap == 2 else 3
    def add(self, g, fn, w=1, lds=False): self.g[g].append(fn); self.c[g] += w; self.l[g] += lds
    def fits(self, g, w, lds): return self.c[g] + w <= self.cap and not (lds and (self.l[g] >= self.maxl or self.c[g] > self.l[g]))
    def place(self, fn, g0, g1, w=1, lds=False):
        for g in range(g0, g1):
            if self.fits(g, w, lds): self.add(g, fn, w, lds); return g
        return None
    def force(self, fn, g0, g1, w=1, lds=False):
        g = self.place(fn, g0, g1, w, lds)
        if g is None:
            g = min(range(g0, g1), key=lambda x: (self.c[x], x)); self.add(g, fn, w, lds)
        return g
class It:
    def __init__(self, fn, w=1, lds=False): self.fn = fn; self.w = w; self.lds = lds
    def __call__(self): return self.fn()

def gen(name, STAMP=False, SPIN=400000, SIGAT=(1,2), FINE=False, PFEVERY=5, WNT="", KNT="nt", OSC="", FINE1=False, LW=3, XS=1, ROT=2, CAP=2, MIG=True, P0AT=(3,5,7), PROST=False, G1X="", KPS=4, TRK=8, MIGN=7, ROT0=0, FINE2=False, HD=12, PHAT=24, HCHK=50, PFEND=30, PYB=8, YK=3, XSL=1, CQ=6, XST='sc1', XLD='sc1', R=20, WEV=8, HB0=9, NMX=1, L2PF=0, HNT='', W2NT='', L2AT=2, G2X='', VW=2, XAT=44, WARM=True, PAIR1=False, PAIR2=False, HSK=False, KORD=None, RSP=True, TN=8, SSP=1, XBF=True, C3=0, REMAP=True, TWO=True, PSL=4, SLOWX=True, SLOWS=False, CCAP=6, CVW=1, DPW=1, PF2=40, EPOLL=False, CX='', HC2=4, CH=4, LEAD=2, RSPAN=108, DEFER=True, VW15=1, ULIN=False):
    a = A()
    nst = [0]
    def pstamp():
        if PROST: stamp(True)
    def stamp(p=False):
        if STAMP and nst[0] < 9 and (p or not PROST or nst[0] == 0 or nst[0] >= 6):
            i = nst[0]; nst[0] += 1
            a(f"s_memtime s[{66+4*i}:{67+4*i}]\ns_memrealtime s[{68+4*i}:{69+4*i}]")
    VM = Cnt("vmcnt", 63); LG = Cnt("lgkmcnt", 15)
    def wait(vm=None, lg=None):
        w = [x for x in (VM.need(vm) if vm else None, LG.need(lg) if lg else None) if x]
        return ("s_waitcnt " + " ".join(w)) if w else ""
    def vm(tag, txt):
        def f(): VM.issue(tag); return txt
        it = It(f, VW + txt.strip().count("\n")); it.vm = True
        return it
    def T(txt): return It(lambda: txt, 1 + txt.strip().count("\n") + ("0x" in txt and txt.strip().startswith("v_")))
    def split(txt, tag=None):
        return [vm(tag, x.replace("|", "\n")) if "buffer_" in x else T(x.replace("|", "\n")) for x in txt.strip().split("\n") if x.strip()]
    L = lambda s_: f"L_{name}_{s_}"
    f2 = [0]
    def fs(w=False):
        if not FINE2: return
        if w: a("s_waitcnt lgkmcnt(0)")
        if f2[0]: a(f"v_writelane_b32 v255, s32, {f2[0]-1}")
        a("s_memtime s[32:33]"); f2[0] += 1
    VXO = 208; VWO = 212; VXR = 216; VWR = 218; VIDX = 220; VL = 221; VL16 = 222; VT = 223
    VPS = 224; VPP = 225; VPF = 226; VQA = 228; VKA = 229; VSA = 233; VUA = 234; VWA = 235
    VWO2 = 246; VFL = 250
    Q0 = 92; K0 = 108; V0 = 130; W0 = 146; TT = 168
    a(f"""
    s_cmp_ge_u32 s2, 256
    s_cbranch_scc1 {L('end')}
    s_load_dwordx4 s[28:31], s[0:1], 0      ; q k
    s_load_dwordx4 s[32:35], s[0:1], 56
    s_load_dwordx4 s[60:63], s[0:1], 16     ; v shift_k
    s_load_dwordx4 s[44:47], s[0:1], 88
    s_load_dwordx4 s[52:55], s[0:1], 72
    s_load_dwordx4 s[56:59], s[0:1], 32
    s_branch {L('main')}
    .p2align 12
    {L('main')}:
    """)
    stamp()
    a(f"""
    v_lshrrev_b32 v1, 6, v0
    v_and_b32 v{VL}, 63, v0
    s_and_b32 s3, s2, 7
    v_readfirstlane_b32 s20, v1
    s_lshr_b32 s38, s2, 3                ; slot 0..31
    s_lshr_b32 s39, s3, 1
    s_mul_i32 s39, s39, 63
    s_and_b32 s40, s3, 1
    s_lshl_b32 s41, s40, 5
    s_add_u32 s39, s39, s41
    s_add_u32 s39, s39, s38              ; i
    s_add_u32 s41, s41, s38
    s_cmp_eq_u32 s41, 63
    s_cselect_b32 s64, 1, 0
    s_cselect_b32 s39, 0, s39
    s_mul_i32 s22, s39, 7282
    s_lshr_b32 s22, s22, 16              ; j
    s_mul_i32 s40, s22, 9
    s_sub_u32 s21, s39, s40              ; band
    s_mul_i32 s65, s21, 14
    s_cmp_eq_u32 s21, 8
    s_cselect_b32 s65, 113, s65          ; s65 = first token tile
    v_lshlrev_b32 v{VL16}, 4, v{VL}
    s_getpc_b64 s[16:17]
    {L('here')}:
    s_sub_u32 s16, s16, {L('here')}-{L('main')}
    s_subb_u32 s17, s17, 0
    s_mov_b32 s18, {L('end')}-{L('main')}
    s_mov_b32 s19, 0x20000
    s_lshl_b32 s41, s38, 2
    s_add_u32 s41, s41, s20
    s_mul_i32 s41, s41, {5*128}
    v_min_u32 v10, 4, v{VL}
    v_lshlrev_b32 v10, 7, v10
    buffer_load_dword v{VFL+5}, v10, s[16:19], s41 offen
    v_lshrrev_b32 v10, 1, v{VL}
    v_mul_u32_u24 v10, 7168, v10
    v_and_b32 v11, 1, v{VL}
    v_lshl_add_u32 v10, v11, {9 if PAIR1 else 7}, v10
    v_cmp_gt_u32 vcc, 32, v{VL}
    v_mov_b32 v11, {OOB}
    s_mul_i32 s39, s21, {32*7168}
    v_cndmask_b32 v10, v11, v10, vcc
    s_lshl_b32 s40, s2, 3
    s_lshl_b32 s41, s20, 1
    s_add_u32 s40, s40, s41
    v_lshrrev_b32 v4, 5, v{VL}
    v_add_u32 v4, s40, v4
    v_and_b32 v5, 31, v{VL}
    v_lshlrev_b32 v6, 4, v5
    v_lshl_add_u32 v{VQA}, v4, 11, v6
    v_lshrrev_b32 v0, 3, v{VL}
    v_lshlrev_b32 v0, 11, v0
    v_and_b32 v1, 7, v{VL}
    v_lshrrev_b32 v2, 4, v{VL}
    v_xor_b32 v3, v1, v2
    v_lshl_add_u32 v{VXO}, v3, 4, v0
    v_xor_b32 v3, 4, v3
    v_lshl_add_u32 v{VXO+1}, v3, 4, v0
    v_add_u32 v{VXO+1}, {16384-1024}, v{VXO+1}
    v_add_u32 v{VXO+2}, {2*(16384-1024)}, v{VXO}
    v_add_u32 v{VXO+3}, {2*(16384-1024)}, v{VXO+1}
    s_waitcnt lgkmcnt(0)
    ; SRD W
    s_cmp_lt_u32 s20, 2
    s_cselect_b32 s8, s32, s34
    s_cselect_b32 s9, s33, s35
    {"s_and_b32 s42, s22, 3|s_lshl_b32 s41, s22, 8|s_lshl_b32 s42, s42, 7|s_sub_u32 s41, s41, s42".replace("|", chr(10)) if PAIR1 else "s_lshl_b32 s41, s22, 8"}
    s_and_b32 s42, s20, 1
    s_mul_i32 s42, s42, {16*7168}
    s_add_u32 s41, s41, s42
    s_add_u32 s8, s8, s41
    s_addc_u32 s9, s9, 0
    s_sub_u32 s10, {1024*7168}, s41
    s_mov_b32 s11, 0x20000
    s_cmp_eq_u32 s64, 1
    s_cselect_b32 s10, 0, s10
    s_cmp_lt_u32 s21, {ROT0}
    s_cselect_b32 s40, s39, {OOB//2}
    """)
    VM.issue(("C",)); VM.issue(("R",)); a(f"buffer_load_dword v{VPF+1}, v10, s[8:11], s40 offen {WNT}")
    srd(a, 12, 28, 29, 4194304)
    for i in range(4): VM.issue(("Q",)); a(f"buffer_load_dwordx4 v[{Q0+4*i}:{Q0+3+4*i}], v{VQA}, s[12:15], 0 offen offset:{512*i}")
    a(f"""
    s_mov_b32 s39, {OOB//2}
    v_add_u32 v{VPF}, {ROT*32*7168}, v10
    s_mov_b32 s36, s46
    s_mov_b32 s37, s47
    s_lshl_b32 s40, s65, 15
    s_lshl_b32 s41, s20, 17
    s_add_u32 s40, s40, s41
    s_add_u32 s4, s28, s40
    s_addc_u32 s5, s29, 0
    s_cmp_lt_u32 s21, 7
    s_cselect_b32 s6, 0, 32768
    s_add_u32 s6, s6, {224*2048}
    s_sub_u32 s6, s6, s41
    s_mov_b32 s7, 0x20000
    s_cmp_eq_u32 s64, 1
    s_cselect_b32 s6, 0, s6
    s_lshl_b32 s43, s20, 12              ; W lds wave part
    s_lshl_b32 s26, s20, 13
    s_add_u32 s26, s26, 98304            ; x lds write address (slot 0)
    s_mov_b32 s25, 0
    s_mov_b32 s23, 0
    v_mul_u32_u24 v0, 7168, v2
    v_and_b32 v1, 15, v{VL}
    v_lshlrev_b32 v3, 1, v2
    v_xor_b32 v3, v1, v3
    v_and_b32 v1, 7, v3
    v_lshl_add_u32 v0, v1, 4, v0
    v_and_b32 v3, 8, v3
    v_lshl_add_u32 v{VWO}, v3, {6 if PAIR1 else 4}, v0
    v_add_u32 v{VWO+1}, {28672-1024}, v{VWO}
    v_xor_b32 v3, 8, v3
    v_lshl_add_u32 v{VWO+2}, v3, {6 if PAIR1 else 4}, v0
    v_add_u32 v{VWO+2}, {2*(28672-1024)}, v{VWO+2}
    v_add_u32 v{VWO+3}, {28672-1024}, v{VWO+2}
    """)
    XB = 98304
    def dma_w(i, ks):
        VM.issue(("W", ks)); return f"buffer_load_dwordx4 v{VWO+i}, s[8:11], s25 offen offset:{1024*i} {WNT} lds"
    def dma_x(i, sl, half):
        VM.issue(("X", sl)); return f"buffer_load_dwordx4 v{VXO+i}, s[4:7], s23 offen offset:{1024*i} lds"
    KO = list(KORD or range(16)); assert sorted(KO) == list(range(16))
    kphys = lambda k: 2*KO[k >> 1] + (k & 1)
    def mark(it): it.isx = True; return it
    def w_items(st):
        return [it for j in range(2) for it in [T(f"s_add_u32 m0, s43, {(st % 3)*32768 + j*16384}"), T(f"s_mov_b32 s25, {(2*KO[st]+j)*32*7168}")] + [It(lambda i=i: dma_w(i, st), VW) for i in range(4)]]
    def x_items(st):
        return [it for half in range(2) for it in [T(f"s_add_u32 m0, s26, {(st % 2)*32768 + half*4096}"), T(f"s_mov_b32 s23, {KO[st]*128 + half*65536}")] + [mark(It(lambda i=i: dma_x(i, st, half), VW)) for i in range(4)]]
    xi, wi = x_items(0), w_items(0)
    for it in xi[:6] + wi[:6] + xi[6:] + wi[6:]: a(it())
    srd(a, 48, 36, 37, FL_SIZE, WS_FL)
    srd(a, 16, 30, 31, 4194304)
    a(f"""
    s_mov_b32 s30, s28
    s_mov_b32 s31, s29
    s_mov_b32 s32, s44
    s_mov_b32 s33, s45
    s_add_u32 s34, s36, {WS_UT}
    s_addc_u32 s35, s37, 0
    s_lshl_b32 s41, s20, 6
    v_add_u32 v12, s41, v{VL}
    v_lshlrev_b32 v13, 2, v12
    v_cmp_eq_u32 vcc, 0, v12
    s_lshl_b32 s41, s20, 8
    s_add_u32 s41, s41, s2
    v_cndmask_b32 v{VFL+1}, v11, v13, vcc
    s_cmp_eq_u32 s41, 249
    s_cbranch_scc0 {L('nononce')}
    s_mov_b32 s41, {FL_N}
    buffer_load_dword v10, v{VFL+1}, s[48:51], s41 offen sc1
    s_mov_b32 s42, 0x9e3779b1
    s_mov_b32 s12, s32
    s_mov_b32 s13, s33
    s_mov_b32 s14, 256
    s_waitcnt vmcnt(0)
    v_mul_lo_u32 v13, v10, s42
    v_add_u32 v13, 0x7f4a7c15, v13
    v_or_b32 v13, 1, v13
    v_xor_b32 v12, 2, v13
    v_cmp_eq_u32 vcc, v13, v10
    s_nop 1
    v_cndmask_b32 v13, v13, v12, vcc
    buffer_store_dword v13, v{VFL+1}, s[12:15], 0 offen offset:128 sc1
    buffer_store_dword v13, v{VFL+1}, s[12:15], 0 offen sc1
    buffer_store_dword v13, v{VFL+1}, s[48:51], s41 offen sc1
    s_mov_b32 s14, 4194304
    {L('nononce')}:
    s_mov_b32 s12, s60
    s_mov_b32 s13, s61                    ; s[12:15] = v
    v_lshlrev_b32 v14, 4, v4
    v_cmp_eq_u32 vcc, 0, v5
    s_lshr_b32 s40, s2, 4
    s_lshl_b32 s40, s40, 7
    v_cndmask_b32 v{VSA}, v11, v14, vcc
    s_lshl_b32 s41, s20, 5
    s_add_u32 s40, s40, s41
    s_and_b32 s42, s2, 15                 ; cb
    v_lshrrev_b32 v4, 4, v{VL}
    v_lshl_add_u32 v4, v4, 3, s40         ; s0 = base + 8*(l>>4)
    v_and_b32 v5, 15, v{VL}               ; p: 4 channels
    s_lshl_b32 s41, s42, 7
    v_lshl_add_u32 v6, v5, 3, s41
    v_lshl_add_u32 v{VKA}, v4, 11, v6
    v_subrev_u32 v{VKA+2}, {3*2048}, v{VKA}
    v_subrev_u32 v{VKA+3}, 2048, v{VKA}
    s_lshl_b32 s41, s42, 9
    v_lshl_add_u32 v{VWA}, v5, 5, s41
    s_lshl_b32 s41, s40, 11
    s_lshl_b32 s27, s42, 12
    s_add_u32 s41, s41, s27
    v_lshl_add_u32 v9, v5, 6, s41
    v_and_b32 v6, 48, v{VL}
    {"v_add_u32 v%d, s41, v%d" % (VUA, VL16) if ULIN else "v_add_u32 v%d, v6, v9" % VUA}
    v_and_b32 v6, 3, v{VL}
    v_lshlrev_b32 v6, 6, v6
    v_and_b32 v9, 60, v{VL}
    v_add_u32 v{VKA+1}, v6, v9
    ; lds read addresses
    v_and_b32 v10, 15, v{VL}              ; tok
    v_lshrrev_b32 v15, 4, v{VL}           ; g
    v_lshrrev_b32 v12, 1, v10
    v_xor_b32 v12, v12, v15
    v_lshlrev_b32 v12, 4, v12
    v_lshl_add_u32 v12, v10, 7, v12
    v_add_u32 v{VXR}, {XB}, v12
    v_xor_b32 v{VXR+1}, 64, v{VXR}
    s_mov_b32 s47, 0xffff0000
    v_bfe_u32 v12, v{VL}, 2, 2            ; e
    v_lshl_add_u32 v13, v15, 3, v12       ; row = 8g+e
    v_lshlrev_b32 v13, 8, v13
    v_and_b32 v14, 1, v15
    v_lshl_add_u32 v12, v14, 2, v12       ; sigma
    s_lshl_b32 s41, s20, 1
    v_xor_b32 v12, s41, v12
    v_lshl_add_u32 v13, v12, 5, v13
    v_and_b32 v12, 3, v{VL}
    v_lshl_add_u32 v{VWR}, v12, 3, v13
    v_xor_b32 v{VWR+1}, 32, v{VWR}
    v_add_u32 v236, 65536, v{VWR}
    v_add_u32 v237, 65536, v{VWR+1}
    ; smfmac A: ones where ((row>>1)&1) == (g>>1) ; index 0x4444 / 0xeeee by row parity
    v_bfe_u32 v12, v{VL}, 1, 1
    v_lshrrev_b32 v13, 5, v{VL}
    v_cmp_eq_u32 vcc, v12, v13
    v_mov_b32 v12, 0x3f803f80
    v_and_b32 v13, 1, v{VL}
    v_cndmask_b32 v12, 0, v12, vcc
    v_mul_u32_u24 v13, 0xaaaa, v13
    v_add_u32 v{VIDX}, 0x4444, v13
    v_accvgpr_write_b32 a248, v12
    v_accvgpr_write_b32 a249, v12
    v_accvgpr_write_b32 a250, v12
    v_accvgpr_write_b32 a251, v12
    v_mov_b32 v{VT}, 0
    s_lshl_b32 s40, s2, 2
    s_add_u32 s40, s40, {FL_P}
    s_lshl_b32 s41, s42, 8
    s_lshr_b32 s42, s2, 4
    s_lshl_b32 s27, s42, 2
    s_add_u32 s41, s41, s27
    s_add_u32 s41, s41, {FL_Q}
    v_mov_b32 v{VPS}, {OOB}
    v_writelane_b32 v{VPS}, s40, 0
    v_writelane_b32 v{VPS}, s41, 1
    s_lshl_b32 s40, s65, 3
    s_add_u32 s40, s40, {FL_P}
    v_lshl_add_u32 v{VPP}, v{VL}, 2, s40
    s_lshl_b32 s41, s42, 8
    s_add_u32 s41, s41, {FL_Q-128}
    v_lshl_add_u32 v12, v{VL}, 2, s41
    v_cmp_gt_u32 vcc, 32, v{VL}
    s_lshl_b32 s41, s20, 30
    v_or_b32 v{VPS}, s41, v{VPS}
    v_cndmask_b32 v{VPP}, v12, v{VPP}, vcc
    v_or_b32 v{VPP}, s41, v{VPP}
    """)
    for r in range(8): a(f"v_accvgpr_write_b32 a{240+r}, 0")
    p_ld = []
    for r, (reg, off) in enumerate([(2,0),(2,2048),(3,0)]):
        p_ld.append(split(f"buffer_load_dwordx2 v[{K0+2*r}:{K0+2*r+1}], v{VKA+reg}, s[16:19], 0 offen offset:{off} {KNT}", ("KV",)))
    for r in range(8):
        pre_ = f"s_mov_b32 s28, {4096*(r>>1)}\n"
        p_ld.append(split((pre_ if r % 2 == 0 else "") + f"buffer_load_dwordx2 v[{K0+6+2*r}:{K0+7+2*r}], v{VKA}, s[16:19], s28 offen offset:{2048*(r&1)} {KNT}", ("KV",)))
        p_ld.append(split(f"buffer_load_dwordx2 v[{V0+2*r}:{V0+2*r+1}], v{VKA}, s[12:15], s28 offen offset:{2048*(r&1)} {KNT}", ("KV",)))
    for i in range(2):
        pre_ = "s_mov_b32 s12, s62\ns_mov_b32 s13, s63\ns_mov_b32 s14, 8192\n" if i == 0 else ""
        p_ld.append(split(pre_ + f"buffer_load_dwordx4 v[{W0+4*i}:{W0+4*i+3}], v{VWA}, s[12:15], 0 offen offset:{16*i}", ("KV",)))
    def red(r, t):
        o = []
        for ctl in ("quad_perm:[1,0,3,2]", "quad_perm:[2,3,0,1]", "row_half_mirror", "row_mirror"):
            o.append(f"s_nop 1\nv_add_f32_dpp v{r}, v{r}, v{r} {ctl} row_mask:0xf bank_mask:0xf")
        o += [f"v_mov_b32 v{t}, v{r}", f"s_nop 1\nv_permlane16_swap_b32 v{r}, v{t}", f"s_nop 1\nv_add_f32 v{r}, v{r}, v{t}"]
        return o
    rne = lambda d, s_: [f"v_cvt_pk_bf16_f32 v{d}, v{s_}, v{s_}", f"v_and_b32 v{d}, s47, v{d}"]
    M_ = TT + 32; S_ = TT + 36
    st = []
    for d in range(16): st += [f"v_lshlrev_b32 v{TT+2*d}, 16, v{Q0+d}", f"v_and_b32 v{TT+2*d+1}, s47, v{Q0+d}"]
    st += [f"v_add_f32 v{M_}, v{TT}, v{TT+1}", f"v_add_f32 v{M_+1}, v{TT+2}, v{TT+3}"]
    for d in range(4, 32): st.append(f"v_add_f32 v{M_+(d&1)}, v{M_+(d&1)}, v{TT+d}")
    st += [f"v_add_f32 v{M_}, v{M_}, v{M_+1}"] + red(M_, M_+1) + [f"v_mul_f32 v{M_}, {f2u(1/1024.)}, v{M_}"]
    for d in range(32): st.append(f"v_sub_f32 v{TT+d}, v{TT+d}, v{M_}")
    st += [f"v_mul_f32 v{S_}, v{TT}, v{TT}", f"v_mul_f32 v{S_+1}, v{TT+1}, v{TT+1}"]
    for d in range(2, 32): st.append(f"v_fmac_f32 v{S_+(d&1)}, v{TT+d}, v{TT+d}")
    st += [f"v_add_f32 v{S_}, v{S_}, v{S_+1}"] + red(S_, S_+1) + [f"v_mul_f32 v{S_}, {f2u(1/1024.)}, v{S_}"]
    st += rne(M_, M_) + rne(S_, S_) + [f"v_add_f32 v{S_}, {f2u(1e-5)}, v{S_}"] + rne(S_, S_) + [f"v_sqrt_f32 v{S_}, v{S_}\ns_nop 0"] + rne(S_, S_)
    C0 = -2*0.7978845608028654*math.log2(math.e); C1 = C0*0.044715
    st += [f"v_rcp_f32 v{TT}, v{S_}", f"v_mul_f32 v{M_+3}, v{S_}, v{S_}", f"v_mul_f32 v{M_+1}, {f2u(C0)}, v{TT}", f"v_mul_f32 v{TT+1}, v{TT}, v{TT}",
           f"v_mul_f32 v{TT}, {f2u(C1)}, v{TT}", f"v_mul_f32 v{M_+2}, v{TT}, v{TT+1}"]
    p_st = [It(lambda: wait(vm=[("Q",)]))] + [T(x) for x in st]
    p_kv = [It(lambda: wait(vm=[("KV",)])),
            ] + split(f"s_mov_b32 s12, s36\ns_mov_b32 s13, s37\ns_mov_b32 s14, 32768\nbuffer_store_dwordx4 v[{M_}:{M_+3}], v{VSA}, s[12:15], 0 offen sc1\ns_mov_b32 s16, s34\ns_mov_b32 s17, s35", ("PS",))
    KX = 154; WX = 176; VX = 184; RX = 192
    for c in range(2):
        o = []
        for e in range(2):
            for h in range(2): o += [f"v_lshlrev_b32 v{WX+4*e+2*h}, 16, v{W0+4*c+2*e+h}", f"v_and_b32 v{WX+4*e+2*h+1}, s47, v{W0+4*c+2*e+h}"]
        for r in range(11): o += [f"v_lshlrev_b32 v{KX+2*r}, 16, v{K0+2*r+c}", f"v_and_b32 v{KX+2*r+1}, s47, v{K0+2*r+c}"]
        for hf_ in range(2):
            for t in range(4): o += [f"v_lshlrev_b32 v{VX+2*t}, 16, v{V0+2*(4*hf_+t)+c}", f"v_and_b32 v{VX+2*t+1}, s47, v{V0+2*(4*hf_+t)+c}"]
            for t in range(4):
                for e in range(2): o.append(f"v_mul_f32 v{RX+2*t+e}, v{KX+2*(4*hf_+t)+e}, v{WX+4*e+3}")
            for j in (2, 1, 0):
                for t in range(4):
                    for e in range(2): o.append(f"v_fmac_f32 v{RX+2*t+e}, v{KX+2*(4*hf_+t+3-j)+e}, v{WX+4*e+j}")
            for t in range(4):
                for e in range(2): o.append(f"v_mul_f32 v{RX+2*t+e}, v{RX+2*t+e}, v{VX+2*t+e}")
            for e in range(2):
                ch = 2*c + e
                o += [f"v_cvt_pk_bf16_f32 v{Q0+4*ch+2*hf_}, v{RX+e}, v{RX+2+e}", f"v_cvt_pk_bf16_f32 v{Q0+4*ch+2*hf_+1}, v{RX+4+e}, v{RX+6+e}"]
        p_kv += [T(x) for x in o]
        if ULIN:
            def bp(r):
                def f(): LG.issue(("bp",)); return f"ds_bpermute_b32 v{r}, v{VKA+1}, v{r}"
                return It(f, 1, True)
            p_kv += [bp(Q0 + 8*c + r) for r in range(8)] + [It(lambda: wait(lg=[("bp",)]))]
            p_kv[-1].skip = 8
        for e in range(2):
            ch = 2*c + e
            p_kv += [vm(("PS",), f"buffer_store_dwordx4 v[{Q0+4*ch}:{Q0+4*ch+3}], v{VUA}, s[16:19], 0 offen offset:{1024*ch} sc1")]
            p_kv[-1].st = True
    p_kv += split(f"s_mov_b32 s12, s32\ns_mov_b32 s13, s33\ns_mov_b32 s14, 256\nbuffer_load_dword v{VFL+2}, v{VT}, s[12:15], 0 offen", ("N",))
    def nonce_chk(lb):
        return f"""
        s_mov_b32 s41, 0
        {L(lb)}:
        v_readfirstlane_b32 s44, v{VFL+2}
        s_add_u32 s41, s41, 1
        s_nop 3
        s_cmp_lg_u32 s44, 0
        s_cbranch_scc1 {L(lb)}_ok
        s_cmp_gt_u32 s41, {SPIN}
        s_cbranch_scc1 {L(lb)}_ok
        s_sleep 2
        buffer_load_dword v{VFL+2}, v{VT}, s[12:15], 0 offen offset:128 sc1
        s_waitcnt vmcnt(0)
        s_branch {L(lb)}
        {L(lb)}_ok:
        """
    where = {u: ("a", 16*u) for u in range(15)}
    NW = 7; ORD = list(range(12)) + [14, 12, 13]
    def acc(u, f): k, b = where[u]; return f"{k}[{b+4*f}:{b+4*f+3}]"
    def xf(st, p, kk): b = 8*((15*st + p) % NW) + 4*kk; return f"v[{b}:{b+3}]"
    def wf(kk, f, h=None, w=4):
        b = 60 + 16*kk + 4*f
        return f"v[{b}:{b+w-1}]" if h is None else f"v[{b+2*h}:{b+2*h+1}]"
    def rd_w(st, kk, f, h):
        LG.issue(("w", st, f)); sl = st % 3
        return f"ds_read_b64_tr_b16 {wf(kk,f,h)}, v{(236 if sl == 2 else VWR)+(f&1)} offset:{(sl & 1)*32768 + kk*16384 + (f>>1)*8192 + h*1024}"
    def rd_x(st, p, kk):
        LG.issue(("x", st, p)); return f"ds_read_b128 {xf(st,p,kk)}, v{VXR+kk} offset:{2048*ORD[p] + (st % 2)*32768}"
    if WARM:
        a(wait(vm=[("Q",)]))
        a(f"""
        s_mov_b64 exec, 0
        s_cmp_eq_u32 s20, 0
        s_cbranch_scc1 {L('w')}0
        s_cmp_eq_u32 s20, 1
        s_cbranch_scc1 {L('w')}1
        s_cmp_eq_u32 s20, 2
        s_cbranch_scc1 {L('w')}2
        s_branch {L('w')}3
        {L('wback')}:
        s_mov_b64 exec, -1
        """)
    a(wait(vm=[("W", 0), ("X", 0)]) + "\ns_barrier")
    stamp()
    for f in range(4):
        for kk in range(2): a(rd_w(0, kk, f, 0)); a(rd_w(0, kk, f, 1))
    for p in range(NW): a(rd_x(0, p, 0)); a(rd_x(0, p, 1))
    a("s_waitcnt lgkmcnt(0)"); LG.drain()
    lbl = [0]; over = [0]
    pend = [(2 + (i*34)//24, it) for i, it in enumerate(x_items(1) + w_items(1))]
    def stage(st, extra=(), stream=None, mig=()):
        first = st == 0; last = st == 15
        seq = []
        for f in range(4): seq += [("m", 0, f, 0), ("m", 0, f, 1), ("m", 1, f, 1), ("m", 1, f, 0)]
        for p in range(2, 13):
            for i, f in enumerate(range(4) if p % 2 == 0 else range(3, -1, -1)): seq += [("m", p, f, i & 1), ("m", p, f, 1 - (i & 1))]
        for f in range(4): seq += [("m", 13, f, 0), ("m", 13, f, 1), ("m", 14, f, 1), ("m", 14, f, 0)]
        for pos, kk, f in (((84, 1, 2), (60, 1, 0), (44, 0, 2), (28, 0, 0)) if not last else ((22, 1, 2), (20, 1, 0), (18, 0, 2), (16, 0, 0))): seq.insert(pos, ("s", kk, f))
        mpos = [i for i, e in enumerate(seq) if e[0] == "m"]
        G = lambda m: mpos[m]
        NGp = len(seq); gp = Gaps(NGp)
        endp = {p: max(i for i, e in enumerate(seq) if e[0] == "m" and e[1] == p) for p in range(15)}
        begp = {p: min(i for i, e in enumerate(seq) if e[0] == "m" and e[1] == p) for p in range(15)}
        SK0, SK1 = begp[12], endp[12]
        for g in range(SK0, SK1): gp.c[g] = 9
        gp.add(SK0-2, lambda: "s_cmp_lt_u32 s21, 7", 2); gp.c[SK0-1] = 9
        BG = endp[7] + 6
        for g, fn in extra:
            if g < 0: gp.add(BG, fn)
        def dobar():
            LG.drain()
            assert last or (VM.ops.count(("W", st+1)) == 8 and VM.ops.count(("X", st+1)) == 8), st
            w = VM.need([("W", st+1), ("X", st+1)])
            fine = ((f"\nv_writelane_b32 v239, s62, {st-1}" if st > 5 else "") + "\ns_memtime s[62:63]") if FINE1 and st >= 5 else ""
            if FINE1 and last: fine += "\ns_nop 0\nv_accvgpr_write_b32 a252, v239"
            return f"s_waitcnt {w+' ' if w else ''}lgkmcnt(0)\ns_barrier" + fine
        gp.add(BG, dobar, 2)
        waits = [G(4), G(8), G(12)] + [begp[p] for p in range(2, 14, 2)]
        for g in waits:
            if gp.c[g-1] < 9: gp.c[g-1] += 1
        gp.c[NGp-1] += 1
        rq = []
        if not first: rq += [(0, It(lambda kk=kk, h=h: rd_w(st, kk, 3, h), 1, True)) for kk in range(2) for h in range(2)] + [(0, It(lambda p=p, kk=kk: rd_x(st, p, kk), 1, True)) for p in (5, 6) for kk in range(2)]
        for p in range(13):
            p2 = p + NW
            if p2 < 15: rq += [(max(endp[p], endp[1]), It(lambda p2=p2, kk=kk: rd_x(st, p2, kk), 1, True)) for kk in range(2)]
            elif not last: rq += [(max(endp[p], BG+1), It(lambda p2=p2, kk=kk: rd_x(st+1, p2-15, kk), 1, True)) for kk in range(2)]
        if not last:
            for f in range(3): rq += [(begp[13] + 4*f + 3, It(lambda kk=kk, h=h, f=f: rd_w(st+1, kk, f, h), 1, True)) for kk in range(2) for h in range(2)]
        g = 0
        for g0, it in rq:
            g = gp.place(it, max(g, g0), NGp, 1, True)
            assert g is not None and (g0 > BG or g < BG - 2)
        def ordered(its, starts, g1=NGp):
            g = 0
            for it, st_ in zip(its, starts): g = gp.force(it, min(max(g, st_), g1-1), g1, it.w, it.lds)
            return g
        its = [it for g, it in pend]; sts = [g for g, it in pend]; pend.clear()
        nxt = (x_items(st+2) if st + 2 < 16 else []) + (w_items(2) if first else []) + (w_items(st+3) if st + 3 < 16 else [])
        nv = 0; isv = lambda it: it.fn.__name__ == '<lambda>' and it.fn.__defaults__ is not None; tot = sum(1 for it in nxt if isv(it))
        for it in nxt:
            g = BG + 1 + (nv*RSPAN)//max(tot, 16)
            if SK0 - 3 <= g <= SK1: g = SK1
            if g < NGp - 1 and not pend: its.append(it); sts.append(g)
            else: pend.append((max(0, g - NGp), it))
            nv += isv(it)
        xlast = [0]
        g = 0
        for it, st_ in zip(its, sts):
            g = gp.force(it, min(max(g, st_), NGp-1), NGp, it.w, it.lds)
            if getattr(it, "isx", False) and g < BG: xlast[0] = g
        ex = sorted([(g, i, fn) for i, (g, fn) in enumerate(extra) if g >= 0], key=lambda x: x[:2])
        if last:
            for g, i, fn in ex:
                if getattr(fn, 'vm', False): fn.w = VW15
        ordered([fn for g, i, fn in ex], [(BG + 1 + g - 1000 if g >= 1000 else g) for g, i, fn in ex])
        for u, dst in mig:
            src = where[u][1]; p = ORD.index(u)
            ordered([T(f"v_accvgpr_read_b32 v{dst+r}, a{src+r}") for r in range(16)], [max(endp[p], endp[1]) + 9]*16, NGp - 4)
        g = xlast[0] + 1
        while defer:
            g = gp.place(defer[0], g, BG, 2)
            if g is None: break
            defer.pop(0); g += 6
        g = 0
        while stream:
            it = stream[0]
            if DEFER and getattr(it, "st", False) and not (xlast[0] < g < BG - 4): defer.append(stream.pop(0)); continue
            g = gp.place(it, g + getattr(it, 'skip', 0), NGp, min(it.w, 2), it.lds)
            if g is None: break
            stream.pop(0)
        over[0] += sum(max(0, c - 2) for c in gp.c if c < 9); ovs.append(sum(max(0, c - 2) for c in gp.c if c < 9))
        for i, e in enumerate(seq):
            if e[0] == "s":
                a(f"v_smfmac_f32_16x16x64_bf16 a[{240+2*e[2]}:{243+2*e[2]}], a[248:251], {wf(e[1],e[2],w=8)}, v{VIDX}")
            else:
                _, p, f, kk = e; u = ORD[p]
                if i == 0: a(wait(lg=[("x", st, 0), ("x", st, 1), ("w", st, 0)]))
                elif i in waits[:3]: a(wait(lg=[("w", st, f)]))
                elif i in waits: a(wait(lg=[("x", st, p2) for p2 in range(p, min(15, p + (2 if p < 12 else 3)))]))
                if i == SK0:
                    lbl[0] += 1
                    a(f"s_cbranch_scc1 {L('sk')}{lbl[0]}")
                c = "0" if first and (u, f) not in begun else acc(u, f)
                begun.add((u, f))
                a(f"v_mfma_f32_16x16x32_bf16 {acc(u,f)}, {wf(kk,f)}, {xf(st,p,kk)}, {c}")
                if i == SK1: a(f"{L('sk')}{lbl[0]}:")
            for fn in gp.g[i]: a(fn())
        for u, dst in mig: where[u] = ("v", dst)
    begun = set(); ovs = []; defer = []
    def spin(lb, reg, lanes, soff, mask, tmp="s24", sleep=4):
        lo, hi = mask & 0xffffffff, mask >> 32
        return f"""
        s_cmp_eq_u32 s20, 0
        s_cbranch_scc0 {L(lb)}_ok
        s_mov_b32 {tmp}, 0
        {L(lb)}:
        v_cmp_eq_u32 vcc, s44, v{reg}
        s_add_u32 {tmp}, {tmp}, 1
        s_nop 3
        s_andn2_b32 vcc_lo, {lo}, vcc_lo
        s_andn2_b32 vcc_hi, {hi}, vcc_hi
        s_cmp_eq_u64 vcc, 0
        s_cbranch_scc1 {L(lb)}_ok
        s_cmp_gt_u32 {tmp}, {SPIN}
        s_cbranch_scc1 {L(lb)}_ok
        s_sleep {sleep}
        buffer_load_dword v{reg}, v{lanes}, s[48:51], {soff} offen sc1
        s_waitcnt vmcnt(0)
        s_branch {L(lb)}
        {L(lb)}_ok:
        """
    PMASK = 0x0000ffff3fffffff
    CVB = 114688; HB = 448; UB = HB + 4096 + 64; WSZ = 8704; STB = 98304
    st_setup = f"""
        s_mov_b32 s12, s36
        s_mov_b32 s13, s37
        s_lshl_b32 s40, s65, 8
        s_add_u32 s14, s40, 3840
        s_lshl_b32 s29, s20, 12
        s_add_u32 m0, s29, {STB}"""
    pf_setup = f"""
        s_mov_b32 s16, s52
        s_mov_b32 s17, s53
        s_mov_b32 s18, 7340032
        s_lshl_b32 s61, s2, 2
        s_add_u32 s61, s61, s20                 ; channel d
        s_lshr_b32 s28, s22, 2
        s_mul_i32 s28, s28, 9
        s_add_u32 s28, s28, s21
        s_and_b32 s42, s22, 3
        s_lshr_b32 s41, s3, 1
        s_cmp_eq_u32 s64, 1|s_cselect_b32 s28, 63, s28|s_cselect_b32 s42, s41, s42
        s_lshl_b32 s28, s28, 2
        s_add_u32 s28, s28, s20
        s_lshl_b32 s42, s42, 2
        s_lshr_b32 s42, 0x2130, s42
        s_and_b32 s42, s42, 3
        s_lshr_b32 s41, s28, 7
        s_mul_i32 s41, s41, 384
        s_add_u32 s28, s28, s41
        s_lshl_b32 s42, s42, 7
        s_add_u32 s28, s28, s42
        s_mul_i32 s28, s28, 7168
        s_mov_b32 s45, s28
        v_min_u32 v{VFL+4}, 55, v{VL}
        v_lshlrev_b32 v{VFL+4}, 7, v{VFL+4}"""
    pf = f"buffer_load_dword v{VFL+5}, v{VFL+4}, s[16:19], s28 offen"
    pf2 = f"""
        s_mov_b32 s16, s56
        s_mov_b32 s17, s57
        s_mov_b32 s18, 4194304
        s_lshl_b32 s28, s61, 12
        v_min_u32 v{VFL+4}, 31, v{VL}
        v_lshlrev_b32 v{VFL+4}, 7, v{VFL+4}
        buffer_load_dword v{VFL+5}, v{VFL+4}, s[16:19], s28 offen"""
    cv_setup0 = f"""
        s_mov_b32 s18, 4194304
        s_mul_i32 s60, s20, {WSZ}
        s_add_u32 s60, s60, {CVB}"""
    cv_setup = f"""
        s_lshl_b32 s28, s61, 12
        s_add_u32 m0, s60, {HB}"""
    cv_h = lambda i: f"buffer_load_dwordx4 v{VL16}, s[16:19], s28 offen offset:{1024*i} lds"
    cv_setup2 = f"""
        s_mov_b32 s16, s34
        s_mov_b32 s17, s35
        s_add_u32 m0, s60, {UB}
        s_lshr_b32 s28, s2, 4
        s_lshl_b32 s28, s28, 12
        s_and_b32 s42, s2, 15
        s_lshl_b32 s42, s42, 6
        s_add_u32 s28, s28, s42
        s_lshl_b32 s42, s20, 10
        s_add_u32 s28, s28, s42
        v_lshrrev_b32 v{VFL+4}, 2, v{VL}
        v_lshlrev_b32 v{VFL+4}, 16, v{VFL+4}
        v_and_b32 v244, 48, v{VL16}
        v_add_u32 v{VFL+4}, v{VFL+4}, v244"""
    cv_u = lambda i: f"buffer_load_dwordx4 v{VFL+4}, s[16:19], s28 offen offset:{1024*i} lds\ns_add_u32 s28, s28, {16*65536-1024}"
    cv_setup3 = f"""
        s_mov_b32 s16, s58
        s_mov_b32 s17, s59
        s_mov_b32 s18, 2048
        s_lshl_b32 s28, s61, 1
        v_mov_b32 v{VFL+3}, 0"""
    cv_d = f"buffer_load_ushort v{VFL+3}, v{VFL+3}, s[16:19], s28 offen"
    zp = [f"v_mov_b32 v238, 0\nv_lshl_add_u32 v241, v{VL}, 2, s60", f"v_min_u32 v242, 47, v{VL}\nv_lshl_add_u32 v242, v242, 2, s60",
          f"v_and_b32 v243, 15, v{VL}\nv_lshl_add_u32 v243, v243, 2, s60",
          "ds_write_b32 v241, v238", "ds_write_b32 v242, v238 offset:256", f"ds_write_b32 v243, v238 offset:{UB-64}"]
    def lg(txt):
        def f(): LG.issue(("z",)); return txt
        return It(f, 1, True)
    CS = 224; P = 208; O0 = 240; TA = 92; SR = 80
    NT = 8; RB = 256; UNIT = 8192; RP = 14; NSTEP = 56
    HS_ = 3072 if HSK else 2048; VHO = 236
    ACC = 64; DU = 0; TMP = 32; VCA = 204; VCB = 205; VCU = 206; VCD = 207
    cva = f"""
    v_bfe_u32 v244, v{VL}, 4, 1
    v_lshlrev_b32 v244, 2, v244
    v_and_b32 v245, 3, v{VL}
    v_add_u32 v244, v244, v245
    v_lshrrev_b32 v246, 5, v{VL}
    v_sub_u32 v244, v244, v246
    v_lshlrev_b32 v244, 6, v244
    v_bfe_u32 v247, v{VL}, 2, 2
    v_lshlrev_b32 v{VCD}, 3, v247
    v_sub_u32 v244, v244, v{VCD}
    s_add_u32 s25, s60, {HB-328-32}
    v_add_u32 v{VCA}, s25, v244
    v_bfe_u32 v244, v{VL}, 4, 1
    v_lshlrev_b32 v244, 5, v244
    v_add_u32 v245, v245, v247
    v_lshl_add_u32 v244, v245, 3, v244
    v_lshl_add_u32 v244, v246, 6, v244
    s_add_u32 s25, s60, {UB-56}
    v_add_u32 v{VCB}, s25, v244
    v_lshl_add_u32 v{VCU}, v{VL}, 1, s60""".strip().split("\n")
    def af(s_, q, h=None): b = 32*s_ + 4*q; return f"a[{b}:{b+3}]" if h is None else f"a[{b+2*h}:{b+2*h+1}]"
    def bf(s_, p, h=None): b = 64 + 32*s_ + 4*p; return f"a[{b}:{b+3}]" if h is None else f"a[{b+2*h}:{b+2*h+1}]"
    def reads(r):
        T_ = []
        for i in range(8):
            m = 4*i - r; e = 4*i + r
            T_.append(f"ds_read_b64_tr_b16 {af(r&1,i,0)}, v{VCA} offset:{128*(m+3)+32}")
            T_.append(f"ds_read_b64_tr_b16 {af(r&1,i,1)}, v{VCA} offset:{128*(m+3)}")
            T_.append(f"ds_read_b64_tr_b16 {bf(r&1,i,0)}, v{VCB} offset:{128*e}")
            T_.append(f"ds_read_b64_tr_b16 {bf(r&1,i,1)}, v{VCB} offset:{128*e+32}")
        return T_
    eh_s = f"""
        s_add_u32 s12, s36, {WS_HF}|s_addc_u32 s13, s37, 0
        s_cmp_eq_u32 s64, 1|s_cselect_b32 s14, 0, {64*112*HS_}
        s_lshl_b32 s41, s22, 2
        s_add_u32 s41, s41, s20
        {"s_and_b32 s40, s22, 3@s_lshl_b32 s40, s40, 1@s_sub_u32 s41, s41, s40@s_lshr_b32 s40, s20, 1@s_mul_i32 s40, s40, 6@s_add_u32 s41, s41, s40".replace("@", chr(10)) if PAIR1 else ""}
        s_lshr_b32 s40, s65, 1
        s_mul_i32 s40, s40, 112
        s_add_u32 s41, s41, s40
        s_mul_i32 s41, s41, {HS_}
        s_and_b32 s40, s65, 1|s_cselect_b32 s46, {112*HS_}, 0
        s_sub_u32 s47, {112*HS_}, s46
        s_sub_u32 s41, s41, s47
        s_add_u32 s29, s29, {STB}""".strip().split("\n")
    hoff = [f"v_cmp_lt_u32 vcc, 23, v{VL}", f"v_mov_b32 v{VHO}, v{VL16}", f"v_add_u32 v{VHO+1}, {128 if HSK else 0}, v{VL16}", f"v_cndmask_b32 v{VHO}, v{VHO}, v{VHO+1}, vcc",
            f"v_cmp_lt_u32 vcc, 15, v{VL}", f"v_add_u32 v{VHO+1}, {1152 if HSK else 1024}, v{VL16}", f"v_add_u32 v241, {1280 if HSK else 1024}, v{VL16}", f"v_cndmask_b32 v{VHO+1}, v{VHO+1}, v241, vcc"]
    eh_v = [f"v_and_b32 v240, 48, v{VL}", "v_lshrrev_b32 v241, 2, v240", "v_add_lshl_u32 v240, v240, v241, 2",
            f"v_and_b32 v{VT}, 15, v{VL}", f"v_lshl_add_u32 v{VT}, v{VT}, 4, s29",
            "s_cmp_eq_u32 s40, 0|s_cselect_b64 vcc, -1, 0", f"v_cndmask_b32 v218, v{VHO+1}, v{VHO}, vcc", f"v_cndmask_b32 v219, v{VHO}, v{VHO+1}, vcc"]
    eh_c = [f"v_accvgpr_read_b32 v{208+r}, a{240+r}" for r in range(8)] + [f"v_add_f32 v{208+2*f}, v{208+2*f}, v{209+2*f}" for f in range(4)]
    eh_p = [f"ds_bpermute_b32 v{CS+4*f+r}, v240, v{208+2*f} offset:{4*r}" for f in range(4) for r in range(4)]
    NL, NS_, NK_ = P0AT
    stream = []; sig_at = None
    migs = {}
    if MIG: migs = {11: [(0, 92), (4, 156)], 12: [(1, 108), (5, 172)], 13: [(2, 124), (6, 188)], 14: [(3, 140)]}
    at = lambda g, its: [(g, it) for it in its]
    AB = 1000
    for n in range(16):
        ex = []
        NLS = -(-21 // KPS)
        if NL <= n < NL + NLS:
            its = p_ld[KPS*(n-NL):KPS*(n-NL)+KPS]
            for i, it in enumerate(its): ex += at(8 + (i*108)//KPS, it)
        if n == NS_: stream += p_st
        if n == max(NK_, NL + NLS): stream += p_kv
        if sig_at is None and n > NK_ and not stream and not defer and ("N",) in VM.ops: sig_at = n
        if n == sig_at:
            ex += [(-1, lambda: wait(vm=[("PS",), ("N",)])), (AB, It(lambda: nonce_chk("nc"), 2)), (AB+4, vm(("F",), f"buffer_store_dword v{VFL+2}, v{VPS}, s[48:51], 0 offen sc1"))]
            assert n <= 10, n
        nw = 56 // TRK; ns = 32 // TRK; t0 = 29 - nw - ns
        assert sig_at is None or 2*sig_at <= t0 + 1 or n < sig_at, (sig_at, t0)
        slow = f"\ns_and_b32 s42, s22, 3\ns_cmp_eq_u32 s42, 1|s_cselect_b32 s18, 0, s18" if SLOWX else ""
        for hs in (2*n, 2*n+1):
            g0 = 62*(hs & 1)
            if hs == t0: ex += at(g0 + 10, split(pf_setup.replace("55", str(TRK-1)) + slow))
            if hs == t0 + nw: ex += at(g0 + 30, split("s_mov_b32 s16, s56\ns_mov_b32 s17, s57\ns_mov_b32 s18, 4194304\ns_lshl_b32 s28, s61, 12" + (slow if SLOWS else "")))
            if t0 <= hs < t0 + nw + ns: ex += at(g0 + 46, split(pf + f"\ns_add_u32 s28, s28, {128*TRK}", ("PF",)))
        if n == 12: ex += [(20, vm(("PC",), f"buffer_load_dword v{VT}, v{VPP}, s[48:51], 0 offen sc1"))]
        if n == 13: ex += [(-1, lambda: wait(vm=[("PC",)]) + "\n" + spin("pc", VT, VPP, "0", PMASK, tmp="s41"))]
        if n == 14: ex += at(AB, split(st_setup)) + [(AB+6+5*i, vm(("ST",), f"buffer_load_dwordx4 v{VL16}, s[12:15], s40 offen offset:{1024*i} lds")) for i in range(4)]
        if n == 15:
            ex += at(6, split("\n".join(hoff + eh_s + eh_v))) + at(34, split("\n".join(eh_c))) + at(44, split(cv_setup0 + "\n" + "\n".join(cva + zp[:3])))
            ex += at(AB, split(cv_setup)) + [(AB, vm(("CV",), cv_h(i))) for i in range(4)] + at(AB, [lg(x) for x in zp[3:]]) + at(AB, split(cv_setup2))
            for i in range(4): ex += at(AB, split(cv_u(i), ("CV",)))
            ex += at(AB, split(cv_setup3 + "\n" + cv_d, ("CV",))) + at(AB, [lg(x) for x in eh_p])
        stage(n, extra=ex, stream=stream, mig=migs.get(n, ()))
    print("gemm1: sig_at", sig_at, "over", ovs)
    assert not stream and sig_at
    stamp()
    a(wait(vm=[("ST",)]))
    a(f"ds_read_b128 v[{SR}:{SR+3}], v{VT}")
    LG.drain()
    fs(True)
    def epi(u):
        O = O0 + 4*(u & 1); MS = SR + 4*(u & 1)
        if where[u][0] == "v": B = where[u][1]
        else:
            B = TA
            for r in range(16): a(f"v_accvgpr_read_b32 v{B+r}, a{where[u][1]+r}")
        a("s_waitcnt lgkmcnt(0)")
        if u < 14: fs()
        if u < 14: a(f"ds_read_b128 v[{SR+4*((u+1)&1)}:{SR+3+4*((u+1)&1)}], v{VT} offset:{256*(u+1)}")
        if RSP and 9 <= u < 13:
            a(wait(vm=[("CV",)]))
            for x in reads(0)[8*(u-9):8*(u-8)]: a(x)
        G = [B+2*p for p in range(4)]; U = [B+8+2*p for p in range(4)]
        for p in range(8): a(f"v_pk_fma_f32 {pr(B+2*p)}, {pr(CS+2*p)}, {pr(MS)}, {pr(B+2*p)} op_sel_hi:[1,0,1] neg_lo:[0,1,0] neg_hi:[0,1,0]")
        for p in range(4): a(f"v_pk_mul_f32 {pr(P+2*p)}, {pr(G[p])}, {pr(G[p])}")
        for p in range(4): a(f"v_pk_fma_f32 {pr(P+2*p)}, {pr(P+2*p)}, {pr(MS+2)}, {pr(MS)} op_sel:[0,0,1] op_sel_hi:[1,0,1]")
        for p in range(4): a(f"v_pk_mul_f32 {pr(P+2*p)}, {pr(P+2*p)}, {pr(G[p])}")
        for r in range(8): a(f"v_exp_f32 v{P+r}, v{P+r}")
        for p in range(4): a(f"v_pk_mul_f32 {pr(G[p])}, {pr(G[p])}, {pr(U[p])}")
        for p in range(4): a(f"v_pk_fma_f32 {pr(P+2*p)}, {pr(P+2*p)}, {pr(MS+2)}, {pr(MS+2)} op_sel:[0,1,1] op_sel_hi:[1,1,1]")
        for r in range(8): a(f"v_rcp_f32 v{P+r}, v{P+r}")
        a(f"s_add_u32 s41, s41, {'s46' if u & 1 else 's47'}")
        for p in range(4): a(f"v_pk_mul_f32 {pr(G[p])}, {pr(G[p])}, {pr(P+2*p)}")
        for p in range(4): a(f"v_cvt_pk_bf16_f32 v{O+p}, v{G[p]}, v{G[p]+1}")
        a(f"buffer_store_dwordx4 v[{O}:{O+3}], v{218+(u&1)}, s[12:15], s41 offen sc1")
    assert where[0] == ("v", TA) or not MIG
    for u in range(14):
        if u == 13:
            assert MIG
            if not RSP:
                a(wait(vm=[("CV",)]))
                for x in reads(0): a(x)
        if L2PF and u == L2AT - 1:
            a(f"""
            s_mov_b32 s16, s52
            s_mov_b32 s17, s53
            s_mov_b32 s18, 7340032
            s_lshl_b32 s24, s38, 2
            s_add_u32 s24, s24, s20
            s_lshr_b32 s25, s24, 6
            s_and_b32 s24, s24, 63
            s_mul_i32 s25, s25, 1792
            s_mul_i32 s24, s24, 7
            s_add_u32 s24, s24, s25
            s_add_u32 s24, s24, 448
            s_lshl_b32 s24, s24, 11
            s_and_b32 s25, s3, 1
            s_lshl_b32 s25, s25, 10
            s_add_u32 s24, s24, s25
            v_min_u32 v{VFL+4}, 55, v{VL}
            v_lshrrev_b32 v{VFL+5}, 3, v{VFL+4}
            v_and_b32 v{VFL+4}, 7, v{VFL+4}
            v_lshlrev_b32 v{VFL+4}, 7, v{VFL+4}
            v_lshl_add_u32 v{VFL+4}, v{VFL+5}, 11, v{VFL+4}
            """)
        if L2PF and u >= L2AT and (u - L2AT) % 3 == 0 and (u - L2AT)//3 < L2PF:
            VM.issue(("PF",)); a(f"buffer_load_dword v{VFL+5}, v{VFL+4}, s[16:19], s24 offen\ns_add_u32 s24, s24, {448*2048}")
        epi(u); VM.issue(("HS",))
    a(f"s_cmp_lt_u32 s21, 7\ns_cbranch_scc1 {L('conv')}")
    epi(14)
    a(f"{L('conv')}:")
    fs(True)
    stamp()
    VWR2 = 196; T0_ = 36
    RHO = [31, 27, 22, 18, 13, 8, 8, 4] if REMAP else [0]*8
    g2s = f"""
    s_cmp_lt_u32 s3, 4|s_cselect_b32 s39, s24, s25
    s_and_b32 s41, s3, 3
    s_lshl_b32 s41, s41, 3
    s_lshr_b32 s39, s39, s41
    s_add_u32 s38, s38, s39
    s_and_b32 s38, s38, 31               ; gemm2 slot: slow gemm1 columns get fast gemm2 tiles
    s_lshr_b32 s61, s3, 1
    s_lshl_b32 s61, s61, 2
    s_and_b32 s39, s38, 3
    s_add_u32 s61, s61, s39              ; mt
    s_and_b32 s62, s3, 1
    s_lshl_b32 s62, s62, 2
    s_bfe_u32 s39, s38, 0x20002
    s_add_u32 s62, s62, s39              ; nt
    s_lshr_b32 s63, s38, 4               ; kh
    s_lshl_b32 s41, s20, 14
    {'s_and_b32 s39, s62, 3@s_lshl_b32 s42, s62, 8@s_lshl_b32 s39, s39, 7@s_sub_u32 s42, s42, s39'.replace('@', chr(10)) if PAIR2 else 's_lshl_b32 s42, s62, 8'}
    s_lshr_b32 s35, s42, 1
    s_add_u32 s41, s41, s42
    s_mul_i32 s43, s63, {NSTEP*32*2048}
    s_add_u32 s43, s43, s41
    s_add_u32 s8, s52, s43|s_addc_u32 s9, s53, 0
    s_sub_u32 s10, {NSTEP*32*2048}, s41
    s_lshl_b32 s45, s20, 12""".strip().replace("|", "@").split("\n")
    g2s = [f"s_mov_b32 s24, {sum(r << 8*i for i, r in enumerate(RHO[:4]))}", f"s_mov_b32 s25, {sum(r << 8*i for i, r in enumerate(RHO[4:]))}"] + [x.replace("@", "\n") for x in g2s]
    g2h = f"""
    s_lshl_b32 s40, s61, 2
    s_add_u32 s40, s40, s20              ; tokgroup
    s_mul_i32 s41, s40, 112
    s_mul_i32 s42, s63, {NSTEP}
    s_add_u32 s41, s41, s42
    s_mul_i32 s41, s41, {HS_}
    s_add_u32 s41, s41, {WS_HF}
    s_add_u32 s4, s36, s41|s_addc_u32 s5, s37, 0
    s_mov_b32 s6, {NSTEP*HS_}""".strip().split("\n")
    g2h = [x.replace("|", "\n") for x in g2h] + [x.replace(f"v{VHO+1}", "v233").replace(f"v{VHO}", "v232").replace("v241", f"v{T0_}") for x in hoff]
    def dma2(n):
        p = n >> 1
        head = [T(f"s_add_u32 m0, s45, {(p % (R//2))*2*UNIT}"), T(f"s_mov_b32 s26, {p*131072}")] if n % 2 == 0 else []
        return head + [vm(("W2", n), f"buffer_load_dwordx4 v{VWO2+i}, s[8:11], s26 offen offset:{1024*i} {W2NT} lds") for i in (2*(n&1), 2*(n&1)+1)]
    du = [f"ds_read_u16 v{DU+g}, v{VCU} offset:{UB+128*g}" for g in range(32)]
    du2 = [f"v_lshlrev_b32 v{VCD}, 16, v{VFL+3}"]
    for g in range(32): du2 += [f"v_lshlrev_b32 v{DU+g}, 16, v{DU+g}", f"v_mul_f32 v{DU+g}, v{VCD}, v{DU+g}"]
    g2addr = [f"v_bfe_u32 v{T0_}, v{VL}, 2, 3", f"v_lshlrev_b32 v{T0_+1}, 8, v{T0_}", f"v_lshrrev_b32 v{T0_+2}, 5, v{VL}", f"v_lshl_add_u32 v{T0_+1}, v{T0_+2}, 12, v{T0_+1}",
              f"v_and_b32 v{T0_+2}, 3, v{VL}", f"v_lshl_add_u32 v{T0_+1}, v{T0_+2}, 3, v{T0_+1}",
              "s_lshl_b32 s24, s63, 2", f"v_xor_b32 v{T0_}, s24, v{T0_}", f"v_lshl_add_u32 v{VWR2}, v{T0_}, 5, v{T0_+1}"] \
             + [f"v_xor_b32 v{VWR2+ft}, {ft<<5}, v{VWR2}" for ft in range(1, 8)] + ["s_mov_b32 s24, 65536"] \
             + [f"v_add_u32 v{208+ft}, s24, v{VWR2+ft}" for ft in range(8)] + [f"v_add_u32 v{224+ft}, s24, v{208+ft}" for ft in range(8)]
    g2dma = []
    for i in range(2):
        g2dma += [f"v_lshrrev_b32 v{T0_}, 4, v{VL}", f"v_add_u32 v{T0_}, {4*i}, v{T0_}", f"v_lshlrev_b32 v{T0_+1}, 1, v{T0_}", f"v_and_b32 v{T0_+2}, 15, v{VL}", f"v_xor_b32 v{T0_+2}, v{T0_+2}, v{T0_+1}",
                  f"v_and_b32 v{T0_+1}, 7, v{T0_+2}", f"v_lshlrev_b32 v{T0_+1}, 4, v{T0_+1}", f"v_and_b32 v{T0_+2}, 8, v{T0_+2}", f"v_lshl_add_u32 v{T0_+2}, v{T0_+2}, {6 if PAIR2 else 4}, v{T0_+1}",
                  f"v_lshl_add_u32 v{VWO2+i}, v{T0_}, 11, v{T0_+2}"]
    g2dma += [f"v_subrev_u32 v{VWO2+1}, 1024, v{VWO2+1}", f"v_add_u32 v{VWO2+2}, {65536-2048}, v{VWO2}", f"v_add_u32 v{VWO2+3}, {65536-2048}, v{VWO2+1}"]
    VHP = 192; VPR = 193; VYW = 194
    hp = f"""
    s_lshl_b32 s24, s61, 3
    s_mul_i32 s25, s24, 4682
    s_lshr_b32 s25, s25, 16
    s_min_u32 s25, s25, 7
    s_cmp_ge_u32 s24, 113|s_cselect_b32 s25, 8, s25
    s_add_u32 s24, s24, 7
    s_mul_i32 s27, s24, 4682
    s_lshr_b32 s27, s27, 16
    s_min_u32 s27, s27, 7
    s_cmp_ge_u32 s24, 113|s_cselect_b32 s27, 8, s27
    s_sub_u32 s27, s27, s25
    s_lshl_b32 s27, s27, 8
    s_lshl_b32 s25, s25, 8
    s_mul_i32 s24, s63, 48
    s_add_u32 s25, s25, s24
    v_and_b32 v{T0_}, 15, v{VL}
    v_lshrrev_b32 v{T0_+1}, 4, v{VL}
    v_mul_lo_u32 v{T0_+2}, v{T0_+1}, s27
    v_lshl_add_u32 v{T0_+2}, v{T0_}, 2, v{T0_+2}
    s_lshl_b32 s24, s20, 2
    v_add_u32 v{T0_+1}, s24, v{T0_+1}
    v_cmp_gt_u32 vcc, 2, v{T0_+1}
    v_mov_b32 v{T0_}, {OOB}
    s_lshl_b32 s24, s20, 6
    v_add_u32 v{T0_+1}, s24, v{VL}
    v_cndmask_b32 v{VHP}, v{T0_}, v{T0_+2}, vcc
    v_lshlrev_b32 v{T0_+2}, 2, v{T0_+1}
    v_cmp_gt_u32 vcc, 16, v{T0_+1}
    s_lshl_b32 s24, s20, 1
    s_add_u32 s24, s24, {CVB}
    v_cndmask_b32 v{VFL}, v{T0_}, v{T0_+2}, vcc
    v_lshl_add_u32 v{VYW}, v{VL}, 3, s24
    s_mov_b32 s28, 0
    s_brev_b32 s29, 1
    v_mov_b32 v{VYW+1}, 0""".strip().split("\n")
    hp = [x.replace("|", "\n") for x in hp]
    sg = ["s_lshl_b32 s34, s21, 8", "s_lshl_b32 s24, s22, 2", "s_add_u32 s34, s34, s24", "s_lshl_b32 s24, s64, 30", "s_add_u32 s34, s34, s24"]
    ACC2 = 128
    def acc2(ft, u): b = ACC2 + 4*(2*ft+u); return f"v[{b}:{b+3}]"
    def wf2(n, ft, h=None):
        b = ([0, 16, 64, 80, 32, 48, 96, 112][ft] if CH == 4 else [0, 8, 16, 24, 64, 72, 80, 88][ft]) + 4*(n % CH)
        return f"a[{b}:{b+3}]" if h is None else f"a[{b+2*h}:{b+2*h+1}]"
    AH = 128
    def hf(slot, u): b = AH + 8*slot + 4*u; return f"a[{b}:{b+3}]"
    def ld_h(n):
        return [T(f"s_mov_b32 s23, {HS_*n}")] + [vm(("H", n), f"buffer_load_dwordx4 {hf(n % HD, u)}, v{232+u}, s[4:7], s23 offen {HNT}") for u in range(2)]
    def rd_w2(n, ft, h):
        LG.issue(("w", n, ft))
        return f"ds_read_b64_tr_b16 {wf2(n, ft, h)}, v{(VWR2, 208, 224)[(n % R)//8]+ft} offset:{((n % R) % 8 >> 1)*2*UNIT + (n & 1)*2048 + h*8192}"
    Rg = lambda g, rho: ACC + 4*g + rho
    def combine(n):
        o = []
        for rho in (2, 1, 0):
            for k in range(4):
                g = 4*n + k
                prev = f"v{Rg(g-1, rho+1)}" if g else f"v{VYW+1}"
                o.append(f"v_cndmask_b32 v{TMP+k}, v{Rg(g,rho+1)}, {prev}, s[28:29]")
            for k in range(4):
                g = 4*n + k
                o.append(f"v_add_f32_dpp v{Rg(g,rho)}, v{TMP+k}, v{Rg(g,rho)} wave_ror:1 row_mask:0xf bank_mask:0xf")
        for k in range(4): o.append(f"v_add_f32 v{Rg(4*n+k,0)}, v{Rg(4*n+k,0)}, v{DU+4*n+k}")
        for k in (0, 2): o.append(f"v_cvt_pk_bf16_f32 v{DU+4*n+k}, v{Rg(4*n+k,0)}, v{Rg(4*n+k+1,0)}")
        for k in (0, 2): o += [f"ds_write_b16 v{VYW}, v{DU+4*n+k} offset:{512*(4*n+k)}", f"ds_write_b16_d16_hi v{VYW}, v{DU+4*n+k} offset:{512*(4*n+k+1)}"]
        return o
    XR = 48; YR = 24; ST = 40; T6 = 44; VXA = 216; XLB = 131072
    xa = f"""
    s_lshl_b32 s41, s40, 5
    s_lshl_b32 s43, s63, {8 if PAIR2 else 6}
    s_add_u32 s42, s35, s43              ; f0
    v_and_b32 v{VXA+2}, 15, v{VL}
    v_add_u32 v{VXA+2}, s41, v{VXA+2}    ; token
    v_lshrrev_b32 v{T0_}, 4, v{VL}
    v_lshl_add_u32 v{VXA+3}, v{T0_}, 2, s42    ; feature
    v_lshrrev_b32 v{VXA}, 3, v{VL}
    v_add_u32 v{VXA}, s41, v{VXA}
    v_lshlrev_b32 v{VXA}, 11, v{VXA}
    v_and_b32 v{VXA+1}, 7, v{VL}
    v_lshl_add_u32 v{VXA}, v{VXA+1}, 4, v{VXA}
    v_and_b32 v{VXA+1}, 15, v{VL}
    v_lshlrev_b32 v{VXA+1}, 7, v{VXA+1}
    v_lshl_add_u32 v{VXA+1}, v{T0_}, 3, v{VXA+1}
    s_add_u32 s24, s45, {XLB}
    v_add_u32 v{VXA+1}, s24, v{VXA+1}"""
    xd = f"s_mov_b32 s12, s30\ns_mov_b32 s13, s31\ns_mov_b32 s14, 4194304\ns_lshl_b32 s24, s42, 1\ns_add_u32 m0, s45, {XLB}\n"
    for i in range(4): xd += f"buffer_load_dwordx4 v{VXA}, s[12:15], s24 offen offset:{1024*i} lds\n" + (f"s_add_u32 s24, s24, {16384-1024}\n" if i < 3 else "")
    xr = [f"ds_read_b64 v[{XR+4*ft+2*u}:{XR+4*ft+2*u+1}], v{VXA+1} offset:{2048*u + 32*ft}" for ft in range(4) for u in range(2)]
    xs = f"v_lshlrev_b32 v22, 4, v{VXA+2}\ns_mov_b32 s12, s36\ns_mov_b32 s13, s37\ns_mov_b32 s14, 32768"
    for u in range(2): xs += f"\nbuffer_load_dwordx2 v[{ST+2*u}:{ST+2*u+1}], v22, s[12:15], 0 offen offset:{256*u}"
    def rdi(r):
        def mk(x, i):
            def f(): LG.issue(("c", r, i)); return x
            return It(f, 1, True)
        return [mk(x, j//4) for j, x in enumerate(reads(r))]
    pairs = [(q, n-q) for n in range(8) for q in range(n+1)]
    phases = [[(0, q, p) for q, p in pairs], [(1, q, p) for q, p in pairs], []]
    for grp in ((0, 1, 2), (3,), (4,), (5,), (6,), (7,)):
        for r in (2, 3): phases[2] += [(r, q, p) for q, p in pairs if q + p in grp]
    started = set(); cnt = 0
    pfq = [it for u_ in range(RP) for it in dma2(u_)]
    for ph, ms in enumerate(phases):
        a("s_waitcnt lgkmcnt(0)"); LG.drain()
        fs()
        NG = len(ms); gp = Gaps(NG, CCAP)
        def seqp(its, g0, g1=NG, step_=0):
            g = g0
            for i, it in enumerate(its): g = gp.force(it, min(max(g, g0 + int(i*step_)), g1-1), g1, CVW if getattr(it, "vm", False) else 1, getattr(it, "lds", False))
            return g
        if ph == SIGAT[0]:
            gp.add(SIGAT[1], lambda: wait(vm=[("HS",)]) + "\ns_barrier", 2)
            gp.add(SIGAT[1], vm(("F",), f"buffer_store_dword v{VFL+2}, v{VFL+1}, s[48:51], s34 offen sc1"))
        seqp(rdi(ph+1), 0)
        if ph == 0:
            seqp([lg(x) for x in du], 11)
            lpf = split(f"""
            s_mov_b32 s16, s52
            s_mov_b32 s17, s53
            s_and_b32 s42, s22, 3
            s_cmp_eq_u32 s42, 1|s_cselect_b32 s18, 7340032, 0
            s_mov_b32 s28, s45
            v_min_u32 v{VFL+4}, 55, v{VL}
            v_lshlrev_b32 v{VFL+4}, 7, v{VFL+4}
            buffer_load_dword v{VFL+5}, v{VFL+4}, s[16:19], s28 offen""", ("PF",)) if SLOWX else []
            g = seqp(lpf + [T(x) for x in sg + g2dma + g2s], 0)
            span = (NG-g-1) + PFEND + PF2; tot = len(pfq)
            k = (tot*(NG-g-1)) // span
            seqp(pfq[:k], g+1, NG, (NG-g-1)/k); pfq = pfq[k:]
        if ph == 1:
            k = len(pfq) if not PF2 else (tot*PFEND) // span
            seqp(pfq[:k], 0, NG, PFEND/k); pfq = pfq[k:]
            g = seqp([T(x) for x in du2 + g2h + g2addr + hp], 0)
        left = []
        if ph == 2:
            YB_ = 12
            if pfq: seqp(pfq, 0, NG, PF2/len(pfq))
            gp.add(YB_, lambda: (LG.drain(), "s_waitcnt lgkmcnt(0)\ns_barrier")[1], 2)
            gp.add(PHAT, vm(("PH",), f"buffer_load_dword v{VPR}, v{VHP}, s[48:51], s25 offen sc1"))
            def hchk():
                sv = a.l; a.l = []
                assert VM.ops.count(("W2", 3)) == 2
                a(wait(vm=[("PH",), ("W2", 3)]))
                if not TWO:
                    stamp(); a(spin("ph", VPR, VHP, "s25", 0xffffffff, sleep=PSL)); a("s_barrier"); stamp()
                else:
                    a(f"""
                    v_cmp_eq_u32 vcc, s44, v{VPR}
                    v_mov_b32 v{T0_+1}, {163836}
                    s_lshl_b32 s24, s20, 2
                    v_subrev_u32 v{T0_+2}, s24, v{T0_+1}
                    s_cmp_eq_u32 vcc_lo, -1
                    s_cselect_b32 s24, s6, 0
                    v_mov_b32 v{T0_}, s24
                    ds_write_b32 v{T0_+2}, v{T0_}
                    s_waitcnt lgkmcnt(0)
                    s_barrier
                    ds_read_b32 v{T0_}, v{T0_+1}
                    """)
                    LG.drain(); LG.issue(("hf",))
                t = "\n".join(a.l); a.l = sv; return t
            gp.add(HCHK, hchk, 6)
            H0 = HCHK + 1
            if TWO:
                gp.add(HCHK+1, vm(("PH",), f"buffer_load_dword v{VPR}, v{VHP}, s[48:51], s25 offen sc1"))
                gp.add(HCHK+3, lambda: wait(lg=[("hf",)]) + f"\nv_readfirstlane_b32 s6, v{T0_}\ns_nop 3", 6)
                H0 = HCHK + 4
            c3 = f"""
            s_lshl_b32 s24, s38, 2
            s_add_u32 s24, s24, s20
            s_cmp_ge_u32 s24, 64|s_cselect_b32 s41, {1792 - 64*C3}, 0
            s_mul_i32 s24, s24, {C3}
            s_add_u32 s24, s24, s41
            s_add_u32 s24, s24, 448
            s_lshl_b32 s24, s24, 11
            s_and_b32 s41, s3, 1
            s_lshl_b32 s41, s41, 10
            s_add_u32 s24, s24, s41
            s_add_u32 s24, s24, 384
            v_min_u32 v{T0_}, {C3-1}, v{VL}
            v_lshlrev_b32 v{T0_}, 11, v{T0_}
            s_mov_b32 s16, s52
            s_mov_b32 s17, s53
            s_mov_b32 s18, 7340032
            buffer_load_dword v{VFL+5}, v{T0_}, s[16:19], s24 offen
            """ if C3 else ""
            seqp(split(c3 + xa, ("E",)), 0, PHAT, 0.5)
            seqp([It(lambda n_=n_, ft=ft, h=h: rd_w2(n_, ft, h), 1, True) for ft in range(8//CH) for n_ in range(CH) for h in range(2)], max(HCHK+1, 64), NG, 0.5)
            seqp([it for n_ in range(HB0-1) for it in ld_h(n_)], H0, NG, 0.5)
            g = 0
            for n_ in range(7):
                at_ = max(i for i, (r, q, p) in enumerate(ms) if q + p == n_) + 3
                for x in combine(n_):
                    w_ = x.startswith("ds_")
                    g2_ = gp.place(T(x), max(g, at_, YB_+1 if w_ else 0), NG, DPW if "dpp" in x else 1, w_) if not left else None
                    if g2_ is None: left.append(x)
                    elif not w_: g = g2_
        for i, (r, q, p) in enumerate(ms):
            n = p + q
            d = f"v[{ACC+16*n}:{ACC+16*n+15}]"
            c = d if n in started else "0"
            started.add(n)
            if FINE2 and ph == 2 and i in (12, 24, 36, 48, 54, 60): fs(True)
            if r == 3: a(wait(lg=[("c", 3, q), ("c", 3, p)]))
            a(f"v_mfma_f32_32x32x16_bf16 {d}, {af(r&1,q)}, {bf(r&1,p)}, {c}")
            for fn in gp.g[i]:
                t = fn()
                if CX:
                    keep = []
                    for x in t.split("\n"):
                        y = x.strip()
                        if "c" in CX and (y.startswith("v_cndmask_b32 v3") or "dpp" in y): continue
                        if "w" in CX and y.startswith("ds_write_b16"): continue
                        if "p" in CX and y.endswith(" lds"): continue
                        if "h" in CX and y.startswith("buffer_load_dwordx4 a["): continue
                        if "d" in CX and (y.startswith("ds_read_u16") or y.startswith("v_mul_f32 v") or y.startswith("v_lshlrev_b32")): continue
                        if "b" in CX and y == "s_barrier": continue
                        keep.append(x)
                    t = "\n".join(keep)
                a(t)
    print("conv leftover", len(left))
    for x in left: a(x)
    if len(left) < 12: a("s_nop 7\ns_nop 3")
    fs(True)
    for x in combine(7): a(x)
    a(f"""
    s_mov_b32 s27, s25
    s_lshl_b32 s25, s20, 12
    v_add_u32 v5, s25, v{VL16}
    v_add_u32 v6, {CVB}, v5
    s_lshl_b32 s24, s2, 14
    s_add_u32 s16, s36, {WS_Y4}
    s_addc_u32 s17, s37, 0
    s_mov_b32 s18, 4194304
    """)
    if TWO:
        stamp()
        a(f"s_cmp_lg_u32 s6, 0\ns_cbranch_scc1 {L('hrdy')}\ns_waitcnt vmcnt(0)")
        a(spin("ph", VPR, VHP, "s27", 0xffffffff, tmp="s41", sleep=PSL))
        a(f"s_waitcnt lgkmcnt(0)\ns_barrier\ns_mov_b32 s6, {NSTEP*HS_}")
        st_ = VM.save()
        for n_ in range(HB0-1):
            for it in ld_h(n_): a(it())
        VM.restore(st_)
        a(f"s_branch {L('hgo')}\n{L('hrdy')}:\ns_waitcnt lgkmcnt(0)\ns_barrier\n{L('hgo')}:")
        stamp()
    else: a("s_waitcnt lgkmcnt(0)\ns_barrier")
    LG.drain()
    fs()
    XF_ = 64; SF = 96; QO = 224
    setup_e = f"""
    v_lshrrev_b32 v13, 4, v{VL}
    v_lshlrev_b32 v16, 12, v{VXA+3}
    v_lshl_add_u32 v16, v{VXA+2}, 3, v16
    v_and_b32 v19, 1, v13
    v_lshlrev_b32 v19, 4, v19
    v_lshrrev_b32 v20, 1, v13
    v_lshl_add_u32 v19, v20, 3, v19
    v_add_u32 v19, s42, v19
    v_lshlrev_b32 v19, 1, v19
    v_lshl_add_u32 v19, v{VXA+2}, 11, v19
    v_add_u32 v20, 32768, v19
    s_lshr_b32 s27, s42, 6
    s_lshl_b32 s27, s27, 8
    s_add_u32 s27, s27, {FL_Y}
    s_add_u32 s56, s36, {WS_PX}|s_addc_u32 s57, s37, 0
    s_mov_b32 s58, {256*32768}
    s_mov_b32 s59, 0x20000
    s_lshl_b32 s32, s38, 3
    s_add_u32 s32, s32, s3
    s_lshl_b32 s32, s32, 15
    s_lshl_b32 s33, s20, 13
    s_add_u32 s32, s32, s33
    s_add_u32 s33, s32, 4096
    s_xor_b32 s34, s32, {128<<15}
    s_xor_b32 s35, s33, {128<<15}
    s_lshr_b32 s29, s44, 8
    s_lshr_b32 s46, s44, 16
    s_lshr_b32 s47, s44, 24
    v_mov_b32 v21, 0xff""".strip().split("\n")
    setup_e = [x.replace("|", "\n") for x in setup_e]
    if FINE or FINE2: setup_e = [x.replace("s32", "s60").replace("s33", "s65") for x in setup_e]
    PXA, PXB = ("s60", "s65") if FINE or FINE2 else ("s32", "s33")
    TAG = ["s44", "s29", "s46", "s47"]
    fi = [0]
    def barrier2(need, drain=False):
        assert VM.ops.count(need[0]) == 2, need
        w = VM.need(need)
        z = LG.need([("z",)]) if drain else None
        fine = ""
        if FINE:
            fi[0] += 1; LG.drain(); z = "lgkmcnt(0)"
            fine = (f"\nv_writelane_b32 v255, s32, {fi[0]-1}" if fi[0] > 1 else "") + "\ns_memtime s[32:33]"
        ws_ = " ".join(x for x in (w, z) if x)
        return (f"s_waitcnt {ws_}\n" if ws_ else "") + "s_barrier" + fine
    TAIL = NSTEP - TN
    groups = [(c, ft) for c in range(TAIL//CH) for ft in range(8)]
    groups += [(c, ft) for c in range(TAIL//CH, NSTEP//CH) for ft in range(4, 8)]
    KEEP0 = len(groups)*2*CH
    groups += [(c, ft) for c in range(TAIL//CH, NSTEP//CH) for ft in range(4)]
    GS = 2*CH; NG = len(groups)*GS
    gp = Gaps(NG)
    for gi in range(1, len(groups)): gp.c[gi*GS - 1] += 1
    def put(its, g0, step_=0.0, g1=None):
        g = g0
        for i, it in enumerate(its): g = gp.force(it, max(g, g0 + int(i*step_)), min(NG, max(g, g0 + int(i*step_)) + 12) if g1 is None else g1, 1)
        return g
    seen = {0}; bar_at = {}; g = 0; lastuse = {}
    for gi, (c, ft) in enumerate(groups):
        if gi >= 8//CH:
            g = max(g, lastuse.get(ft, -1) + 1)
            q = c*CH//4
            if q not in seen:
                seen.add(q); bar_at[q] = g
                gp.add(g, lambda q=q: (ychk() if q == YQ else "") + barrier2([("W2", 4*q+3)] + ([("YS",)] if q == 3 else []), q == 1), 2)
            for j in range(CH):
                for h in range(2):
                    gp.add(g, lambda n_=c*CH+j, ft=ft, h=h: rd_w2(n_, ft, h), lds=True); g += 1
            assert g <= gi*GS - 4, (gi, g)
        lastuse[ft] = (gi+1)*GS - 1
    YQ = NSTEP//4 - 1
    ychk = lambda: wait(vm=[("PY",)]) + "\n" + spin("py", VPR, VFL, "s27", 0xffff, tmp="s41")
    g = bar_at[1] + 1
    ld = []
    for m in range(RP, NSTEP):
        lo = bar_at[1] + 1 if m < R else bar_at[(m-R)//4 + 2] + 1
        g = max(g, lo); ld.append((g, 0, dma2(m))); g += 16 if TN == 8 else 15
    g = 1
    for n in range(HB0-1, NSTEP):
        lo = 1 if n < HD else ((n-HD)//CH + 1)*CH*16
        g = max(g, lo); ld.append((g + 8, 1, ld_h(n))); g += (16 if TN == 8 else 14) if g > bar_at[1] else 8
    ld.sort(key=lambda x: x[:2]); gl = 0
    for g, kind, its in ld: gl = put(its, max(g, gl), 3.0)
    glast = gl
    put([lg(f"ds_read_b128 v[{24+4*i}:{27+4*i}], v6 offset:{1024*i}") for i in range(4)], 1, 3)
    put([It(lambda: wait(lg=[("z",)]))] + [vm(("YS",), f"buffer_store_dwordx4 v[{24+4*i}:{27+4*i}], v5, s[16:19], s24 offen offset:{1024*i} sc1") for i in range(4)], 18, 4)
    put(split(f"s_lshr_b32 s64, s2, 4\ns_lshl_b32 s64, s64, 8\ns_and_b32 s65, s2, 15\ns_lshl_b32 s65, s65, 2\ns_add_u32 s64, s64, s65\ns_add_u32 s64, s64, {FL_Y}"), 40, 2)
    put(split(xs, ("E",)), 64, 2)
    put([vm(("F",), f"buffer_store_dword v{VFL+2}, v{VFL+1}, s[48:51], s64 offen sc1")], bar_at[3] + 1)
    put([T(x) for x in setup_e], bar_at[3] + 4, 2)
    put([vm(("PY",), f"buffer_load_dword v{VPR}, v{VFL}, s[48:51], s27 offen sc1")], bar_at[YQ] - 16*PYB)
    put(split(xd, ("XD",)), glast + 1, 2)
    yl = []
    for ft in range(4):
        for u in range(2):
            i = 2*ft+u
            yl += split((f"s_mov_b32 s43, {ft*65536}\n" if u == 0 else "") + f"buffer_load_dwordx2 v[{YR+2*i}:{YR+2*i+1}], v16, s[16:19], s43 offen offset:{128*u}", ("E",))
    put(yl, bar_at[YQ] + 1, 2.5)
    NPX = 6; SB = 64; send = []
    for i in range(6):
        for r in range(3):
            d = 3*i + r
            if d < 16: send.append(T(f"v_cvt_pk_bf16_f32 v{SB+4*i+r}, v{ACC2+32+2*d}, v{ACC2+33+2*d}"))
        send.append(T(f"v_mov_b32 v{SB+4*i+3}, s44"))
        send.append(vm(("PXS",), f"buffer_store_dwordx4 v[{SB+4*i}:{SB+4*i+3}], v{VL16}, s[56:59], {PXA if i < 4 else PXB} offen offset:{1024*(i&3)} {XST}"))
    put(send, KEEP0 + 1, SSP)
    print("gemm2 over", sum(max(0, c - 2) for c in gp.c), "last load gap", glast, "of", NG, bar_at)
    for gi, (c, ft) in enumerate(groups):
        for k in range(GS):
            u = (k // CH) ^ (gi & 1); n = c*CH + (k % CH if k < CH else CH - 1 - k % CH)
            if k == 0:
                assert all(VM.ops.count(("H", c*CH + j)) == 2 for j in range(CH))
                a(wait(vm=[("H", c*CH + j) for j in range(CH)], lg=[("w", c*CH + j, ft) for j in range(CH)]))
            cc = "0" if c == 0 and k % CH == 0 else acc2(ft, u)
            a(f"v_mfma_f32_16x16x32_bf16 {acc2(ft,u)}, {wf2(n,ft)}, {hf(n % HD, u)}, {cc}")
            for fn in gp.g[gi*GS + k]: a(fn())
    fs(True)
    stamp()
    PXR = 192
    pxl = "\n".join(f"buffer_load_dwordx4 v[{PXR+4*i}:{PXR+3+4*i}], v{VL16}, s[56:59], {'s34' if i < 4 else 's35'} offen offset:{1024*(i&3)} {XLD}" for i in range(NPX))
    a(f"v_mov_b32 v2, v{VL16}\nv_cmp_eq_u32 vcc, 0, v{VL}\nv_mov_b32 v3, {OOB}\nv_mov_b32 v4, 1008\nv_cndmask_b32 v3, v3, v4, vcc")
    pxl = pxl.replace(f"v{VL16},", "v2,")
    a(wait(vm=[("E",), ("XD",)]))
    for x in xr: a(x)
    lp = f"buffer_load_dword v1, v3, s[56:59], s35 offen offset:{1024*((NPX-1)&3) + (12 if XBF else 0)} sc1"
    if EPOLL == 1: a(lp)
    if EPOLL == 2: a(pxl)
    for u in range(2): a(f"v_mul_f32 v{ST+2*u+1}, {f2u(1/C0)}, v{ST+2*u+1}")
    a("s_waitcnt lgkmcnt(0)")
    for i in range(8):
        u = i & 1
        for h in range(2):
            b = 4*i + 2*h
            a(f"""v_lshlrev_b32 v{XF_+b}, 16, v{XR+2*i+h}
            v_and_b32 v{XF_+b+1}, 0xffff0000, v{XR+2*i+h}
            v_lshlrev_b32 v{T6}, 16, v{YR+2*i+h}
            v_and_b32 v{T6+1}, 0xffff0000, v{YR+2*i+h}
            v_pk_add_f32 {pr(SF+b)}, {pr(XF_+b)}, {pr(ST+2*u)} op_sel_hi:[1,0] neg_lo:[0,1] neg_hi:[0,1]
            v_pk_mul_f32 {pr(T6)}, {pr(T6)}, {pr(ST+2*u)} op_sel:[0,1] op_sel_hi:[1,1]
            v_pk_mul_f32 {pr(SF+b)}, {pr(SF+b)}, {pr(T6)}""")
    fs(True); fs(True)
    a(f"""
    s_mov_b32 s16, s54
    s_mov_b32 s17, s55
    s_mov_b32 s24, 0
    s_mov_b32 s42, {f2u(-math.log2(math.e))}
    s_mov_b32 s43, s42
    {"s_branch " + L('px3' if EPOLL == 1 else 'px4') if EPOLL else ""}
    {L('px2')}:
    {lp}
    {L('px3')}:
    s_add_u32 s24, s24, 1
    s_cmp_gt_u32 s24, {SPIN}
    s_cbranch_scc1 {L('px_ok')}
    s_waitcnt vmcnt(0)
    v_xor_b32 v1, {TAG[0]}, v1
    {'' if XBF else 'v_and_b32 v1, v1, v21'}
    v_cmp_eq_u32 vcc, 0, v1
    s_nop 4
    s_bitcmp1_b32 vcc_lo, 0
    s_cbranch_scc1 {L('px')}
    s_sleep {XSL}
    s_branch {L('px2')}
    {L('px')}:
    """)
    a(pxl)
    a(f"{L('px4')}:")
    for i in range(NPX):
        a(f"s_waitcnt vmcnt({NPX-1-i})")
        if XBF:
            a(f"v_xor_b32 v1, s44, v{PXR+3}" if i == 0 else f"v_bitop3_b32 v1, v1, v{PXR+4*i+3}, s44 bitop3:0xf6")
            for r in range(3):
                d = 3*i + r
                if d < 16: a(f"v_lshlrev_b32 v{ACC2+32+2*d}, 16, v{PXR+4*i+r}\nv_and_b32 v{ACC2+33+2*d}, 0xffff0000, v{PXR+4*i+r}")
        else:
            for r in range(4*i, 4*i+4):
                a(f"v_xor_b32 v1, {TAG[0]}, v{PXR}" if r == 0 else f"v_bitop3_b32 v1, v1, v{PXR+r}, {TAG[r&3]} bitop3:0xf6")
    if XBF: PXR = ACC2 + 32
    a(f"""
    {'' if XBF else 'v_and_b32 v1, 0xff, v1'}
    v_cmp_ne_u32 vcc, 0, v1
    s_nop 4
    s_cbranch_vccnz {L('px2')}
    {L('px_ok')}:
    """)
    stamp()
    E = T6
    for ft in range(4):
        for u in range(2):
            i = 2*ft+u; O = ACC2 + 4*i; S_ = SF + 4*i; X_ = XF_ + 4*i
            for h in range(2): a(f"v_pk_add_f32 {pr(O+2*h)}, {pr(O+2*h)}, {pr(PXR+4*i+2*h)}")
            for h in range(2): a(f"v_pk_mul_f32 {pr(E+2*h)}, {pr(O+2*h)}, s[42:43]")
            for r in range(4): a(f"v_exp_f32 v{E+r}, v{E+r}")
            for h in range(2): a(f"v_pk_mul_f32 {pr(S_+2*h)}, {pr(S_+2*h)}, {pr(O+2*h)}")
            for h in range(2): a(f"v_pk_add_f32 {pr(E+2*h)}, {pr(E+2*h)}, 1.0 op_sel_hi:[1,0]")
            for r in range(4): a(f"v_rcp_f32 v{E+r}, v{E+r}")
            a("s_nop 0")
            for h in range(2): a(f"v_pk_fma_f32 {pr(S_+2*h)}, {pr(S_+2*h)}, {pr(E+2*h)}, {pr(X_+2*h)}")
            Q = QO + 8*(ft>>1) + 4*u + 2*(ft&1)
            for h in range(2): a(f"v_cvt_pk_bf16_f32 v{Q+h}, v{S_+2*h}, v{S_+2*h+1}")
        if ft & 1:
            a("s_nop 1")
            for u in range(2):
                Q = QO + 8*(ft>>1) + 4*u
                a(f"v_permlane16_swap_b32 v{Q}, v{Q+2}\nv_permlane16_swap_b32 v{Q+1}, v{Q+3}")
            for u in range(2):
                Q = QO + 8*(ft>>1) + 4*u
                a(f"buffer_store_dwordx4 v[{Q}:{Q+3}], v{19+u}, s[16:19], 0 offen offset:{64*(ft>>1)} {OSC}")
    if STAMP:
        a("s_waitcnt vmcnt(0)")
        stamp()
        a(f"""
        s_waitcnt lgkmcnt(0)
        s_cmp_eq_u32 s20, 0
        s_cbranch_scc0 {L('end')}
        s_add_u32 s12, s36, {WS_TS}
        s_addc_u32 s13, s37, 0
        s_mov_b32 s14, 65536
        s_lshl_b32 s41, s2, 7
        v_mov_b32 v1, 0
        """)
        a("v_mov_b32 v4, v2")
        for i in range(nst[0]):
            a(f"v_mov_b32 v2, s{66+4*i}\nv_mov_b32 v3, s{68+4*i}\nbuffer_store_dwordx2 v[2:3], v1, s[12:15], s41 offen offset:{8*i}\ns_nop 1")
        assert 69 + 4*(nst[0]-1) <= 101
        if FINE1: a("v_accvgpr_read_b32 v255, a252")
        if FINE or FINE1 or FINE2:
            a(f"s_lshl_b32 s41, s2, 8\ns_add_u32 s41, s41, 0x40000\ns_mov_b32 s14, 0x80000\nv_lshrrev_b32 v1, 2, v4\nbuffer_store_dword v255, v1, s[12:15], s41 offen")
    a(f"{L('end')}:\ns_endpgm")
    return a.text()

def check_m0(t):
    own = {"s43": "s[8:11]", "s26": "s[4:7]", "s29": "s[12:15]", "s60": "s[16:19]", "s45": "s["}
    cur = None; k = 0; prev = ""
    for ln in t.split("\n"):
        x = ln.strip()
        m = re.match(r"s_add_u32 m0, (s\d+),", x)
        if m: assert cur is None or k == 4, ("m0 rewritten early", x); cur = m.group(1); k = 0
        elif x.endswith(" lds"):
            assert own[cur] in x and f"offset:{1024*k} " in x and "m0" not in prev, (cur, k, x); k += 1
        prev = x
def add_stubs(body):
    import subprocess
    lines = body.split("\n")
    tmp = "\n".join(lines) + "\n" + "".join(f"L_k_w{i}:\n" for i in range(4))
    open("stub.s", "w").write('.amdgcn_target "amdgcn-amd-amdhsa--gfx950"\n.text\n' + KN + ":\n" + tmp)
    subprocess.run(["clang", "-x", "assembler", "-target", "amdgcn-amd-amdhsa", "-mcpu=gfx950", "-c", "stub.s", "-o", "stub.o"], check=True)
    dis = subprocess.run(["llvm-objdump", "-d", "--mcpu=gfx950", "stub.o"], capture_output=True, text=True).stdout
    ad = [(int(m.group(1), 16), len(m.group(2).split())*4) for m in re.finditer(r"// ([0-9A-F]{12}): ((?:[0-9A-F]{8} ?)+)", dis)]
    sizes = [sz for adr, sz in ad if adr >= 4096]
    i0 = lines.index("L_k_main:")
    out = lines[:i0+1]; pos = 0; k = 0; n = 0; nxt = 4096
    for ln in lines[i0+1:]:
        x = ln.split(";")[0].strip()
        if x and not x.endswith(":"):
            if pos >= nxt:
                out += [f"L_k_w{n}:", f"    s_cbranch_execz @{n}"]; n += 1; pos += 4; nxt += 4096
            pos += sizes[k]; k += 1
        out.append(ln)
    assert k == len(sizes) and n >= 4, (k, len(sizes))
    return "\n".join(re.sub(r"@(\d+)", lambda m: f"L_k_w{int(m.group(1))+4}" if int(m.group(1))+4 < n else "L_k_wback", x) if "execz @" in x else x for x in out)
def make(fn, **kw):
    body = gen("k", **kw)
    if not kw.get('G2X') and not kw.get('CX'): check_m0(body)
    if kw.get("WARM", True): body = add_stubs(body)
    t = header([(KN, 256, 256, 163840)]) + kstart(KN) + body + rodata() + kdesc(KN, 512, 256)
    open(fn, "w").write(t)
if __name__ == "__main__":
    import sys
    B = dict(KPS=6, P0AT=(1,1,5), ROT0=5, KNT="", PYB=8, PFEND=36, KORD=[0,1,2,4,5,6,7,8,9,10,12,13,3,14,11,15])
    make("t5.s", STAMP=True, **B); make("t5_ns.s", **B)
    make("t5a.s", STAMP=True, FINE1=True, **B)
    make("t5b.s", STAMP=True, ULIN=False, **B)
    make("t5c.s", STAMP=True, DEFER=False, **B)
```

```python
from asmlib import *
from g1b import f2u, Cnt
from p0 import srd, rne_bf16, red32
import math, re
WS_STATS = 0; WS_FL = 0x80000; WS_UT = 0x100000; WS_Y4 = 0x600000; WS_HF = 0x1000000; WS_PX = 0x2800000; WS_TS = 0x3000000
FL_H = 0; FL_Y = 8192; FL_X = 12288; FL_P = 12288 + 256*128; FL_Q = FL_P + 1024; FL_N = FL_Q + 4096; FL_SIZE = FL_N + 256
OOB = 0x80000000
KN = "recurrent_scan__ssm_conv_h3__geglu_ffn__prompt_kernel"
pr = lambda b: f"v[{b}:{b+1}]"

class Gaps:
    def __init__(self, n, cap=2): self.n = n; self.cap = cap; self.g = [[] for _ in range(n)]; self.c = [0]*n; self.l = [0]*n; self.maxl = 1 if cap == 2 else 3
    def add(self, g, fn, w=1, lds=False): self.g[g].append(fn); self.c[g] += w; self.l[g] += lds
    def fits(self, g, w, lds): return self.c[g] + w <= self.cap and not (lds and (self.l[g] >= self.maxl or self.c[g] > self.l[g]))
    def place(self, fn, g0, g1, w=1, lds=False):
        for g in range(g0, g1):
            if self.fits(g, w, lds): self.add(g, fn, w, lds); return g
        return None
    def force(self, fn, g0, g1, w=1, lds=False):
        g = self.place(fn, g0, g1, w, lds)
        if g is None:
            g = min(range(g0, g1), key=lambda x: (self.c[x], x)); self.add(g, fn, w, lds)
        return g
class It:
    def __init__(self, fn, w=1, lds=False): self.fn = fn; self.w = w; self.lds = lds
    def __call__(self): return self.fn()

def gen(name, STAMP=False, SPIN=400000, SIGAT=(1,2), FINE=False, PFEVERY=5, WNT="", KNT="nt", OSC="", FINE1=False, LW=3, XS=1, ROT=2, CAP=2, MIG=True, P0AT=(3,5,7), PROST=False, G1X="", KPS=4, TRK=8, MIGN=7, ROT0=0, FINE2=False, HD=12, PHAT=24, HCHK=50, PFEND=30, PYB=8, YK=3, XSL=1, CQ=6, XST='sc1', XLD='sc1', R=20, WEV=8, HB0=9, NMX=1, L2PF=0, HNT='', W2NT='', L2AT=2, G2X='', VW=2, XAT=44, WARM=True, PAIR1=False, PAIR2=False, HSK=True, KORD=None, RSP=True, TN=8, SSP=1, XBF=True, C3=0, REMAP=True, TWO=True, PSL=4, SLOWX=True, SLOWS=False, CCAP=6, CVW=1, DPW=1, PF2=40, EPOLL=False, CX='', HC2=4, CH=4, LEAD=2, RSPAN=108, DEFER=True, VW15=1, ULIN=False, MAPV=2, CPERM=True, GTAB=0x57643120, NTX=True, PORD=1, RB0=2, WW='C', RD=0):
    a = A()
    nst = [0]
    def pstamp():
        if PROST: stamp(True)
    def stamp(p=False):
        if STAMP and nst[0] < 9 and (p or not PROST or nst[0] == 0 or nst[0] >= 6):
            i = nst[0]; nst[0] += 1
            a(f"s_memtime s[{66+4*i}:{67+4*i}]\ns_memrealtime s[{68+4*i}:{69+4*i}]")
    VM = Cnt("vmcnt", 63); LG = Cnt("lgkmcnt", 15)
    def wait(vm=None, lg=None):
        w = [x for x in (VM.need(vm) if vm else None, LG.need(lg) if lg else None) if x]
        return ("s_waitcnt " + " ".join(w)) if w else ""
    def vm(tag, txt):
        def f(): VM.issue(tag); return txt
        it = It(f, VW + txt.strip().count("\n")); it.vm = True
        return it
    def T(txt): return It(lambda: txt, 1 + txt.strip().count("\n") + ("0x" in txt and txt.strip().startswith("v_")))
    def split(txt, tag=None):
        return [vm(tag, x.replace("|", "\n")) if "buffer_" in x else T(x.replace("|", "\n")) for x in txt.strip().split("\n") if x.strip()]
    L = lambda s_: f"L_{name}_{s_}"
    f2 = [0]
    def fs(w=False):
        if not FINE2: return
        if w: a("s_waitcnt lgkmcnt(0)")
        if f2[0]: a(f"v_writelane_b32 v255, s32, {f2[0]-1}")
        a("s_memtime s[32:33]"); f2[0] += 1
    VXO = 208; VWO = 212; VXR = 216; VWR = 218; VIDX = 220; VL = 221; VL16 = 222; VT = 223
    VPS = 224; VPP = 225; VPF = 226; VQA = 228; VKA = 229; VSA = 233; VUA = 234; VWA = 235
    VWO2 = 246; VFL = 250
    Q0 = 92; K0 = 108; V0 = 130; W0 = 146; TT = 168
    a(f"""
    s_cmp_ge_u32 s2, 256
    s_cbranch_scc1 {L('end')}
    s_load_dwordx4 s[28:31], s[0:1], 0      ; q k
    s_load_dwordx4 s[32:35], s[0:1], 56
    s_load_dwordx4 s[60:63], s[0:1], 16     ; v shift_k
    s_load_dwordx4 s[44:47], s[0:1], 88
    s_load_dwordx4 s[52:55], s[0:1], 72
    s_load_dwordx4 s[56:59], s[0:1], 32
    s_branch {L('main')}
    .p2align 12
    {L('main')}:
    """)
    stamp()
    a(f"""
    v_lshrrev_b32 v1, 6, v0
    v_and_b32 v{VL}, 63, v0
    s_and_b32 s3, s2, 7
    v_readfirstlane_b32 s20, v1
    s_lshr_b32 s38, s2, 3                ; slot 0..31
    """)
    if MAPV == 1:
        a(f"""
    s_lshr_b32 s39, s3, 1
    s_mul_i32 s39, s39, 63
    s_and_b32 s40, s3, 1
    s_lshl_b32 s41, s40, 5
    s_add_u32 s39, s39, s41
    s_add_u32 s39, s39, s38              ; i
    s_add_u32 s41, s41, s38
    s_cmp_eq_u32 s41, 63
    s_cselect_b32 s64, 1, 0
    s_cselect_b32 s39, 0, s39
    s_mul_i32 s22, s39, 7282
    s_lshr_b32 s22, s22, 16              ; j
    s_mul_i32 s40, s22, 9
    s_sub_u32 s21, s39, s40              ; band
    """)
    else:
        CP = [[1,5,0,2,3,4,6], [2,6,0,1,3,4,5], [3,0,1,2,4,5,6], [0,4,1,2,3,5,6]] if CPERM else [list(range(7))]*4
        pk = [sum(c << 4*i for i, c in enumerate(p)) for p in CP]
        a(f"""
    s_and_b32 s40, s3, 1
    s_lshl_b32 s41, s40, 5
    s_add_u32 s41, s41, s38
    s_cmp_eq_u32 s41, 63
    s_cselect_b32 s64, 1, 0
    s_cselect_b32 s41, 14, s41
    s_sub_u32 s39, s41, 14
    s_mul_i32 s22, s39, 9363
    s_lshr_b32 s22, s22, 16              ; / 7
    s_mul_i32 s40, s22, 7
    s_sub_u32 s21, s39, s40
    s_lshr_b32 s39, s41, 1
    s_and_b32 s40, s41, 1
    s_add_u32 s40, s40, 7
    s_cmp_lt_u32 s41, 14
    s_cselect_b32 s22, s39, s22
    s_cselect_b32 s21, s40, s21          ; band
    s_mov_b32 s40, {pk[0]}
    s_cmp_eq_u32 s3, 2
    s_cselect_b32 s40, {pk[1]}, s40
    s_cmp_eq_u32 s3, 3
    s_cselect_b32 s40, {pk[1]}, s40
    s_cmp_ge_u32 s3, 4
    s_cselect_b32 s40, {pk[2]}, s40
    s_cmp_ge_u32 s3, 6
    s_cselect_b32 s40, {pk[3]}, s40
    s_lshl_b32 s22, s22, 2
    s_lshr_b32 s22, s40, s22
    s_and_b32 s22, s22, 7
    s_lshr_b32 s39, s3, 1
    s_mul_i32 s39, s39, 7
    s_add_u32 s22, s22, s39              ; j
    """)
    a(f"""
    s_mul_i32 s65, s21, 14
    s_cmp_eq_u32 s21, 8
    s_cselect_b32 s65, 113, s65          ; s65 = first token tile
    v_lshlrev_b32 v{VL16}, 4, v{VL}
    s_getpc_b64 s[16:17]
    {L('here')}:
    s_sub_u32 s16, s16, {L('here')}-{L('main')}
    s_subb_u32 s17, s17, 0
    s_mov_b32 s18, {L('end')}-{L('main')}
    s_mov_b32 s19, 0x20000
    s_lshl_b32 s41, s38, 2
    s_add_u32 s41, s41, s20
    s_mul_i32 s41, s41, {5*128}
    v_min_u32 v10, 4, v{VL}
    v_lshlrev_b32 v10, 7, v10
    buffer_load_dword v{VFL+5}, v10, s[16:19], s41 offen
    v_lshrrev_b32 v10, 1, v{VL}
    v_mul_u32_u24 v10, 7168, v10
    v_and_b32 v11, 1, v{VL}
    v_lshl_add_u32 v10, v11, {9 if PAIR1 else 7}, v10
    v_cmp_gt_u32 vcc, 32, v{VL}
    v_mov_b32 v11, {OOB}
    s_add_u32 s39, s21, {RB0}
    s_cmp_ge_u32 s39, 6
    s_cselect_b32 s40, 2, 0
    s_add_u32 s39, s39, s40
    s_mul_i32 s39, s39, {32*7168}
    v_cndmask_b32 v10, v11, v10, vcc
    s_lshl_b32 s40, s2, 3
    s_lshl_b32 s41, s20, 1
    s_add_u32 s40, s40, s41
    v_lshrrev_b32 v4, 5, v{VL}
    v_add_u32 v4, s40, v4
    v_and_b32 v5, 31, v{VL}
    v_lshlrev_b32 v6, 4, v5
    v_lshl_add_u32 v{VQA}, v4, 11, v6
    v_lshrrev_b32 v0, 3, v{VL}
    v_lshlrev_b32 v0, 11, v0
    v_and_b32 v1, 7, v{VL}
    v_lshrrev_b32 v2, 4, v{VL}
    v_xor_b32 v3, v1, v2
    v_lshl_add_u32 v{VXO}, v3, 4, v0
    v_xor_b32 v3, 4, v3
    v_lshl_add_u32 v{VXO+1}, v3, 4, v0
    v_add_u32 v{VXO+1}, {16384-1024}, v{VXO+1}
    v_add_u32 v{VXO+2}, {2*(16384-1024)}, v{VXO}
    v_add_u32 v{VXO+3}, {2*(16384-1024)}, v{VXO+1}
    s_waitcnt lgkmcnt(0)
    ; SRD W
    s_cmp_lt_u32 s20, 2
    s_cselect_b32 s8, s32, s34
    s_cselect_b32 s9, s33, s35
    {"s_and_b32 s42, s22, 3|s_lshl_b32 s41, s22, 8|s_lshl_b32 s42, s42, 7|s_sub_u32 s41, s41, s42".replace("|", chr(10)) if PAIR1 else "s_lshl_b32 s41, s22, 8"}
    s_and_b32 s42, s20, 1
    s_mul_i32 s42, s42, {16*7168}
    s_add_u32 s41, s41, s42
    s_add_u32 s8, s8, s41
    s_addc_u32 s9, s9, 0
    s_sub_u32 s10, {1024*7168}, s41
    s_mov_b32 s11, 0x20000
    s_cmp_eq_u32 s64, 1
    s_cselect_b32 s10, 0, s10
    s_cmp_lt_u32 s21, {ROT0}
    s_cselect_b32 s40, s39, {OOB//2}
    """)
    VM.issue(("C",))
    def early():
        VM.issue(("R",)); a(f"buffer_load_dword v{VPF+1}, v10, s[8:11], s44x offen {WNT}".replace("s44x", "s27"))
        srd(a, 12, 28, 29, 4194304)
        for i in range(4): VM.issue(("Q",)); a(f"buffer_load_dwordx4 v[{Q0+4*i}:{Q0+3+4*i}], v{VQA}, s[12:15], 0 offen offset:{512*i}")
    a("s_mov_b32 s27, s40")
    if PORD == 0: early()
    a(f"""
    s_mov_b32 s39, {OOB//2}
    v_mov_b32 v{VPF}, v10
    s_mov_b32 s36, s46
    s_mov_b32 s37, s47
    s_lshl_b32 s40, s65, 15
    s_lshl_b32 s41, s20, 17
    s_add_u32 s40, s40, s41
    s_add_u32 s4, s28, s40
    s_addc_u32 s5, s29, 0
    s_cmp_lt_u32 s21, 7
    s_cselect_b32 s6, 0, 32768
    s_add_u32 s6, s6, {224*2048}
    s_sub_u32 s6, s6, s41
    s_mov_b32 s7, 0x20000
    s_cmp_eq_u32 s64, 1
    s_cselect_b32 s6, 0, s6
    s_lshl_b32 s43, s20, 12              ; W lds wave part
    s_lshl_b32 s26, s20, 13
    s_add_u32 s26, s26, 98304            ; x lds write address (slot 0)
    s_mov_b32 s25, 0
    s_mov_b32 s23, 0
    v_mul_u32_u24 v0, 7168, v2
    v_and_b32 v1, 15, v{VL}
    v_lshlrev_b32 v3, 1, v2
    v_xor_b32 v3, v1, v3
    v_and_b32 v1, 7, v3
    v_lshl_add_u32 v0, v1, 4, v0
    v_and_b32 v3, 8, v3
    v_lshl_add_u32 v{VWO}, v3, {6 if PAIR1 else 4}, v0
    v_add_u32 v{VWO+1}, {28672-1024}, v{VWO}
    v_xor_b32 v3, 8, v3
    v_lshl_add_u32 v{VWO+2}, v3, {6 if PAIR1 else 4}, v0
    v_add_u32 v{VWO+2}, {2*(28672-1024)}, v{VWO+2}
    v_add_u32 v{VWO+3}, {28672-1024}, v{VWO+2}
    """)
    XB = 98304
    def dma_w(i, ks):
        VM.issue(("W", ks)); return f"buffer_load_dwordx4 v{VWO+i}, s[8:11], s25 offen offset:{1024*i} {WNT} lds"
    def dma_x(i, sl, half):
        VM.issue(("X", sl)); return f"buffer_load_dwordx4 v{VXO+i}, s[4:7], s23 offen offset:{1024*i} lds"
    KO = list(KORD or range(16)); assert sorted(KO) == list(range(16))
    kphys = lambda k: 2*KO[k >> 1] + (k & 1)
    def mark(it): it.isx = True; return it
    def w_items(st):
        return [it for j in range(2) for it in [T(f"s_add_u32 m0, s43, {(st % 3)*32768 + j*16384}"), T(f"s_mov_b32 s25, {(2*KO[st]+j)*32*7168}")] + [It(lambda i=i: dma_w(i, st), VW) for i in range(4)]]
    def x_items(st):
        return [it for half in range(2) for it in [T(f"s_add_u32 m0, s26, {(st % 2)*32768 + half*4096}"), T(f"s_mov_b32 s23, {KO[st]*128 + half*65536}")] + [mark(It(lambda i=i: dma_x(i, st, half), VW)) for i in range(4)]]
    xi, wi = x_items(0), w_items(0)
    for it in xi[:6] + wi[:6] + xi[6:] + wi[6:]: a(it())
    if PORD == 1: early()
    srd(a, 48, 36, 37, FL_SIZE, WS_FL)
    srd(a, 16, 30, 31, 4194304)
    a(f"""
    s_mov_b32 s30, s28
    s_mov_b32 s31, s29
    s_mov_b32 s32, s44
    s_mov_b32 s33, s45
    s_add_u32 s34, s36, {WS_UT}
    s_addc_u32 s35, s37, 0
    s_lshl_b32 s41, s20, 6
    v_add_u32 v12, s41, v{VL}
    v_lshlrev_b32 v13, 2, v12
    v_cmp_eq_u32 vcc, 0, v12
    s_lshl_b32 s41, s20, 8
    s_add_u32 s41, s41, s2
    v_cndmask_b32 v{VFL+1}, v11, v13, vcc
    s_cmp_eq_u32 s41, 249
    s_cbranch_scc0 {L('nononce')}
    s_mov_b32 s41, {FL_N}
    buffer_load_dword v10, v{VFL+1}, s[48:51], s41 offen sc1
    s_mov_b32 s42, 0x9e3779b1
    s_mov_b32 s12, s32
    s_mov_b32 s13, s33
    s_mov_b32 s14, 256
    s_waitcnt vmcnt(0)
    v_mul_lo_u32 v13, v10, s42
    v_add_u32 v13, 0x7f4a7c15, v13
    v_or_b32 v13, 1, v13
    v_xor_b32 v12, 2, v13
    v_cmp_eq_u32 vcc, v13, v10
    s_nop 1
    v_cndmask_b32 v13, v13, v12, vcc
    buffer_store_dword v13, v{VFL+1}, s[12:15], 0 offen offset:128 sc1
    buffer_store_dword v13, v{VFL+1}, s[12:15], 0 offen sc1
    buffer_store_dword v13, v{VFL+1}, s[48:51], s41 offen sc1
    s_mov_b32 s14, 4194304
    {L('nononce')}:
    s_mov_b32 s12, s60
    s_mov_b32 s13, s61                    ; s[12:15] = v
    v_lshlrev_b32 v14, 4, v4
    v_cmp_eq_u32 vcc, 0, v5
    s_lshr_b32 s40, s2, 4
    s_lshl_b32 s40, s40, 7
    v_cndmask_b32 v{VSA}, v11, v14, vcc
    s_lshl_b32 s41, s20, 5
    s_add_u32 s40, s40, s41
    s_and_b32 s42, s2, 15                 ; cb
    v_lshrrev_b32 v4, 4, v{VL}
    v_lshl_add_u32 v4, v4, 3, s40         ; s0 = base + 8*(l>>4)
    v_and_b32 v5, 15, v{VL}               ; p: 4 channels
    s_lshl_b32 s41, s42, 7
    v_lshl_add_u32 v6, v5, 3, s41
    v_lshl_add_u32 v{VKA}, v4, 11, v6
    v_subrev_u32 v{VKA+2}, {3*2048}, v{VKA}
    v_subrev_u32 v{VKA+3}, 2048, v{VKA}
    s_lshl_b32 s41, s42, 9
    v_lshl_add_u32 v{VWA}, v5, 5, s41
    s_lshl_b32 s41, s40, 11
    s_lshl_b32 s27, s42, 12
    s_add_u32 s41, s41, s27
    v_lshl_add_u32 v9, v5, 6, s41
    v_and_b32 v6, 48, v{VL}
    {"v_add_u32 v%d, s41, v%d" % (VUA, VL16) if ULIN else "v_add_u32 v%d, v6, v9" % VUA}
    v_and_b32 v6, 3, v{VL}
    v_lshlrev_b32 v6, 6, v6
    v_and_b32 v9, 60, v{VL}
    v_add_u32 v{VKA+1}, v6, v9
    ; lds read addresses
    v_and_b32 v10, 15, v{VL}              ; tok
    v_lshrrev_b32 v15, 4, v{VL}           ; g
    v_lshrrev_b32 v12, 1, v10
    v_xor_b32 v12, v12, v15
    v_lshlrev_b32 v12, 4, v12
    v_lshl_add_u32 v12, v10, 7, v12
    v_add_u32 v{VXR}, {XB}, v12
    v_xor_b32 v{VXR+1}, 64, v{VXR}
    s_mov_b32 s47, 0xffff0000
    v_bfe_u32 v12, v{VL}, 2, 2            ; e
    v_lshl_add_u32 v13, v15, 3, v12       ; row = 8g+e
    v_lshlrev_b32 v13, 8, v13
    v_and_b32 v14, 1, v15
    v_lshl_add_u32 v12, v14, 2, v12       ; sigma
    s_lshl_b32 s41, s20, 1
    v_xor_b32 v12, s41, v12
    v_lshl_add_u32 v13, v12, 5, v13
    v_and_b32 v12, 3, v{VL}
    v_lshl_add_u32 v{VWR}, v12, 3, v13
    v_xor_b32 v{VWR+1}, 32, v{VWR}
    v_add_u32 v236, 65536, v{VWR}
    v_add_u32 v237, 65536, v{VWR+1}
    ; smfmac A: ones where ((row>>1)&1) == (g>>1) ; index 0x4444 / 0xeeee by row parity
    v_bfe_u32 v12, v{VL}, 1, 1
    v_lshrrev_b32 v13, 5, v{VL}
    v_cmp_eq_u32 vcc, v12, v13
    v_mov_b32 v12, 0x3f803f80
    v_and_b32 v13, 1, v{VL}
    v_cndmask_b32 v12, 0, v12, vcc
    v_mul_u32_u24 v13, 0xaaaa, v13
    v_add_u32 v{VIDX}, 0x4444, v13
    v_accvgpr_write_b32 a248, v12
    v_accvgpr_write_b32 a249, v12
    v_accvgpr_write_b32 a250, v12
    v_accvgpr_write_b32 a251, v12
    v_mov_b32 v{VT}, 0
    s_lshl_b32 s40, s2, 2
    s_add_u32 s40, s40, {FL_P}
    s_lshl_b32 s41, s42, 8
    s_lshr_b32 s42, s2, 4
    s_lshl_b32 s27, s42, 2
    s_add_u32 s41, s41, s27
    s_add_u32 s41, s41, {FL_Q}
    v_mov_b32 v{VPS}, {OOB}
    v_writelane_b32 v{VPS}, s40, 0
    v_writelane_b32 v{VPS}, s41, 1
    s_lshl_b32 s40, s65, 3
    s_add_u32 s40, s40, {FL_P}
    v_lshl_add_u32 v{VPP}, v{VL}, 2, s40
    s_lshl_b32 s41, s42, 8
    s_add_u32 s41, s41, {FL_Q-128}
    v_lshl_add_u32 v12, v{VL}, 2, s41
    v_cmp_gt_u32 vcc, 32, v{VL}
    s_lshl_b32 s41, s20, 30
    v_or_b32 v{VPS}, s41, v{VPS}
    v_cndmask_b32 v{VPP}, v12, v{VPP}, vcc
    v_or_b32 v{VPP}, s41, v{VPP}
    """)
    for r in range(8): a(f"v_accvgpr_write_b32 a{240+r}, 0")
    p_ld = []
    for r, (reg, off) in enumerate([(2,0),(2,2048),(3,0)]):
        p_ld.append(split(f"buffer_load_dwordx2 v[{K0+2*r}:{K0+2*r+1}], v{VKA+reg}, s[16:19], 0 offen offset:{off} {KNT}", ("KV",)))
    for r in range(8):
        pre_ = f"s_mov_b32 s28, {4096*(r>>1)}\n"
        p_ld.append(split((pre_ if r % 2 == 0 else "") + f"buffer_load_dwordx2 v[{K0+6+2*r}:{K0+7+2*r}], v{VKA}, s[16:19], s28 offen offset:{2048*(r&1)} {KNT}", ("KV",)))
        p_ld.append(split(f"buffer_load_dwordx2 v[{V0+2*r}:{V0+2*r+1}], v{VKA}, s[12:15], s28 offen offset:{2048*(r&1)} {KNT}", ("KV",)))
    for i in range(2):
        pre_ = "s_mov_b32 s12, s62\ns_mov_b32 s13, s63\ns_mov_b32 s14, 8192\n" if i == 0 else ""
        p_ld.append(split(pre_ + f"buffer_load_dwordx4 v[{W0+4*i}:{W0+4*i+3}], v{VWA}, s[12:15], 0 offen offset:{16*i}", ("KV",)))
    def red(r, t):
        o = []
        for ctl in ("quad_perm:[1,0,3,2]", "quad_perm:[2,3,0,1]", "row_half_mirror", "row_mirror"):
            o.append(f"s_nop 1\nv_add_f32_dpp v{r}, v{r}, v{r} {ctl} row_mask:0xf bank_mask:0xf")
        o += [f"v_mov_b32 v{t}, v{r}", f"s_nop 1\nv_permlane16_swap_b32 v{r}, v{t}", f"s_nop 1\nv_add_f32 v{r}, v{r}, v{t}"]
        return o
    rne = lambda d, s_: [f"v_cvt_pk_bf16_f32 v{d}, v{s_}, v{s_}", f"v_and_b32 v{d}, s47, v{d}"]
    M_ = TT + 32; S_ = TT + 36
    st = []
    for d in range(16): st += [f"v_lshlrev_b32 v{TT+2*d}, 16, v{Q0+d}", f"v_and_b32 v{TT+2*d+1}, s47, v{Q0+d}"]
    st += [f"v_add_f32 v{M_}, v{TT}, v{TT+1}", f"v_add_f32 v{M_+1}, v{TT+2}, v{TT+3}"]
    for d in range(4, 32): st.append(f"v_add_f32 v{M_+(d&1)}, v{M_+(d&1)}, v{TT+d}")
    st += [f"v_add_f32 v{M_}, v{M_}, v{M_+1}"] + red(M_, M_+1) + [f"v_mul_f32 v{M_}, {f2u(1/1024.)}, v{M_}"]
    for d in range(32): st.append(f"v_sub_f32 v{TT+d}, v{TT+d}, v{M_}")
    st += [f"v_mul_f32 v{S_}, v{TT}, v{TT}", f"v_mul_f32 v{S_+1}, v{TT+1}, v{TT+1}"]
    for d in range(2, 32): st.append(f"v_fmac_f32 v{S_+(d&1)}, v{TT+d}, v{TT+d}")
    st += [f"v_add_f32 v{S_}, v{S_}, v{S_+1}"] + red(S_, S_+1) + [f"v_mul_f32 v{S_}, {f2u(1/1024.)}, v{S_}"]
    st += rne(M_, M_) + rne(S_, S_) + [f"v_add_f32 v{S_}, {f2u(1e-5)}, v{S_}"] + rne(S_, S_) + [f"v_sqrt_f32 v{S_}, v{S_}\ns_nop 0"] + rne(S_, S_)
    C0 = -2*0.7978845608028654*math.log2(math.e); C1 = C0*0.044715
    st += [f"v_rcp_f32 v{TT}, v{S_}", f"v_mul_f32 v{M_+3}, v{S_}, v{S_}", f"v_mul_f32 v{M_+1}, {f2u(C0)}, v{TT}", f"v_mul_f32 v{TT+1}, v{TT}, v{TT}",
           f"v_mul_f32 v{TT}, {f2u(C1)}, v{TT}", f"v_mul_f32 v{M_+2}, v{TT}, v{TT+1}"]
    p_st = [It(lambda: wait(vm=[("Q",)]))] + [T(x) for x in st]
    p_kv = [It(lambda: wait(vm=[("KV",)])),
            ] + split(f"s_mov_b32 s12, s36\ns_mov_b32 s13, s37\ns_mov_b32 s14, 32768\nbuffer_store_dwordx4 v[{M_}:{M_+3}], v{VSA}, s[12:15], 0 offen sc1\ns_mov_b32 s16, s34\ns_mov_b32 s17, s35", ("PS",))
    KX = 154; WX = 176; VX = 184; RX = 192
    for c in range(2):
        o = []
        for e in range(2):
            for h in range(2): o += [f"v_lshlrev_b32 v{WX+4*e+2*h}, 16, v{W0+4*c+2*e+h}", f"v_and_b32 v{WX+4*e+2*h+1}, s47, v{W0+4*c+2*e+h}"]
        for r in range(11): o += [f"v_lshlrev_b32 v{KX+2*r}, 16, v{K0+2*r+c}", f"v_and_b32 v{KX+2*r+1}, s47, v{K0+2*r+c}"]
        for hf_ in range(2):
            for t in range(4): o += [f"v_lshlrev_b32 v{VX+2*t}, 16, v{V0+2*(4*hf_+t)+c}", f"v_and_b32 v{VX+2*t+1}, s47, v{V0+2*(4*hf_+t)+c}"]
            for t in range(4):
                for e in range(2): o.append(f"v_mul_f32 v{RX+2*t+e}, v{KX+2*(4*hf_+t)+e}, v{WX+4*e+3}")
            for j in (2, 1, 0):
                for t in range(4):
                    for e in range(2): o.append(f"v_fmac_f32 v{RX+2*t+e}, v{KX+2*(4*hf_+t+3-j)+e}, v{WX+4*e+j}")
            for t in range(4):
                for e in range(2): o.append(f"v_mul_f32 v{RX+2*t+e}, v{RX+2*t+e}, v{VX+2*t+e}")
            for e in range(2):
                ch = 2*c + e
                o += [f"v_cvt_pk_bf16_f32 v{Q0+4*ch+2*hf_}, v{RX+e}, v{RX+2+e}", f"v_cvt_pk_bf16_f32 v{Q0+4*ch+2*hf_+1}, v{RX+4+e}, v{RX+6+e}"]
        p_kv += [T(x) for x in o]
        if ULIN:
            def bp(r):
                def f(): LG.issue(("bp",)); return f"ds_bpermute_b32 v{r}, v{VKA+1}, v{r}"
                return It(f, 1, True)
            p_kv += [bp(Q0 + 8*c + r) for r in range(8)] + [It(lambda: wait(lg=[("bp",)]))]
            p_kv[-1].skip = 8
        for e in range(2):
            ch = 2*c + e
            p_kv += [vm(("PS",), f"buffer_store_dwordx4 v[{Q0+4*ch}:{Q0+4*ch+3}], v{VUA}, s[16:19], 0 offen offset:{1024*ch} sc1")]
            p_kv[-1].st = True
    p_kv += split(f"s_mov_b32 s12, s32\ns_mov_b32 s13, s33\ns_mov_b32 s14, 256\nbuffer_load_dword v{VFL+2}, v{VT}, s[12:15], 0 offen", ("N",))
    def nonce_chk(lb):
        return f"""
        s_mov_b32 s41, 0
        {L(lb)}:
        v_readfirstlane_b32 s44, v{VFL+2}
        s_add_u32 s41, s41, 1
        s_nop 3
        s_cmp_lg_u32 s44, 0
        s_cbranch_scc1 {L(lb)}_ok
        s_cmp_gt_u32 s41, {SPIN}
        s_cbranch_scc1 {L(lb)}_ok
        s_sleep 2
        buffer_load_dword v{VFL+2}, v{VT}, s[12:15], 0 offen offset:128 sc1
        s_waitcnt vmcnt(0)
        s_branch {L(lb)}
        {L(lb)}_ok:
        """
    where = {u: ("a", 16*u) for u in range(15)}
    NW = 7; ORD = list(range(12)) + [14, 12, 13]
    def acc(u, f): k, b = where[u]; return f"{k}[{b+4*f}:{b+4*f+3}]"
    SWA = 13 if MIGN == 12 else 99
    def xf(st, p, kk): b = 8*((15*st + p) % NW) + 4*kk; return f"{'av'[st < SWA]}[{b}:{b+3}]"
    def wf(st, kk, f, h=None, w=4):
        b = (60 if st < SWA else 64) + 16*kk + 4*f; k = 'av'[st < SWA]
        return f"{k}[{b}:{b+w-1}]" if h is None else f"{k}[{b+2*h}:{b+2*h+1}]"
    def rd_w(st, kk, f, h):
        LG.issue(("w", st, f)); sl = st % 3
        return f"ds_read_b64_tr_b16 {wf(st,kk,f,h)}, v{(236 if sl == 2 else VWR)+(f&1)} offset:{(sl & 1)*32768 + kk*16384 + (f>>1)*8192 + h*1024}"
    def rd_x(st, p, kk):
        LG.issue(("x", st, p)); return f"ds_read_b128 {xf(st,p,kk)}, v{VXR+kk} offset:{2048*ORD[p] + (st % 2)*32768}"
    if WARM:
        a(wait(vm=[(WW,)] if WW != "X" else [("X", 0)]))
        a(f"""
        s_mov_b64 exec, 0
        s_cmp_eq_u32 s20, 0
        s_cbranch_scc1 {L('w')}0
        s_cmp_eq_u32 s20, 1
        s_cbranch_scc1 {L('w')}1
        s_cmp_eq_u32 s20, 2
        s_cbranch_scc1 {L('w')}2
        s_branch {L('w')}3
        {L('wback')}:
        s_mov_b64 exec, -1
        """)
    a(wait(vm=[("W", 0), ("X", 0)]) + "\ns_barrier")
    stamp()
    for f in range(4):
        for kk in range(2): a(rd_w(0, kk, f, 0)); a(rd_w(0, kk, f, 1))
    for p in range(NW): a(rd_x(0, p, 0)); a(rd_x(0, p, 1))
    a("s_waitcnt lgkmcnt(0)"); LG.drain()
    lbl = [0]; over = [0]
    pend = [(2 + (i*34)//24, it) for i, it in enumerate(x_items(1) + w_items(1))]
    def stage(st, extra=(), stream=None, mig=()):
        first = st == 0; last = st == 15
        seq = []
        for f in range(4): seq += [("m", 0, f, 0), ("m", 0, f, 1), ("m", 1, f, 1), ("m", 1, f, 0)]
        for p in range(2, 13):
            for i, f in enumerate(range(4) if p % 2 == 0 else range(3, -1, -1)): seq += [("m", p, f, i & 1), ("m", p, f, 1 - (i & 1))]
        for f in range(4): seq += [("m", 13, f, 0), ("m", 13, f, 1), ("m", 14, f, 1), ("m", 14, f, 0)]
        for pos, kk, f in (((84, 1, 2), (60, 1, 0), (44, 0, 2), (28, 0, 0)) if not last else ((22, 1, 2), (20, 1, 0), (18, 0, 2), (16, 0, 0))): seq.insert(pos, ("s", kk, f))
        mpos = [i for i, e in enumerate(seq) if e[0] == "m"]
        G = lambda m: mpos[m]
        NGp = len(seq); gp = Gaps(NGp)
        endp = {p: max(i for i, e in enumerate(seq) if e[0] == "m" and e[1] == p) for p in range(15)}
        begp = {p: min(i for i, e in enumerate(seq) if e[0] == "m" and e[1] == p) for p in range(15)}
        SK0, SK1 = begp[12], endp[12]
        for g in range(SK0, SK1): gp.c[g] = 9
        gp.add(SK0-2, lambda: "s_cmp_lt_u32 s21, 7", 2); gp.c[SK0-1] = 9
        BG = endp[7] + 6
        for g, fn in extra:
            if g < 0: gp.add(BG, fn)
        def dobar():
            LG.drain()
            assert last or (VM.ops.count(("W", st+1)) == 8 and VM.ops.count(("X", st+1)) == 8), st
            w = VM.need([("W", st+1), ("X", st+1)])
            fine = ((f"\nv_writelane_b32 v239, s62, {st-1}" if st > 5 else "") + "\ns_memtime s[62:63]") if FINE1 and st >= 5 else ""
            if FINE1 and last: fine += "\ns_nop 0\nv_accvgpr_write_b32 a252, v239"
            return f"s_waitcnt {w+' ' if w else ''}lgkmcnt(0)\ns_barrier" + fine
        gp.add(BG, dobar, 2)
        waits = [G(4), G(8), G(12)] + [begp[p] for p in range(2, 14, 2)]
        for g in waits:
            if gp.c[g-1] < 9: gp.c[g-1] += 1
        gp.c[NGp-1] += 1
        rq = []
        if not first: rq += [(0, It(lambda kk=kk, h=h: rd_w(st, kk, 3, h), 1, True)) for kk in range(2) for h in range(2)] + [(0, It(lambda p=p, kk=kk: rd_x(st, p, kk), 1, True)) for p in (5, 6) for kk in range(2)]
        for p in range(13):
            p2 = p + NW
            if p2 < 15: rq += [(max(endp[p], endp[1]), It(lambda p2=p2, kk=kk: rd_x(st, p2, kk), 1, True)) for kk in range(2)]
            elif not last: rq += [(max(endp[p], BG+1), It(lambda p2=p2, kk=kk: rd_x(st+1, p2-15, kk), 1, True)) for kk in range(2)]
        if not last:
            for f in range(3): rq += [(begp[13] + 4*f + 3, It(lambda kk=kk, h=h, f=f: rd_w(st+1, kk, f, h), 1, True)) for kk in range(2) for h in range(2)]
        g = 0
        for g0, it in rq:
            g = gp.place(it, max(g, g0), NGp, 1, True)
            assert g is not None and (g0 > BG or g < BG - 2)
        def ordered(its, starts, g1=NGp):
            g = 0
            for it, st_ in zip(its, starts): g = gp.force(it, min(max(g, st_), g1-1), g1, it.w, it.lds)
            return g
        its = [it for g, it in pend]; sts = [g for g, it in pend]; pend.clear()
        nxt = (x_items(st+2) if st + 2 < 16 else []) + (w_items(2) if first else []) + (w_items(st+3) if st + 3 < 16 else [])
        nv = 0; isv = lambda it: it.fn.__name__ == '<lambda>' and it.fn.__defaults__ is not None; tot = sum(1 for it in nxt if isv(it))
        for it in nxt:
            g = BG + 1 + (nv*RSPAN)//max(tot, 16)
            if SK0 - 3 <= g <= SK1: g = SK1
            if g < NGp - 1 and not pend: its.append(it); sts.append(g)
            else: pend.append((max(0, g - NGp), it))
            nv += isv(it)
        xlast = [0]
        g = 0
        for it, st_ in zip(its, sts):
            g = gp.force(it, min(max(g, st_), NGp-1), NGp, it.w, it.lds)
            if getattr(it, "isx", False) and g < BG: xlast[0] = g
        ex = sorted([(g, i, fn) for i, (g, fn) in enumerate(extra) if g >= 0], key=lambda x: x[:2])
        if last:
            for g, i, fn in ex:
                if getattr(fn, 'vm', False): fn.w = VW15
        ordered([fn for g, i, fn in ex], [(BG + 1 + g - 1000 if g >= 1000 else g) for g, i, fn in ex])
        for u, dst in mig:
            src = where[u][1]; p = ORD.index(u)
            ordered([T(f"v_accvgpr_read_b32 v{dst+r}, a{src+r}") for r in range(16)], [max(endp[p], endp[1]) + 9]*16, NGp - 4)
        g = xlast[0] + 1
        while defer:
            g = gp.place(defer[0], g, BG, 2)
            if g is None: break
            defer.pop(0); g += 6
        g = 0
        while stream:
            it = stream[0]
            if DEFER and getattr(it, "st", False) and not (xlast[0] < g < BG - 4): defer.append(stream.pop(0)); continue
            g = gp.place(it, g + getattr(it, 'skip', 0), NGp, min(it.w, 2), it.lds)
            if g is None: break
            stream.pop(0)
        over[0] += sum(max(0, c - 2) for c in gp.c if c < 9); ovs.append(sum(max(0, c - 2) for c in gp.c if c < 9))
        for i, e in enumerate(seq):
            if e[0] == "s":
                a(f"v_smfmac_f32_16x16x64_bf16 a[{240+2*e[2]}:{243+2*e[2]}], a[248:251], {wf(st,e[1],e[2],w=8)}, v{VIDX}")
            else:
                _, p, f, kk = e; u = ORD[p]
                if i == 0: a(wait(lg=[("x", st, 0), ("x", st, 1), ("w", st, 0)]))
                elif i in waits[:3]: a(wait(lg=[("w", st, f)]))
                elif i in waits: a(wait(lg=[("x", st, p2) for p2 in range(p, min(15, p + (2 if p < 12 else 3)))]))
                if i == SK0:
                    lbl[0] += 1
                    a(f"s_cbranch_scc1 {L('sk')}{lbl[0]}")
                c = "0" if first and (u, f) not in begun else acc(u, f)
                begun.add((u, f))
                a(f"v_mfma_f32_16x16x32_bf16 {acc(u,f)}, {wf(st,kk,f)}, {xf(st,p,kk)}, {c}")
                if i == SK1: a(f"{L('sk')}{lbl[0]}:")
            for fn in gp.g[i]: a(fn())
        for u, dst in mig: where[u] = ("v", dst)
    begun = set(); ovs = []; defer = []
    def spin(lb, reg, lanes, soff, mask, tmp="s24", sleep=4):
        lo, hi = mask & 0xffffffff, mask >> 32
        return f"""
        s_cmp_eq_u32 s20, 0
        s_cbranch_scc0 {L(lb)}_ok
        s_mov_b32 {tmp}, 0
        {L(lb)}:
        v_cmp_eq_u32 vcc, s44, v{reg}
        s_add_u32 {tmp}, {tmp}, 1
        s_nop 3
        s_andn2_b32 vcc_lo, {lo}, vcc_lo
        s_andn2_b32 vcc_hi, {hi}, vcc_hi
        s_cmp_eq_u64 vcc, 0
        s_cbranch_scc1 {L(lb)}_ok
        s_cmp_gt_u32 {tmp}, {SPIN}
        s_cbranch_scc1 {L(lb)}_ok
        s_sleep {sleep}
        buffer_load_dword v{reg}, v{lanes}, s[48:51], {soff} offen sc1
        s_waitcnt vmcnt(0)
        s_branch {L(lb)}
        {L(lb)}_ok:
        """
    PMASK = 0x0000ffff3fffffff
    CVB = 114688; HB = 448; UB = HB + 4096 + 64; WSZ = 8704; STB = 98304
    st_setup = f"""
        s_mov_b32 s12, s36
        s_mov_b32 s13, s37
        s_lshl_b32 s40, s65, 8
        s_add_u32 s14, s40, 3840
        s_lshl_b32 s29, s20, 12
        s_add_u32 m0, s29, {STB}"""
    pf_setup = f"""
        s_mov_b32 s16, s52
        s_mov_b32 s17, s53
        s_mov_b32 s18, 7340032
        s_lshl_b32 s61, s2, 2
        s_add_u32 s61, s61, s20                 ; channel d
        s_lshr_b32 s28, s22, 2
        s_mul_i32 s28, s28, 9
        s_add_u32 s28, s28, s21
        s_and_b32 s42, s22, 3
        s_lshr_b32 s41, s3, 1
        s_cmp_eq_u32 s64, 1|s_cselect_b32 s28, 63, s28|s_cselect_b32 s42, s41, s42
        s_lshl_b32 s28, s28, 2
        s_add_u32 s28, s28, s20
        s_lshl_b32 s42, s42, 2
        s_lshr_b32 s42, 0x2130, s42
        s_and_b32 s42, s42, 3
        s_lshr_b32 s41, s28, 7
        s_mul_i32 s41, s41, 384
        s_add_u32 s28, s28, s41
        s_lshl_b32 s42, s42, 7
        s_add_u32 s28, s28, s42
        s_mul_i32 s28, s28, 7168
        s_mov_b32 s45, s28
        v_min_u32 v{VFL+4}, 55, v{VL}
        v_lshlrev_b32 v{VFL+4}, 7, v{VFL+4}"""
    pf = f"buffer_load_dword v{VFL+5}, v{VFL+4}, s[16:19], s28 offen"
    pf2 = f"""
        s_mov_b32 s16, s56
        s_mov_b32 s17, s57
        s_mov_b32 s18, 4194304
        s_lshl_b32 s28, s61, 12
        v_min_u32 v{VFL+4}, 31, v{VL}
        v_lshlrev_b32 v{VFL+4}, 7, v{VFL+4}
        buffer_load_dword v{VFL+5}, v{VFL+4}, s[16:19], s28 offen"""
    cv_setup0 = f"""
        s_mov_b32 s18, 4194304
        s_mul_i32 s60, s20, {WSZ}
        s_add_u32 s60, s60, {CVB}"""
    cv_setup = f"""
        s_lshl_b32 s28, s61, 12
        s_add_u32 m0, s60, {HB}"""
    cv_h = lambda i: f"buffer_load_dwordx4 v{VL16}, s[16:19], s28 offen offset:{1024*i} lds"
    cv_setup2 = f"""
        s_mov_b32 s16, s34
        s_mov_b32 s17, s35
        s_add_u32 m0, s60, {UB}
        s_lshr_b32 s28, s2, 4
        s_lshl_b32 s28, s28, 12
        s_and_b32 s42, s2, 15
        s_lshl_b32 s42, s42, 6
        s_add_u32 s28, s28, s42
        s_lshl_b32 s42, s20, 10
        s_add_u32 s28, s28, s42
        v_lshrrev_b32 v{VFL+4}, 2, v{VL}
        v_lshlrev_b32 v{VFL+4}, 16, v{VFL+4}
        v_and_b32 v244, 48, v{VL16}
        v_add_u32 v{VFL+4}, v{VFL+4}, v244"""
    cv_u = lambda i: f"buffer_load_dwordx4 v{VFL+4}, s[16:19], s28 offen offset:{1024*i} lds\ns_add_u32 s28, s28, {16*65536-1024}"
    cv_setup3 = f"""
        s_mov_b32 s16, s58
        s_mov_b32 s17, s59
        s_mov_b32 s18, 2048
        s_lshl_b32 s28, s61, 1
        v_mov_b32 v{VFL+3}, 0"""
    cv_d = f"buffer_load_ushort v{VFL+3}, v{VFL+3}, s[16:19], s28 offen"
    zp = [f"v_mov_b32 v238, 0\nv_lshl_add_u32 v241, v{VL}, 2, s60", f"v_min_u32 v242, 47, v{VL}\nv_lshl_add_u32 v242, v242, 2, s60",
          f"v_and_b32 v243, 15, v{VL}\nv_lshl_add_u32 v243, v243, 2, s60",
          "ds_write_b32 v241, v238", "ds_write_b32 v242, v238 offset:256", f"ds_write_b32 v243, v238 offset:{UB-64}"]
    def lg(txt):
        def f(): LG.issue(("z",)); return txt
        return It(f, 1, True)
    CS = 224; P = 208; O0 = 240; TA = 92; SR = 80
    NT = 8; RB = 256; UNIT = 8192; RP = 14; NSTEP = 56
    HS_ = 3072 if HSK else 2048; VHO = 236
    ACC = 64; DU = 0; TMP = 32; VCA = 204; VCB = 205; VCU = 206; VCD = 207
    cva = f"""
    v_bfe_u32 v244, v{VL}, 4, 1
    v_lshlrev_b32 v244, 2, v244
    v_and_b32 v245, 3, v{VL}
    v_add_u32 v244, v244, v245
    v_lshrrev_b32 v246, 5, v{VL}
    v_sub_u32 v244, v244, v246
    v_lshlrev_b32 v244, 6, v244
    v_bfe_u32 v247, v{VL}, 2, 2
    v_lshlrev_b32 v{VCD}, 3, v247
    v_sub_u32 v244, v244, v{VCD}
    s_add_u32 s25, s60, {HB-328-32}
    v_add_u32 v{VCA}, s25, v244
    v_bfe_u32 v244, v{VL}, 4, 1
    v_lshlrev_b32 v244, 5, v244
    v_add_u32 v245, v245, v247
    v_lshl_add_u32 v244, v245, 3, v244
    v_lshl_add_u32 v244, v246, 6, v244
    s_add_u32 s25, s60, {UB-56}
    v_add_u32 v{VCB}, s25, v244
    v_lshl_add_u32 v{VCU}, v{VL}, 1, s60""".strip().split("\n")
    def af(s_, q, h=None): b = 32*s_ + 4*q; return f"a[{b}:{b+3}]" if h is None else f"a[{b+2*h}:{b+2*h+1}]"
    def bf(s_, p, h=None): b = 64 + 32*s_ + 4*p; return f"a[{b}:{b+3}]" if h is None else f"a[{b+2*h}:{b+2*h+1}]"
    def reads(r):
        T_ = []
        for i in range(8):
            m = 4*i - r; e = 4*i + r
            T_.append(f"ds_read_b64_tr_b16 {af(r&1,i,0)}, v{VCA} offset:{128*(m+3)+32}")
            T_.append(f"ds_read_b64_tr_b16 {af(r&1,i,1)}, v{VCA} offset:{128*(m+3)}")
            T_.append(f"ds_read_b64_tr_b16 {bf(r&1,i,0)}, v{VCB} offset:{128*e}")
            T_.append(f"ds_read_b64_tr_b16 {bf(r&1,i,1)}, v{VCB} offset:{128*e+32}")
        return T_
    eh_s = f"""
        s_add_u32 s12, s36, {WS_HF}|s_addc_u32 s13, s37, 0
        s_cmp_eq_u32 s64, 1|s_cselect_b32 s14, 0, {64*112*HS_}
        s_lshl_b32 s41, s22, 2
        s_add_u32 s41, s41, s20
        {"s_and_b32 s40, s22, 3@s_lshl_b32 s40, s40, 1@s_sub_u32 s41, s41, s40@s_lshr_b32 s40, s20, 1@s_mul_i32 s40, s40, 6@s_add_u32 s41, s41, s40".replace("@", chr(10)) if PAIR1 else ""}
        s_lshr_b32 s40, s65, 1
        s_mul_i32 s40, s40, 112
        s_add_u32 s41, s41, s40
        s_mul_i32 s41, s41, {HS_}
        s_and_b32 s40, s65, 1|s_cselect_b32 s46, {112*HS_}, 0
        s_sub_u32 s47, {112*HS_}, s46
        s_sub_u32 s41, s41, s47
        s_add_u32 s29, s29, {STB}""".strip().split("\n")
    hoff = [f"v_cmp_lt_u32 vcc, 23, v{VL}", f"v_mov_b32 v{VHO}, v{VL16}", f"v_add_u32 v{VHO+1}, {128 if HSK else 0}, v{VL16}", f"v_cndmask_b32 v{VHO}, v{VHO}, v{VHO+1}, vcc",
            f"v_cmp_lt_u32 vcc, 15, v{VL}", f"v_add_u32 v{VHO+1}, {1152 if HSK else 1024}, v{VL16}", f"v_add_u32 v241, {1280 if HSK else 1024}, v{VL16}", f"v_cndmask_b32 v{VHO+1}, v{VHO+1}, v241, vcc"]
    eh_v = [f"v_and_b32 v240, 48, v{VL}", "v_lshrrev_b32 v241, 2, v240", "v_add_lshl_u32 v240, v240, v241, 2",
            f"v_and_b32 v{VT}, 15, v{VL}", f"v_lshl_add_u32 v{VT}, v{VT}, 4, s29",
            "s_cmp_eq_u32 s40, 0|s_cselect_b64 vcc, -1, 0", f"v_cndmask_b32 v218, v{VHO+1}, v{VHO}, vcc", f"v_cndmask_b32 v219, v{VHO}, v{VHO+1}, vcc"]
    eh_c = [f"v_accvgpr_read_b32 v{208+r}, a{240+r}" for r in range(8)] + [f"v_add_f32 v{208+2*f}, v{208+2*f}, v{209+2*f}" for f in range(4)]
    eh_p = [f"ds_bpermute_b32 v{CS+4*f+r}, v240, v{208+2*f} offset:{4*r}" for f in range(4) for r in range(4)]
    NL, NS_, NK_ = P0AT
    stream = []; sig_at = None
    migs = {}
    if MIG: migs = {11: [(0, 92), (4, 156)], 12: [(1, 108), (5, 172)], 13: [(2, 124), (6, 188)], 14: [(3, 140)]}
    if MIG and MIGN == 12: migs = {10: [(0, 92), (1, 108), (2, 124)], 11: [(3, 140), (4, 156), (5, 172)], 12: [(6, 188)], 13: [(7, 0), (8, 16)], 14: [(9, 32), (10, 48)], 15: [(11, 64)]}
    at = lambda g, its: [(g, it) for it in its]
    AB = 1000
    for n in range(16):
        ex = []
        NLS = -(-21 // KPS)
        if NL <= n < NL + NLS:
            its = p_ld[KPS*(n-NL):KPS*(n-NL)+KPS]
            for i, it in enumerate(its): ex += at(8 + (i*108)//KPS, it)
        if n == NS_: stream += p_st
        if n == max(NK_, NL + NLS): stream += p_kv
        if sig_at is None and n > NK_ and not stream and not defer and ("N",) in VM.ops: sig_at = n
        if n == sig_at:
            ex += [(-1, lambda: wait(vm=[("PS",), ("N",)])), (AB, It(lambda: nonce_chk("nc"), 2)), (AB+4, vm(("F",), f"buffer_store_dword v{VFL+2}, v{VPS}, s[48:51], 0 offen sc1"))]
            assert n <= (10 if MIGN == 7 else 9), n
        nw = 56 // TRK; ns = 32 // TRK; t0 = 29 - nw - ns
        assert sig_at is None or 2*sig_at <= t0 + 1 or n < sig_at, (sig_at, t0)
        slow = f"\ns_and_b32 s42, s22, 3\ns_cmp_eq_u32 s42, 1|s_cselect_b32 s18, 0, s18" if SLOWX else ""
        for hs in (2*n, 2*n+1):
            g0 = 62*(hs & 1)
            if hs == t0: ex += at(g0 + 10, split(pf_setup.replace("55", str(TRK-1)) + slow))
            if hs == t0 + nw: ex += at(g0 + 30, split("s_mov_b32 s16, s56\ns_mov_b32 s17, s57\ns_mov_b32 s18, 4194304\ns_lshl_b32 s28, s61, 12" + (slow if SLOWS else "")))
            if t0 <= hs < t0 + nw + ns: ex += at(g0 + 46, split(pf + f"\ns_add_u32 s28, s28, {128*TRK}", ("PF",)))
        if RD and n + RD < 16:
            for j in range(2):
                u_ = 2*(n + RD) + j
                if u_ >= 2 + ROT0: ex += at(24 + 62*j, split(f"s_cmp_eq_u32 s21, {(u_ - 2) % 9}|s_cselect_b32 s27, {(2*KO[n+RD]+j)*32*7168}, s39\nbuffer_load_dword v{VPF+1}, v{VPF}, s[8:11], s27 offen {WNT}", ("R",)))
        if n == 12: ex += [(20, vm(("PC",), f"buffer_load_dword v{VT}, v{VPP}, s[48:51], 0 offen sc1"))]
        if n == 13: ex += [(-1, lambda: wait(vm=[("PC",)]) + "\n" + spin("pc", VT, VPP, "0", PMASK, tmp="s41"))]
        if n == 14: ex += at(AB, split(st_setup)) + [(AB+6+5*i, vm(("ST",), f"buffer_load_dwordx4 v{VL16}, s[12:15], s40 offen offset:{1024*i} lds")) for i in range(4)]
        if n == 15:
            ex += at(6, split("\n".join(hoff + eh_s + eh_v))) + at(34, split("\n".join(eh_c))) + at(44, split(cv_setup0 + "\n" + "\n".join(cva + zp[:3])))
            ex += at(AB, split(cv_setup)) + [(AB, vm(("CV",), cv_h(i))) for i in range(4)] + at(AB, [lg(x) for x in zp[3:]]) + at(AB, split(cv_setup2))
            for i in range(4): ex += at(AB, split(cv_u(i), ("CV",)))
            ex += at(AB, split(cv_setup3 + "\n" + cv_d, ("CV",))) + at(AB, [lg(x) for x in eh_p])
        stage(n, extra=ex, stream=stream, mig=migs.get(n, ()))
    print("gemm1: sig_at", sig_at, "over", ovs)
    assert not stream and sig_at
    stamp()
    a(wait(vm=[("ST",)]))
    a(f"ds_read_b128 v[{SR}:{SR+3}], v{VT}")
    LG.drain()
    fs(True)
    def epi(u):
        O = O0 + 4*(u & 1); MS = SR + 4*(u & 1)
        if where[u][0] == "v": B = where[u][1]
        else:
            B = TA
            for r in range(16): a(f"v_accvgpr_read_b32 v{B+r}, a{where[u][1]+r}")
        a("s_waitcnt lgkmcnt(0)")
        if u < 14: fs()
        if u < 14: a(f"ds_read_b128 v[{SR+4*((u+1)&1)}:{SR+3+4*((u+1)&1)}], v{VT} offset:{256*(u+1)}")
        if RSP and 9 <= u < 13:
            a(wait(vm=[("CV",)]))
            for x in reads(0)[8*(u-9):8*(u-8)]: a(x)
        G = [B+2*p for p in range(4)]; U = [B+8+2*p for p in range(4)]
        for p in range(8): a(f"v_pk_fma_f32 {pr(B+2*p)}, {pr(CS+2*p)}, {pr(MS)}, {pr(B+2*p)} op_sel_hi:[1,0,1] neg_lo:[0,1,0] neg_hi:[0,1,0]")
        for p in range(4): a(f"v_pk_mul_f32 {pr(P+2*p)}, {pr(G[p])}, {pr(G[p])}")
        for p in range(4): a(f"v_pk_fma_f32 {pr(P+2*p)}, {pr(P+2*p)}, {pr(MS+2)}, {pr(MS)} op_sel:[0,0,1] op_sel_hi:[1,0,1]")
        for p in range(4): a(f"v_pk_mul_f32 {pr(P+2*p)}, {pr(P+2*p)}, {pr(G[p])}")
        for r in range(8): a(f"v_exp_f32 v{P+r}, v{P+r}")
        for p in range(4): a(f"v_pk_mul_f32 {pr(G[p])}, {pr(G[p])}, {pr(U[p])}")
        for p in range(4): a(f"v_pk_fma_f32 {pr(P+2*p)}, {pr(P+2*p)}, {pr(MS+2)}, {pr(MS+2)} op_sel:[0,1,1] op_sel_hi:[1,1,1]")
        for r in range(8): a(f"v_rcp_f32 v{P+r}, v{P+r}")
        a(f"s_add_u32 s41, s41, {'s46' if u & 1 else 's47'}")
        for p in range(4): a(f"v_pk_mul_f32 {pr(G[p])}, {pr(G[p])}, {pr(P+2*p)}")
        for p in range(4): a(f"v_cvt_pk_bf16_f32 v{O+p}, v{G[p]}, v{G[p]+1}")
        a(f"buffer_store_dwordx4 v[{O}:{O+3}], v{218+(u&1)}, s[12:15], s41 offen sc1")
    assert where[0] == ("v", TA) or not MIG
    for u in range(14):
        if u == 13:
            assert MIG
            if not RSP:
                a(wait(vm=[("CV",)]))
                for x in reads(0): a(x)
        if L2PF and u == L2AT - 1:
            a(f"""
            s_mov_b32 s16, s52
            s_mov_b32 s17, s53
            s_mov_b32 s18, 7340032
            s_lshl_b32 s24, s38, 2
            s_add_u32 s24, s24, s20
            s_lshr_b32 s25, s24, 6
            s_and_b32 s24, s24, 63
            s_mul_i32 s25, s25, 1792
            s_mul_i32 s24, s24, 7
            s_add_u32 s24, s24, s25
            s_add_u32 s24, s24, 448
            s_lshl_b32 s24, s24, 11
            s_and_b32 s25, s3, 1
            s_lshl_b32 s25, s25, 10
            s_add_u32 s24, s24, s25
            v_min_u32 v{VFL+4}, 55, v{VL}
            v_lshrrev_b32 v{VFL+5}, 3, v{VFL+4}
            v_and_b32 v{VFL+4}, 7, v{VFL+4}
            v_lshlrev_b32 v{VFL+4}, 7, v{VFL+4}
            v_lshl_add_u32 v{VFL+4}, v{VFL+5}, 11, v{VFL+4}
            """)
        if L2PF and u >= L2AT and (u - L2AT) % 3 == 0 and (u - L2AT)//3 < L2PF:
            VM.issue(("PF",)); a(f"buffer_load_dword v{VFL+5}, v{VFL+4}, s[16:19], s24 offen\ns_add_u32 s24, s24, {448*2048}")
        epi(u); VM.issue(("HS",))
    a(f"s_cmp_lt_u32 s21, 7\ns_cbranch_scc1 {L('conv')}")
    epi(14)
    a(f"{L('conv')}:")
    fs(True)
    stamp()
    VWR2 = 196; T0_ = 36
    RHO = [31, 27, 22, 18, 13, 8, 8, 4] if REMAP else [0]*8
    OLDMAP = """s_cmp_lt_u32 s3, 4|s_cselect_b32 s39, s24, s25
    s_and_b32 s41, s3, 3
    s_lshl_b32 s41, s41, 3
    s_lshr_b32 s39, s39, s41
    s_add_u32 s38, s38, s39
    s_and_b32 s38, s38, 31"""
    NEWMAP = f"""s_lshr_b32 s39, s38, 2
    s_lshl_b32 s39, s39, 2
    s_lshr_b32 s39, {GTAB}, s39
    s_and_b32 s39, s39, 7
    s_lshl_b32 s39, s39, 2
    s_and_b32 s38, s38, 3
    s_add_u32 s38, s38, s39""" if REMAP else "s_nop 0"
    g2s = f"""
    {OLDMAP if MAPV == 1 else NEWMAP}
    s_lshr_b32 s61, s3, 1
    s_lshl_b32 s61, s61, 2
    s_and_b32 s39, s38, 3
    s_add_u32 s61, s61, s39              ; mt
    s_and_b32 s62, s3, 1
    s_lshl_b32 s62, s62, 2
    s_bfe_u32 s39, s38, 0x20002
    s_add_u32 s62, s62, s39              ; nt
    {'s_lshl_b32 s62, s62, 2@s_lshr_b32 s62, 0x76514320, s62@s_and_b32 s62, s62, 7'.replace('@', chr(10)) if NTX else ''}
    s_lshr_b32 s63, s38, 4               ; kh
    s_lshl_b32 s41, s20, 14
    {'s_and_b32 s39, s62, 3@s_lshl_b32 s42, s62, 8@s_lshl_b32 s39, s39, 7@s_sub_u32 s42, s42, s39'.replace('@', chr(10)) if PAIR2 else 's_lshl_b32 s42, s62, 8'}
    s_lshr_b32 s35, s42, 1
    s_add_u32 s41, s41, s42
    s_mul_i32 s43, s63, {NSTEP*32*2048}
    s_add_u32 s43, s43, s41
    s_add_u32 s8, s52, s43|s_addc_u32 s9, s53, 0
    s_sub_u32 s10, {NSTEP*32*2048}, s41
    s_lshl_b32 s45, s20, 12""".strip().replace("|", "@").split("\n")
    g2s = [x for x in g2s if x.strip()]
    g2s = [f"s_mov_b32 s24, {sum(r << 8*i for i, r in enumerate(RHO[:4]))}", f"s_mov_b32 s25, {sum(r << 8*i for i, r in enumerate(RHO[4:]))}"] + [x.replace("@", "\n") for x in g2s]
    g2h = f"""
    s_lshl_b32 s40, s61, 2
    s_add_u32 s40, s40, s20              ; tokgroup
    s_mul_i32 s41, s40, 112
    s_mul_i32 s42, s63, {NSTEP}
    s_add_u32 s41, s41, s42
    s_mul_i32 s41, s41, {HS_}
    s_add_u32 s41, s41, {WS_HF}
    s_add_u32 s4, s36, s41|s_addc_u32 s5, s37, 0
    s_mov_b32 s6, {NSTEP*HS_}""".strip().split("\n")
    g2h = [x.replace("|", "\n") for x in g2h] + [x.replace(f"v{VHO+1}", "v233").replace(f"v{VHO}", "v232").replace("v241", f"v{T0_}") for x in hoff]
    def dma2(n):
        p = n >> 1
        head = [T(f"s_add_u32 m0, s45, {(p % (R//2))*2*UNIT}"), T(f"s_mov_b32 s26, {p*131072}")] if n % 2 == 0 else []
        return head + [vm(("W2", n), f"buffer_load_dwordx4 v{VWO2+i}, s[8:11], s26 offen offset:{1024*i} {W2NT} lds") for i in (2*(n&1), 2*(n&1)+1)]
    du = [f"ds_read_u16 v{DU+g}, v{VCU} offset:{UB+128*g}" for g in range(32)]
    du2 = [f"v_lshlrev_b32 v{VCD}, 16, v{VFL+3}"]
    for g in range(32): du2 += [f"v_lshlrev_b32 v{DU+g}, 16, v{DU+g}", f"v_mul_f32 v{DU+g}, v{VCD}, v{DU+g}"]
    g2addr = [f"v_bfe_u32 v{T0_}, v{VL}, 2, 3", f"v_lshlrev_b32 v{T0_+1}, 8, v{T0_}", f"v_lshrrev_b32 v{T0_+2}, 5, v{VL}", f"v_lshl_add_u32 v{T0_+1}, v{T0_+2}, 12, v{T0_+1}",
              f"v_and_b32 v{T0_+2}, 3, v{VL}", f"v_lshl_add_u32 v{T0_+1}, v{T0_+2}, 3, v{T0_+1}",
              "s_lshl_b32 s24, s63, 2", f"v_xor_b32 v{T0_}, s24, v{T0_}", f"v_lshl_add_u32 v{VWR2}, v{T0_}, 5, v{T0_+1}"] \
             + [f"v_xor_b32 v{VWR2+ft}, {ft<<5}, v{VWR2}" for ft in range(1, 8)] + ["s_mov_b32 s24, 65536"] \
             + [f"v_add_u32 v{208+ft}, s24, v{VWR2+ft}" for ft in range(8)] + [f"v_add_u32 v{224+ft}, s24, v{208+ft}" for ft in range(8)]
    g2dma = []
    for i in range(2):
        g2dma += [f"v_lshrrev_b32 v{T0_}, 4, v{VL}", f"v_add_u32 v{T0_}, {4*i}, v{T0_}", f"v_lshlrev_b32 v{T0_+1}, 1, v{T0_}", f"v_and_b32 v{T0_+2}, 15, v{VL}", f"v_xor_b32 v{T0_+2}, v{T0_+2}, v{T0_+1}",
                  f"v_and_b32 v{T0_+1}, 7, v{T0_+2}", f"v_lshlrev_b32 v{T0_+1}, 4, v{T0_+1}", f"v_and_b32 v{T0_+2}, 8, v{T0_+2}", f"v_lshl_add_u32 v{T0_+2}, v{T0_+2}, {6 if PAIR2 else 4}, v{T0_+1}",
                  f"v_lshl_add_u32 v{VWO2+i}, v{T0_}, 11, v{T0_+2}"]
    g2dma += [f"v_subrev_u32 v{VWO2+1}, 1024, v{VWO2+1}", f"v_add_u32 v{VWO2+2}, {65536-2048}, v{VWO2}", f"v_add_u32 v{VWO2+3}, {65536-2048}, v{VWO2+1}"]
    VHP = 192; VPR = 193; VYW = 194
    hp = f"""
    s_lshl_b32 s24, s61, 3
    s_mul_i32 s25, s24, 4682
    s_lshr_b32 s25, s25, 16
    s_min_u32 s25, s25, 7
    s_cmp_ge_u32 s24, 113|s_cselect_b32 s25, 8, s25
    s_add_u32 s24, s24, 7
    s_mul_i32 s27, s24, 4682
    s_lshr_b32 s27, s27, 16
    s_min_u32 s27, s27, 7
    s_cmp_ge_u32 s24, 113|s_cselect_b32 s27, 8, s27
    s_sub_u32 s27, s27, s25
    s_lshl_b32 s27, s27, 8
    s_lshl_b32 s25, s25, 8
    s_mul_i32 s24, s63, 48
    s_add_u32 s25, s25, s24
    v_and_b32 v{T0_}, 15, v{VL}
    v_lshrrev_b32 v{T0_+1}, 4, v{VL}
    v_mul_lo_u32 v{T0_+2}, v{T0_+1}, s27
    v_lshl_add_u32 v{T0_+2}, v{T0_}, 2, v{T0_+2}
    s_lshl_b32 s24, s20, 2
    v_add_u32 v{T0_+1}, s24, v{T0_+1}
    v_cmp_gt_u32 vcc, 2, v{T0_+1}
    v_mov_b32 v{T0_}, {OOB}
    s_lshl_b32 s24, s20, 6
    v_add_u32 v{T0_+1}, s24, v{VL}
    v_cndmask_b32 v{VHP}, v{T0_}, v{T0_+2}, vcc
    v_lshlrev_b32 v{T0_+2}, 2, v{T0_+1}
    v_cmp_gt_u32 vcc, 16, v{T0_+1}
    s_lshl_b32 s24, s20, 1
    s_add_u32 s24, s24, {CVB}
    v_cndmask_b32 v{VFL}, v{T0_}, v{T0_+2}, vcc
    v_lshl_add_u32 v{VYW}, v{VL}, 3, s24
    s_mov_b32 s28, 0
    s_brev_b32 s29, 1
    v_mov_b32 v{VYW+1}, 0""".strip().split("\n")
    hp = [x.replace("|", "\n") for x in hp]
    sg = ["s_lshl_b32 s34, s21, 8", "s_lshl_b32 s24, s22, 2", "s_add_u32 s34, s34, s24", "s_lshl_b32 s24, s64, 30", "s_add_u32 s34, s34, s24"]
    ACC2 = 128
    def acc2(ft, u): b = ACC2 + 4*(2*ft+u); return f"v[{b}:{b+3}]"
    def wf2(n, ft, h=None):
        b = ([0, 16, 64, 80, 32, 48, 96, 112][ft] if CH == 4 else [0, 8, 16, 24, 64, 72, 80, 88][ft]) + 4*(n % CH)
        return f"a[{b}:{b+3}]" if h is None else f"a[{b+2*h}:{b+2*h+1}]"
    AH = 128
    def hf(slot, u): b = AH + 8*slot + 4*u; return f"a[{b}:{b+3}]"
    def ld_h(n):
        return [T(f"s_mov_b32 s23, {HS_*n}")] + [vm(("H", n), f"buffer_load_dwordx4 {hf(n % HD, u)}, v{232+u}, s[4:7], s23 offen {HNT}") for u in range(2)]
    def rd_w2(n, ft, h):
        LG.issue(("w", n, ft))
        return f"ds_read_b64_tr_b16 {wf2(n, ft, h)}, v{(VWR2, 208, 224)[(n % R)//8]+ft} offset:{((n % R) % 8 >> 1)*2*UNIT + (n & 1)*2048 + h*8192}"
    Rg = lambda g, rho: ACC + 4*g + rho
    def combine(n):
        o = []
        for rho in (2, 1, 0):
            for k in range(4):
                g = 4*n + k
                prev = f"v{Rg(g-1, rho+1)}" if g else f"v{VYW+1}"
                o.append(f"v_cndmask_b32 v{TMP+k}, v{Rg(g,rho+1)}, {prev}, s[28:29]")
            for k in range(4):
                g = 4*n + k
                o.append(f"v_add_f32_dpp v{Rg(g,rho)}, v{TMP+k}, v{Rg(g,rho)} wave_ror:1 row_mask:0xf bank_mask:0xf")
        for k in range(4): o.append(f"v_add_f32 v{Rg(4*n+k,0)}, v{Rg(4*n+k,0)}, v{DU+4*n+k}")
        for k in (0, 2): o.append(f"v_cvt_pk_bf16_f32 v{DU+4*n+k}, v{Rg(4*n+k,0)}, v{Rg(4*n+k+1,0)}")
        for k in (0, 2): o += [f"ds_write_b16 v{VYW}, v{DU+4*n+k} offset:{512*(4*n+k)}", f"ds_write_b16_d16_hi v{VYW}, v{DU+4*n+k} offset:{512*(4*n+k+1)}"]
        return o
    XR = 48; YR = 24; ST = 40; T6 = 44; VXA = 216; XLB = 131072
    xa = f"""
    s_lshl_b32 s41, s40, 5
    s_lshl_b32 s43, s63, {8 if PAIR2 else 6}
    s_add_u32 s42, s35, s43              ; f0
    v_and_b32 v{VXA+2}, 15, v{VL}
    v_add_u32 v{VXA+2}, s41, v{VXA+2}    ; token
    v_lshrrev_b32 v{T0_}, 4, v{VL}
    v_lshl_add_u32 v{VXA+3}, v{T0_}, 2, s42    ; feature
    v_lshrrev_b32 v{VXA}, 3, v{VL}
    v_add_u32 v{VXA}, s41, v{VXA}
    v_lshlrev_b32 v{VXA}, 11, v{VXA}
    v_and_b32 v{VXA+1}, 7, v{VL}
    v_lshl_add_u32 v{VXA}, v{VXA+1}, 4, v{VXA}
    v_and_b32 v{VXA+1}, 15, v{VL}
    v_lshlrev_b32 v{VXA+1}, 7, v{VXA+1}
    v_lshl_add_u32 v{VXA+1}, v{T0_}, 3, v{VXA+1}
    s_add_u32 s24, s45, {XLB}
    v_add_u32 v{VXA+1}, s24, v{VXA+1}"""
    xd = f"s_mov_b32 s12, s30\ns_mov_b32 s13, s31\ns_mov_b32 s14, 4194304\ns_lshl_b32 s24, s42, 1\ns_add_u32 m0, s45, {XLB}\n"
    for i in range(4): xd += f"buffer_load_dwordx4 v{VXA}, s[12:15], s24 offen offset:{1024*i} lds\n" + (f"s_add_u32 s24, s24, {16384-1024}\n" if i < 3 else "")
    xr = [f"ds_read_b64 v[{XR+4*ft+2*u}:{XR+4*ft+2*u+1}], v{VXA+1} offset:{2048*u + 32*ft}" for ft in range(4) for u in range(2)]
    xs = f"v_lshlrev_b32 v22, 4, v{VXA+2}\ns_mov_b32 s12, s36\ns_mov_b32 s13, s37\ns_mov_b32 s14, 32768"
    for u in range(2): xs += f"\nbuffer_load_dwordx2 v[{ST+2*u}:{ST+2*u+1}], v22, s[12:15], 0 offen offset:{256*u}"
    def rdi(r):
        def mk(x, i):
            def f(): LG.issue(("c", r, i)); return x
            return It(f, 1, True)
        return [mk(x, j//4) for j, x in enumerate(reads(r))]
    pairs = [(q, n-q) for n in range(8) for q in range(n+1)]
    phases = [[(0, q, p) for q, p in pairs], [(1, q, p) for q, p in pairs], []]
    for grp in ((0, 1, 2), (3,), (4,), (5,), (6,), (7,)):
        for r in (2, 3): phases[2] += [(r, q, p) for q, p in pairs if q + p in grp]
    started = set(); cnt = 0
    pfq = [it for u_ in range(RP) for it in dma2(u_)]
    for ph, ms in enumerate(phases):
        a("s_waitcnt lgkmcnt(0)"); LG.drain()
        fs()
        NG = len(ms); gp = Gaps(NG, CCAP)
        def seqp(its, g0, g1=NG, step_=0):
            g = g0
            for i, it in enumerate(its): g = gp.force(it, min(max(g, g0 + int(i*step_)), g1-1), g1, CVW if getattr(it, "vm", False) else 1, getattr(it, "lds", False))
            return g
        if ph == SIGAT[0]:
            gp.add(SIGAT[1], lambda: wait(vm=[("HS",)]) + "\ns_barrier", 2)
            gp.add(SIGAT[1], vm(("F",), f"buffer_store_dword v{VFL+2}, v{VFL+1}, s[48:51], s34 offen sc1"))
        seqp(rdi(ph+1), 0)
        if ph == 0:
            seqp([lg(x) for x in du], 11)
            lpf = split(f"""
            s_mov_b32 s16, s52
            s_mov_b32 s17, s53
            s_and_b32 s42, s22, 3
            s_cmp_eq_u32 s42, 1|s_cselect_b32 s18, 7340032, 0
            s_mov_b32 s28, s45
            v_min_u32 v{VFL+4}, 55, v{VL}
            v_lshlrev_b32 v{VFL+4}, 7, v{VFL+4}
            buffer_load_dword v{VFL+5}, v{VFL+4}, s[16:19], s28 offen""", ("PF",)) if SLOWX else []
            g = seqp(lpf + [T(x) for x in sg + g2dma + g2s], 0)
            span = (NG-g-1) + PFEND + PF2; tot = len(pfq)
            k = (tot*(NG-g-1)) // span
            seqp(pfq[:k], g+1, NG, (NG-g-1)/k); pfq = pfq[k:]
        if ph == 1:
            k = len(pfq) if not PF2 else (tot*PFEND) // span
            seqp(pfq[:k], 0, NG, PFEND/k); pfq = pfq[k:]
            g = seqp([T(x) for x in du2 + g2h + g2addr + hp], 0)
        left = []
        if ph == 2:
            YB_ = 12
            if pfq: seqp(pfq, 0, NG, PF2/len(pfq))
            gp.add(YB_, lambda: (LG.drain(), "s_waitcnt lgkmcnt(0)\ns_barrier")[1], 2)
            gp.add(PHAT, vm(("PH",), f"buffer_load_dword v{VPR}, v{VHP}, s[48:51], s25 offen sc1"))
            def hchk():
                sv = a.l; a.l = []
                assert VM.ops.count(("W2", 3)) == 2
                a(wait(vm=[("PH",), ("W2", 3)]))
                if not TWO:
                    stamp(); a(spin("ph", VPR, VHP, "s25", 0xffffffff, sleep=PSL)); a("s_barrier"); stamp()
                else:
                    a(f"""
                    v_cmp_eq_u32 vcc, s44, v{VPR}
                    v_mov_b32 v{T0_+1}, {163836}
                    s_lshl_b32 s24, s20, 2
                    v_subrev_u32 v{T0_+2}, s24, v{T0_+1}
                    s_cmp_eq_u32 vcc_lo, -1
                    s_cselect_b32 s24, s6, 0
                    v_mov_b32 v{T0_}, s24
                    ds_write_b32 v{T0_+2}, v{T0_}
                    s_waitcnt lgkmcnt(0)
                    s_barrier
                    ds_read_b32 v{T0_}, v{T0_+1}
                    """)
                    LG.drain(); LG.issue(("hf",))
                t = "\n".join(a.l); a.l = sv; return t
            gp.add(HCHK, hchk, 6)
            H0 = HCHK + 1
            if TWO:
                gp.add(HCHK+1, vm(("PH",), f"buffer_load_dword v{VPR}, v{VHP}, s[48:51], s25 offen sc1"))
                gp.add(HCHK+3, lambda: wait(lg=[("hf",)]) + f"\nv_readfirstlane_b32 s6, v{T0_}\ns_nop 3", 6)
                H0 = HCHK + 4
            c3 = f"""
            s_lshl_b32 s24, s38, 2
            s_add_u32 s24, s24, s20
            s_cmp_ge_u32 s24, 64|s_cselect_b32 s41, {1792 - 64*C3}, 0
            s_mul_i32 s24, s24, {C3}
            s_add_u32 s24, s24, s41
            s_add_u32 s24, s24, 448
            s_lshl_b32 s24, s24, 11
            s_and_b32 s41, s3, 1
            s_lshl_b32 s41, s41, 10
            s_add_u32 s24, s24, s41
            s_add_u32 s24, s24, 384
            v_min_u32 v{T0_}, {C3-1}, v{VL}
            v_lshlrev_b32 v{T0_}, 11, v{T0_}
            s_mov_b32 s16, s52
            s_mov_b32 s17, s53
            s_mov_b32 s18, 7340032
            buffer_load_dword v{VFL+5}, v{T0_}, s[16:19], s24 offen
            """ if C3 else ""
            seqp(split(c3 + xa, ("E",)), 0, PHAT, 0.5)
            seqp([It(lambda n_=n_, ft=ft, h=h: rd_w2(n_, ft, h), 1, True) for ft in range(8//CH) for n_ in range(CH) for h in range(2)], max(HCHK+1, 64), NG, 0.5)
            seqp([it for n_ in range(HB0-1) for it in ld_h(n_)], H0, NG, 0.5)
            g = 0
            for n_ in range(7):
                at_ = max(i for i, (r, q, p) in enumerate(ms) if q + p == n_) + 3
                for x in combine(n_):
                    w_ = x.startswith("ds_")
                    g2_ = gp.place(T(x), max(g, at_, YB_+1 if w_ else 0), NG, DPW if "dpp" in x else 1, w_) if not left else None
                    if g2_ is None: left.append(x)
                    elif not w_: g = g2_
        for i, (r, q, p) in enumerate(ms):
            n = p + q
            d = f"v[{ACC+16*n}:{ACC+16*n+15}]"
            c = d if n in started else "0"
            started.add(n)
            if FINE2 and ph == 2 and i in (12, 24, 36, 48, 54, 60): fs(True)
            if r == 3: a(wait(lg=[("c", 3, q), ("c", 3, p)]))
            a(f"v_mfma_f32_32x32x16_bf16 {d}, {af(r&1,q)}, {bf(r&1,p)}, {c}")
            for fn in gp.g[i]:
                t = fn()
                if CX:
                    keep = []
                    for x in t.split("\n"):
                        y = x.strip()
                        if "c" in CX and (y.startswith("v_cndmask_b32 v3") or "dpp" in y): continue
                        if "w" in CX and y.startswith("ds_write_b16"): continue
                        if "p" in CX and y.endswith(" lds"): continue
                        if "h" in CX and y.startswith("buffer_load_dwordx4 a["): continue
                        if "d" in CX and (y.startswith("ds_read_u16") or y.startswith("v_mul_f32 v") or y.startswith("v_lshlrev_b32")): continue
                        if "b" in CX and y == "s_barrier": continue
                        keep.append(x)
                    t = "\n".join(keep)
                a(t)
    print("conv leftover", len(left))
    for x in left: a(x)
    if len(left) < 12: a("s_nop 7\ns_nop 3")
    fs(True)
    for x in combine(7): a(x)
    a(f"""
    s_mov_b32 s27, s25
    s_lshl_b32 s25, s20, 12
    v_add_u32 v5, s25, v{VL16}
    v_add_u32 v6, {CVB}, v5
    s_lshl_b32 s24, s2, 14
    s_add_u32 s16, s36, {WS_Y4}
    s_addc_u32 s17, s37, 0
    s_mov_b32 s18, 4194304
    """)
    if TWO:
        stamp()
        a(f"s_cmp_lg_u32 s6, 0\ns_cbranch_scc1 {L('hrdy')}\ns_waitcnt vmcnt(0)")
        a(spin("ph", VPR, VHP, "s27", 0xffffffff, tmp="s41", sleep=PSL))
        a(f"s_waitcnt lgkmcnt(0)\ns_barrier\ns_mov_b32 s6, {NSTEP*HS_}")
        st_ = VM.save()
        for n_ in range(HB0-1):
            for it in ld_h(n_): a(it())
        VM.restore(st_)
        a(f"s_branch {L('hgo')}\n{L('hrdy')}:\ns_waitcnt lgkmcnt(0)\ns_barrier\n{L('hgo')}:")
        stamp()
    else: a("s_waitcnt lgkmcnt(0)\ns_barrier")
    LG.drain()
    fs()
    XF_ = 64; SF = 96; QO = 224
    setup_e = f"""
    v_lshrrev_b32 v13, 4, v{VL}
    v_lshlrev_b32 v16, 12, v{VXA+3}
    v_lshl_add_u32 v16, v{VXA+2}, 3, v16
    v_and_b32 v19, 1, v13
    v_lshlrev_b32 v19, 4, v19
    v_lshrrev_b32 v20, 1, v13
    v_lshl_add_u32 v19, v20, 3, v19
    v_add_u32 v19, s42, v19
    v_lshlrev_b32 v19, 1, v19
    v_lshl_add_u32 v19, v{VXA+2}, 11, v19
    v_add_u32 v20, 32768, v19
    s_lshr_b32 s27, s42, 6
    s_lshl_b32 s27, s27, 8
    s_add_u32 s27, s27, {FL_Y}
    s_add_u32 s56, s36, {WS_PX}|s_addc_u32 s57, s37, 0
    s_mov_b32 s58, {256*32768}
    s_mov_b32 s59, 0x20000
    s_lshl_b32 s32, s38, 3
    s_add_u32 s32, s32, s3
    s_lshl_b32 s32, s32, 15
    s_lshl_b32 s33, s20, 13
    s_add_u32 s32, s32, s33
    s_add_u32 s33, s32, 4096
    s_xor_b32 s34, s32, {128<<15}
    s_xor_b32 s35, s33, {128<<15}
    s_lshr_b32 s29, s44, 8
    s_lshr_b32 s46, s44, 16
    s_lshr_b32 s47, s44, 24
    v_mov_b32 v21, 0xff""".strip().split("\n")
    setup_e = [x.replace("|", "\n") for x in setup_e]
    if FINE or FINE2: setup_e = [x.replace("s32", "s60").replace("s33", "s65") for x in setup_e]
    PXA, PXB = ("s60", "s65") if FINE or FINE2 else ("s32", "s33")
    TAG = ["s44", "s29", "s46", "s47"]
    fi = [0]
    def barrier2(need, drain=False):
        assert VM.ops.count(need[0]) == 2, need
        w = VM.need(need)
        z = LG.need([("z",)]) if drain else None
        fine = ""
        if FINE:
            fi[0] += 1; LG.drain(); z = "lgkmcnt(0)"
            fine = (f"\nv_writelane_b32 v255, s32, {fi[0]-1}" if fi[0] > 1 else "") + "\ns_memtime s[32:33]"
        ws_ = " ".join(x for x in (w, z) if x)
        return (f"s_waitcnt {ws_}\n" if ws_ else "") + "s_barrier" + fine
    TAIL = NSTEP - TN
    groups = [(c, ft) for c in range(TAIL//CH) for ft in range(8)]
    groups += [(c, ft) for c in range(TAIL//CH, NSTEP//CH) for ft in range(4, 8)]
    KEEP0 = len(groups)*2*CH
    groups += [(c, ft) for c in range(TAIL//CH, NSTEP//CH) for ft in range(4)]
    GS = 2*CH; NG = len(groups)*GS
    gp = Gaps(NG)
    for gi in range(1, len(groups)): gp.c[gi*GS - 1] += 1
    def put(its, g0, step_=0.0, g1=None):
        g = g0
        for i, it in enumerate(its): g = gp.force(it, max(g, g0 + int(i*step_)), min(NG, max(g, g0 + int(i*step_)) + 12) if g1 is None else g1, 1)
        return g
    seen = {0}; bar_at = {}; g = 0; lastuse = {}
    for gi, (c, ft) in enumerate(groups):
        if gi >= 8//CH:
            g = max(g, lastuse.get(ft, -1) + 1)
            q = c*CH//4
            if q not in seen:
                seen.add(q); bar_at[q] = g
                gp.add(g, lambda q=q: (ychk() if q == YQ else "") + barrier2([("W2", 4*q+3)] + ([("YS",)] if q == 3 else []), q == 1), 2)
            for j in range(CH):
                for h in range(2):
                    gp.add(g, lambda n_=c*CH+j, ft=ft, h=h: rd_w2(n_, ft, h), lds=True); g += 1
            assert g <= gi*GS - 4, (gi, g)
        lastuse[ft] = (gi+1)*GS - 1
    YQ = NSTEP//4 - 1
    ychk = lambda: wait(vm=[("PY",)]) + "\n" + spin("py", VPR, VFL, "s27", 0xffff, tmp="s41")
    g = bar_at[1] + 1
    ld = []
    for m in range(RP, NSTEP):
        lo = bar_at[1] + 1 if m < R else bar_at[(m-R)//4 + 2] + 1
        g = max(g, lo); ld.append((g, 0, dma2(m))); g += 16 if TN == 8 else 15
    g = 1
    for n in range(HB0-1, NSTEP):
        lo = 1 if n < HD else ((n-HD)//CH + 1)*CH*16
        g = max(g, lo); ld.append((g + 8, 1, ld_h(n))); g += (16 if TN == 8 else 14) if g > bar_at[1] else 8
    ld.sort(key=lambda x: x[:2]); gl = 0
    for g, kind, its in ld: gl = put(its, max(g, gl), 3.0)
    glast = gl
    put([lg(f"ds_read_b128 v[{24+4*i}:{27+4*i}], v6 offset:{1024*i}") for i in range(4)], 1, 3)
    put([It(lambda: wait(lg=[("z",)]))] + [vm(("YS",), f"buffer_store_dwordx4 v[{24+4*i}:{27+4*i}], v5, s[16:19], s24 offen offset:{1024*i} sc1") for i in range(4)], 18, 4)
    put(split(f"s_lshr_b32 s64, s2, 4\ns_lshl_b32 s64, s64, 8\ns_and_b32 s65, s2, 15\ns_lshl_b32 s65, s65, 2\ns_add_u32 s64, s64, s65\ns_add_u32 s64, s64, {FL_Y}"), 40, 2)
    put(split(xs, ("E",)), 64, 2)
    put([vm(("F",), f"buffer_store_dword v{VFL+2}, v{VFL+1}, s[48:51], s64 offen sc1")], bar_at[3] + 1)
    put([T(x) for x in setup_e], bar_at[3] + 4, 2)
    put([vm(("PY",), f"buffer_load_dword v{VPR}, v{VFL}, s[48:51], s27 offen sc1")], bar_at[YQ] - 16*PYB)
    put(split(xd, ("XD",)), glast + 1, 2)
    yl = []
    for ft in range(4):
        for u in range(2):
            i = 2*ft+u
            yl += split((f"s_mov_b32 s43, {ft*65536}\n" if u == 0 else "") + f"buffer_load_dwordx2 v[{YR+2*i}:{YR+2*i+1}], v16, s[16:19], s43 offen offset:{128*u}", ("E",))
    put(yl, bar_at[YQ] + 1, 2.5)
    NPX = 6; SB = 64; send = []
    for i in range(6):
        for r in range(3):
            d = 3*i + r
            if d < 16: send.append(T(f"v_cvt_pk_bf16_f32 v{SB+4*i+r}, v{ACC2+32+2*d}, v{ACC2+33+2*d}"))
        send.append(T(f"v_mov_b32 v{SB+4*i+3}, s44"))
        send.append(vm(("PXS",), f"buffer_store_dwordx4 v[{SB+4*i}:{SB+4*i+3}], v{VL16}, s[56:59], {PXA if i < 4 else PXB} offen offset:{1024*(i&3)} {XST}"))
    put(send, KEEP0 + 1, SSP)
    print("gemm2 over", sum(max(0, c - 2) for c in gp.c), "last load gap", glast, "of", NG, bar_at)
    for gi, (c, ft) in enumerate(groups):
        for k in range(GS):
            u = (k // CH) ^ (gi & 1); n = c*CH + (k % CH if k < CH else CH - 1 - k % CH)
            if k == 0:
                assert all(VM.ops.count(("H", c*CH + j)) == 2 for j in range(CH))
                a(wait(vm=[("H", c*CH + j) for j in range(CH)], lg=[("w", c*CH + j, ft) for j in range(CH)]))
            cc = "0" if c == 0 and k % CH == 0 else acc2(ft, u)
            a(f"v_mfma_f32_16x16x32_bf16 {acc2(ft,u)}, {wf2(n,ft)}, {hf(n % HD, u)}, {cc}")
            for fn in gp.g[gi*GS + k]: a(fn())
    fs(True)
    stamp()
    PXR = 192
    pxl = "\n".join(f"buffer_load_dwordx4 v[{PXR+4*i}:{PXR+3+4*i}], v{VL16}, s[56:59], {'s34' if i < 4 else 's35'} offen offset:{1024*(i&3)} {XLD}" for i in range(NPX))
    a(f"v_mov_b32 v2, v{VL16}\nv_cmp_eq_u32 vcc, 0, v{VL}\nv_mov_b32 v3, {OOB}\nv_mov_b32 v4, 1008\nv_cndmask_b32 v3, v3, v4, vcc")
    pxl = pxl.replace(f"v{VL16},", "v2,")
    a(wait(vm=[("E",), ("XD",)]))
    for x in xr: a(x)
    lp = f"buffer_load_dword v1, v3, s[56:59], s35 offen offset:{1024*((NPX-1)&3) + (12 if XBF else 0)} sc1"
    if EPOLL == 1: a(lp)
    if EPOLL == 2: a(pxl)
    for u in range(2): a(f"v_mul_f32 v{ST+2*u+1}, {f2u(1/C0)}, v{ST+2*u+1}")
    a("s_waitcnt lgkmcnt(0)")
    for i in range(8):
        u = i & 1
        for h in range(2):
            b = 4*i + 2*h
            a(f"""v_lshlrev_b32 v{XF_+b}, 16, v{XR+2*i+h}
            v_and_b32 v{XF_+b+1}, 0xffff0000, v{XR+2*i+h}
            v_lshlrev_b32 v{T6}, 16, v{YR+2*i+h}
            v_and_b32 v{T6+1}, 0xffff0000, v{YR+2*i+h}
            v_pk_add_f32 {pr(SF+b)}, {pr(XF_+b)}, {pr(ST+2*u)} op_sel_hi:[1,0] neg_lo:[0,1] neg_hi:[0,1]
            v_pk_mul_f32 {pr(T6)}, {pr(T6)}, {pr(ST+2*u)} op_sel:[0,1] op_sel_hi:[1,1]
            v_pk_mul_f32 {pr(SF+b)}, {pr(SF+b)}, {pr(T6)}""")
    fs(True); fs(True)
    a(f"""
    s_mov_b32 s16, s54
    s_mov_b32 s17, s55
    s_mov_b32 s24, 0
    s_mov_b32 s42, {f2u(-math.log2(math.e))}
    s_mov_b32 s43, s42
    {"s_branch " + L('px3' if EPOLL == 1 else 'px4') if EPOLL else ""}
    {L('px2')}:
    {lp}
    {L('px3')}:
    s_add_u32 s24, s24, 1
    s_cmp_gt_u32 s24, {SPIN}
    s_cbranch_scc1 {L('px_ok')}
    s_waitcnt vmcnt(0)
    v_xor_b32 v1, {TAG[0]}, v1
    {'' if XBF else 'v_and_b32 v1, v1, v21'}
    v_cmp_eq_u32 vcc, 0, v1
    s_nop 4
    s_bitcmp1_b32 vcc_lo, 0
    s_cbranch_scc1 {L('px')}
    s_sleep {XSL}
    s_branch {L('px2')}
    {L('px')}:
    """)
    a(pxl)
    a(f"{L('px4')}:")
    for i in range(NPX):
        a(f"s_waitcnt vmcnt({NPX-1-i})")
        if XBF:
            a(f"v_xor_b32 v1, s44, v{PXR+3}" if i == 0 else f"v_bitop3_b32 v1, v1, v{PXR+4*i+3}, s44 bitop3:0xf6")
            for r in range(3):
                d = 3*i + r
                if d < 16: a(f"v_lshlrev_b32 v{ACC2+32+2*d}, 16, v{PXR+4*i+r}\nv_and_b32 v{ACC2+33+2*d}, 0xffff0000, v{PXR+4*i+r}")
        else:
            for r in range(4*i, 4*i+4):
                a(f"v_xor_b32 v1, {TAG[0]}, v{PXR}" if r == 0 else f"v_bitop3_b32 v1, v1, v{PXR+r}, {TAG[r&3]} bitop3:0xf6")
    if XBF: PXR = ACC2 + 32
    a(f"""
    {'' if XBF else 'v_and_b32 v1, 0xff, v1'}
    v_cmp_ne_u32 vcc, 0, v1
    s_nop 4
    s_cbranch_vccnz {L('px2')}
    {L('px_ok')}:
    """)
    stamp()
    E = T6
    for ft in range(4):
        for u in range(2):
            i = 2*ft+u; O = ACC2 + 4*i; S_ = SF + 4*i; X_ = XF_ + 4*i
            for h in range(2): a(f"v_pk_add_f32 {pr(O+2*h)}, {pr(O+2*h)}, {pr(PXR+4*i+2*h)}")
            for h in range(2): a(f"v_pk_mul_f32 {pr(E+2*h)}, {pr(O+2*h)}, s[42:43]")
            for r in range(4): a(f"v_exp_f32 v{E+r}, v{E+r}")
            for h in range(2): a(f"v_pk_mul_f32 {pr(S_+2*h)}, {pr(S_+2*h)}, {pr(O+2*h)}")
            for h in range(2): a(f"v_pk_add_f32 {pr(E+2*h)}, {pr(E+2*h)}, 1.0 op_sel_hi:[1,0]")
            for r in range(4): a(f"v_rcp_f32 v{E+r}, v{E+r}")
            a("s_nop 0")
            for h in range(2): a(f"v_pk_fma_f32 {pr(S_+2*h)}, {pr(S_+2*h)}, {pr(E+2*h)}, {pr(X_+2*h)}")
            Q = QO + 8*(ft>>1) + 4*u + 2*(ft&1)
            for h in range(2): a(f"v_cvt_pk_bf16_f32 v{Q+h}, v{S_+2*h}, v{S_+2*h+1}")
        if ft & 1:
            a("s_nop 1")
            for u in range(2):
                Q = QO + 8*(ft>>1) + 4*u
                a(f"v_permlane16_swap_b32 v{Q}, v{Q+2}\nv_permlane16_swap_b32 v{Q+1}, v{Q+3}")
            for u in range(2):
                Q = QO + 8*(ft>>1) + 4*u
                a(f"buffer_store_dwordx4 v[{Q}:{Q+3}], v{19+u}, s[16:19], 0 offen offset:{64*(ft>>1)} {OSC}")
    if STAMP:
        a("s_waitcnt vmcnt(0)")
        stamp()
        a(f"""
        s_waitcnt lgkmcnt(0)
        s_cmp_eq_u32 s20, 0
        s_cbranch_scc0 {L('end')}
        s_add_u32 s12, s36, {WS_TS}
        s_addc_u32 s13, s37, 0
        s_mov_b32 s14, 65536
        s_lshl_b32 s41, s2, 7
        v_mov_b32 v1, 0
        """)
        a("v_mov_b32 v4, v2")
        for i in range(nst[0]):
            a(f"v_mov_b32 v2, s{66+4*i}\nv_mov_b32 v3, s{68+4*i}\nbuffer_store_dwordx2 v[2:3], v1, s[12:15], s41 offen offset:{8*i}\ns_nop 1")
        assert 69 + 4*(nst[0]-1) <= 101
        if FINE1: a("v_accvgpr_read_b32 v255, a252")
        if FINE or FINE1 or FINE2:
            a(f"s_lshl_b32 s41, s2, 8\ns_add_u32 s41, s41, 0x40000\ns_mov_b32 s14, 0x80000\nv_lshrrev_b32 v1, 2, v4\nbuffer_store_dword v255, v1, s[12:15], s41 offen")
    a(f"{L('end')}:\ns_endpgm")
    return a.text()

def check_m0(t):
    own = {"s43": "s[8:11]", "s26": "s[4:7]", "s29": "s[12:15]", "s60": "s[16:19]", "s45": "s["}
    cur = None; k = 0; prev = ""
    for ln in t.split("\n"):
        x = ln.strip()
        m = re.match(r"s_add_u32 m0, (s\d+),", x)
        if m: assert cur is None or k == 4, ("m0 rewritten early", x); cur = m.group(1); k = 0
        elif x.endswith(" lds"):
            assert own[cur] in x and f"offset:{1024*k} " in x and "m0" not in prev, (cur, k, x); k += 1
        prev = x
def add_stubs(body):
    import subprocess
    lines = body.split("\n")
    tmp = "\n".join(lines) + "\n" + "".join(f"L_k_w{i}:\n" for i in range(4))
    open("stub.s", "w").write('.amdgcn_target "amdgcn-amd-amdhsa--gfx950"\n.text\n' + KN + ":\n" + tmp)
    subprocess.run(["clang", "-x", "assembler", "-target", "amdgcn-amd-amdhsa", "-mcpu=gfx950", "-c", "stub.s", "-o", "stub.o"], check=True)
    dis = subprocess.run(["llvm-objdump", "-d", "--mcpu=gfx950", "stub.o"], capture_output=True, text=True).stdout
    ad = [(int(m.group(1), 16), len(m.group(2).split())*4) for m in re.finditer(r"// ([0-9A-F]{12}): ((?:[0-9A-F]{8} ?)+)", dis)]
    sizes = [sz for adr, sz in ad if adr >= 4096]
    i0 = lines.index("L_k_main:")
    out = lines[:i0+1]; pos = 0; k = 0; n = 0; nxt = 4096
    for ln in lines[i0+1:]:
        x = ln.split(";")[0].strip()
        if x and not x.endswith(":"):
            if pos >= nxt:
                out += [f"L_k_w{n}:", f"    s_cbranch_execz @{n}"]; n += 1; pos += 4; nxt += 4096
            pos += sizes[k]; k += 1
        out.append(ln)
    assert k == len(sizes) and n >= 4, (k, len(sizes))
    return "\n".join(re.sub(r"@(\d+)", lambda m: f"L_k_w{int(m.group(1))+4}" if int(m.group(1))+4 < n else "L_k_wback", x) if "execz @" in x else x for x in out)
def make(fn, **kw):
    body = gen("k", **kw)
    if not kw.get('G2X') and not kw.get('CX'): check_m0(body)
    if kw.get("WARM", True): body = add_stubs(body)
    t = header([(KN, 256, 256, 163840)]) + kstart(KN) + body + rodata() + kdesc(KN, 512, 256)
    open(fn, "w").write(t)
if __name__ == "__main__":
    import sys
    B = dict(KPS=6, P0AT=(2,1,6), ROT0=9, KNT="", PYB=8, PFEND=36, KORD=[0,1,2,4,5,6,7,8,9,10,12,13,3,14,11,15])
    make("t5.s", STAMP=True, **B); make("t5_ns.s", **B)
    make("t5a.s", STAMP=True, MIGN=12, **B)
```
